```python
import torch

def _softmax(x, axis=-1):
    return torch.softmax(x, dim=axis)
def _gelu(x):
    return torch.nn.functional.gelu(x, approximate="tanh")
def _silu(x):
    return torch.nn.functional.silu(x)
def _sigmoid(x):
    return torch.sigmoid(x)
def _layernorm(x, axis=-1, eps=1e-5):
    m = x.mean(dim=axis, keepdim=True)
    v = x.var(dim=axis, keepdim=True, unbiased=False)
    return (x - m) / torch.sqrt(v + eps)
def _scatter_add(tgt, idx, src, axis=0):
    return tgt.clone().index_add_(axis, idx, src)
def _segment_sum(src, seg, n):
    out = torch.zeros((n,) + src.shape[1:], dtype=src.dtype)
    return out.index_add_(0, seg, src)
def _pad(x, pw):
    flat = tuple(v for pair in reversed(pw) for v in pair)
    return torch.nn.functional.pad(x, flat)

kernel_name = 'recurrent_scan__grouped_kv_mqa__mixer_channel_mlp__prompt'

def setup_inputs():

    _w = (lambda a: (lambda t: t.to(torch.bfloat16) if t.is_floating_point() else t)(torch.as_tensor(a)))
    def _A_setup():
        B, S, D, H = 1, 2048, 512, 32
        Dh = D // H
        return {
            "x": _w((lambda *s: torch.randn(*s, dtype=torch.bfloat16) * 0.05)(B, S, D)),
            "wq": _w((lambda *s: torch.randn(*s, dtype=torch.bfloat16) * 0.05)(D, H * Dh)),
            "wk": _w((lambda *s: torch.randn(*s, dtype=torch.bfloat16) * 0.05)(D, Dh)),
            "wv": _w((lambda *s: torch.randn(*s, dtype=torch.bfloat16) * 0.05)(D, Dh)),
            "wo": _w((lambda *s: torch.randn(*s, dtype=torch.bfloat16) * 0.05)(H * Dh, D)),
        }
    _A_in = _A_setup()

    def _B_setup():
        B, S, D, F = 1, 2048, 512, 1376
        return {
            "x": _w((lambda *s: torch.randn(*s, dtype=torch.bfloat16) * 0.05)(B, S, D)),
            "w1": _w((lambda *s: torch.randn(*s, dtype=torch.bfloat16) * 3.2)(D, F) * (D ** -0.5)),
            "b1": _w((lambda *s: torch.randn(*s, dtype=torch.bfloat16) * 1.6)(F)),
            "w2": _w((lambda *s: torch.randn(*s, dtype=torch.bfloat16) * 0.05)(F, D) * (F ** -0.5)),
            "b2": _w((lambda *s: torch.randn(*s, dtype=torch.bfloat16) * 0.05)(D)),
        }
    _B_in = _B_setup()

    return {
        "A_x": _A_in["x"],
        "A_wq": _A_in["wq"],
        "A_wk": _A_in["wk"],
        "A_wv": _A_in["wv"],
        "A_wo": _A_in["wo"],
        "B_x": _B_in["x"],
        "B_w1": _B_in["w1"],
        "B_b1": _B_in["b1"],
        "B_w2": _B_in["w2"],
        "B_b2": _B_in["b2"],
    }

def reference(A_x, A_wq, A_wk, A_wv, A_wo, B_x, B_w1, B_b1, B_w2, B_b2):
    def _A_ref(x, wq, wk, wv, wo):
        B, S, D = x.shape
        H = 32
        Dh = D // H
        q = (lambda x, *d: x.permute(*d))((x @ wq).reshape(B, S, H, Dh), 0, 2, 1, 3)
        k = x @ wk
        v = x @ wv
        scores = torch.einsum("bhqd,bkd->bhqk", q, k) * (Dh ** -0.5)
        p = _softmax(scores, axis=-1)
        o = torch.einsum("bhqk,bkd->bhqd", p, v)
        return (lambda x, *d: x.permute(*d))(o, 0, 2, 1, 3).reshape(B, S, H * Dh) @ wo

    def _B_ref(x, w1, b1, w2, b2):
        y = _layernorm(x, axis=-1)
        h = _gelu(torch.einsum("bsd,df->bsf", y, w1) + b1)
        return torch.einsum("bsf,fd->bsd", h, w2) + b2

    x = A_x
    xn = _layernorm(x, axis=-1)
    s = _A_ref(xn, A_wq, A_wk, A_wv, A_wo)
    g = _silu(_B_ref(xn, B_w1, B_b1, B_w2, B_b2))
    return x + s * g
```

```python
import re

TRANS = ("v_exp_f32", "v_log_f32", "v_rcp_f32", "v_rsq_f32", "v_sqrt_f32", "v_sin_f32", "v_cos_f32")


def regs_of(tok):
    tok = tok.strip().strip("|")
    if tok.startswith("-"):
        tok = tok[1:].strip("|")
    m = re.fullmatch(r"([vs])(\d+)", tok)
    if m:
        return [(m.group(1), int(m.group(2)))]
    m = re.fullmatch(r"([vs])\[(\d+):(\d+)\]", tok)
    if m:
        return [(m.group(1), i) for i in range(int(m.group(2)), int(m.group(3)) + 1)]
    if tok == "vcc":
        return [("s", "vcc")]
    if tok == "exec":
        return [("s", "exec")]
    if tok == "m0":
        return [("s", "m0")]
    return []


class Ins:
    def __init__(self, text):
        self.text = text
        t = text.split(";")[0].strip()
        self.label = t[:-1] if t.endswith(":") else None
        self.directive = t.startswith(".")
        self.op = None
        self.w, self.r = [], []
        self.srcc = []
        self.srcab = []
        self.kind = None
        self.passes = 0
        self.target = None
        if self.label or self.directive or not t:
            return
        parts = t.split(None, 1)
        op = self.op = parts[0]
        rest = parts[1] if len(parts) > 1 else ""
        ops = [o.strip() for o in re.split(r",(?![^\[]*\])", rest)] if rest else []
        mods = ""
        if ops:
            last = ops[-1].split(None, 1)
            ops[-1] = last[0]
            mods = last[1] if len(last) > 1 else ""
        self.mods = mods
        R = [regs_of(o) for o in ops]
        if op.startswith("v_mfma") or op.startswith("v_smfmac"):
            self.kind = "mfma"
            self.passes = 8 if "32x32" in op else 4
            self.w = R[0]
            if op.startswith("v_smfmac"):
                self.srcc = R[0]
                self.srcab = R[1] + R[2] + R[3]
            else:
                self.srcc = R[3]
                self.srcab = R[1] + R[2]
            self.r = self.srcc + self.srcab
        elif op.startswith("v_"):
            self.kind = "valu"
            if op.startswith("v_cmp"):
                self.w = R[0]
                self.r = sum(R[1:], [])
            elif op.startswith("v_permlane"):
                self.w = R[0] + R[1]
                self.r = R[0] + R[1]
            elif op.startswith(("v_add_co", "v_addc_co", "v_sub_co")):
                self.w = R[0] + R[1]
                self.r = sum(R[2:], [])
            else:
                self.w = R[0]
                self.r = sum(R[1:], [])
                if op.startswith(("v_fmac", "v_dot2c")) or "dpp" in op:
                    self.r = self.r + R[0]
        elif op.startswith("ds_"):
            self.kind = "ds"
            if op.startswith(("ds_read", "ds_bpermute", "ds_swizzle")) or "_rtn" in op:
                self.w = R[0]
                self.r = sum(R[1:], [])
            else:
                self.r = sum(R, [])
        elif op.startswith(("buffer_", "global_")):
            self.kind = "vmem"
            if "lds" in mods.split():
                self.r = sum(R, []) + [("s", "m0")]
                self.dma = True
            elif "load" in op:
                self.w = R[0]
                self.r = sum(R[1:], [])
            else:
                self.r = sum(R, [])
                if op.endswith(("x3", "x4")):
                    self.wide_data = R[0] if op.startswith("buffer_") else R[1]
        elif op.startswith("s_"):
            self.kind = "salu"
            if op in ("s_branch",) or op.startswith("s_cbranch"):
                self.target = ops[0]
                if "vcc" in op:
                    self.r = [("s", "vcc")]
            elif op.startswith("s_cmp") or op in ("s_waitcnt", "s_nop", "s_barrier", "s_sleep", "s_setprio", "s_endpgm"):
                self.r = sum(R, [])
            else:
                self.w = R[0]
                self.r = sum(R[1:], [])
                if "saveexec" in op:
                    self.w = self.w + [("s", "exec")]

    def states(self):
        if self.op is None:
            return 0
        if self.op == "s_nop":
            return int(self.text.split(";")[0].split()[1]) + 1
        return 1


def need(p, c):
    n = 0
    pw, cr, cw = set(p.w), set(c.r), set(c.w)
    if p.kind == "valu":
        vw = {x for x in pw if x[0] == "v"}
        sw = {x for x in pw if x[0] == "s"}
        if c.kind == "mfma" and vw & cr:
            n = max(n, 2)
        if c.kind == "valu":
            if p.op.startswith(TRANS) and not c.op.startswith(TRANS) and vw & cr:
                n = max(n, 1)
            if ("dpp" in c.op or c.op.startswith("v_permlane")) and vw & cr:
                n = max(n, 2)
            if c.op.startswith(("v_readlane", "v_readfirstlane")) and vw & cr:
                n = max(n, 1)
            if sw & cr:
                n = max(n, 4 if c.op.startswith(("v_readlane", "v_writelane")) else 2)
        if c.kind == "vmem" and sw & cr:
            n = max(n, 5)
        if p.op.startswith("v_dot2") and c.kind is not None and (vw & (cr | cw)):
            same = c.op == p.op
            if same:
                ops = [o.strip() for o in c.text.split(";")[0].split(None, 1)[1].split(",")]
                ab = set(regs_of(ops[1].split()[0]) + regs_of(ops[2].split()[0]))
                if vw & ab:
                    n = max(n, 3)
            else:
                n = max(n, 3)
    if p.kind == "mfma":
        big = 12 if p.passes == 8 else 8
        if c.kind == "mfma":
            if pw & set(c.srcab):
                n = max(n, big)
            if pw & set(c.srcc) and not (p.w == c.srcc and p.passes == c.passes):
                n = max(n, big - 2)
            if pw & cw and p.passes != c.passes:
                n = max(n, big)
        elif c.kind in ("valu", "ds", "vmem") and pw & (cr | cw):
            n = max(n, big)
        if c.kind == "valu" and set(p.srcc) & cw:
            n = max(n, 7 if p.passes == 8 else 3)
    if p.kind == "salu" and ("s", "m0") in pw and getattr(c, "dma", False):
        n = max(n, 1)
    if hasattr(p, "wide_data") and set(p.wide_data) & cw:
        n = max(n, 2 if c.kind in ("valu", "mfma") else 1)
    return n


class Prog:
    def __init__(self):
        self.lines = []

    def __call__(self, text):
        for l in text.split("\n"):
            if l.strip():
                self.lines.append(l.strip())

    def fix_hazards(self, verbose=True):
        ins = [Ins(l) for l in self.lines]
        inserted = []
        changed = True
        while changed:
            changed = False
            labels = {x.label: i for i, x in enumerate(ins) if x.label}
            preds = [[] for _ in ins]
            for i, x in enumerate(ins):
                if x.target is not None:
                    preds[labels[x.target]].append(i)
                if i + 1 < len(ins) and x.op not in ("s_branch", "s_endpgm"):
                    preds[i + 1].append(i)
            for i, c in enumerate(ins):
                if c.op is None:
                    continue
                worst = 0
                stack = [(j, 0) for j in preds[i]]
                seen = {}
                while stack:
                    j, d = stack.pop()
                    if d >= 12 or seen.get(j, 99) <= d:
                        continue
                    seen[j] = d
                    p = ins[j]
                    if p.op is not None:
                        k = need(p, c) - d
                        if k > worst:
                            worst, who = k, p
                    for q in preds[j]:
                        stack.append((q, d + p.states()))
                if worst > 0:
                    ins.insert(i, Ins(f"s_nop {worst - 1}"))
                    inserted.append((worst, who.text, c.text))
                    changed = True
                    break
        if verbose:
            for w, a, b in inserted:
                print(f"; hazard pad {w}: [{a}] -> [{b}]")
        self.lines = [x.text for x in ins]
        return inserted

    def text(self):
        out = []
        for l in self.lines:
            out.append(l if (l.endswith(":") or l.startswith(".")) else "    " + l)
        return "\n".join(out) + "\n"


class Queue:
    def __init__(self, p, name, cap):
        self.p, self.name, self.cap = p, name, cap
        self.q = []

    def issue(self, tag):
        self.q.append(tag)

    def wait(self, tag):
        idx = [i for i, t in enumerate(self.q) if t == tag]
        if not idx:
            return
        n = len(self.q) - 1 - idx[-1]
        n = min(n, self.cap)
        self.p(f"s_waitcnt {self.name}({n})")
        self.q = self.q[len(self.q) - n:] if n else []

    def drain(self):
        self.p(f"s_waitcnt {self.name}(0)")
        self.q = []
```

```python
import sys, struct, math
from asmlib import Prog, Queue

NAME = "recurrent_scan__grouped_kv_mqa__mixer_channel_mlp__prompt"

def f2u(x):
    return struct.unpack("<I", struct.pack("<f", x))[0]
def hx(x):
    return f"0x{f2u(x):08x}"

X = 0; XS = 1040; XSL = 16640
WQ = 66560
WKV = 132096; GA = WKV
QX = 148480
ST = 156672
CNT = 157184
LDS_BYTES = 157696
OP = X; GP = X
FKV = 0x1000; FH = 0x2000; FO = 0x3000
KV = 0x10000; OF = 0x40000; HF = 0x240000; HTG = 86 * 2048
STAMP = 0x800000
WS_RANGE = 0x1000000
rX, rWS, rWQ, rWKV, rW1, rW2, rWO, rB1, rB2, rOUT = 4, 8, 12, 16, 20, 24, 28, 32, 36, 40
sW, sTG, sCG, sN, sTB, sJ = 44, 45, 46, 47, 52, 53
sONE, sLO, sHI = 64, 65, 66
srd = lambda r: f"s[{r}:{r+3}]"
vr = lambda a, n: f"v[{a}:{a+n-1}]"
LOG2E = 1.4426950408889634
SPIN = 1 << 20


class Gen:
    def __init__(self, stamps=False, opts=None):
        self.p = Prog()
        self.stamps = stamps
        self.o = opts or {}
        self.uid = 0

    def lab(self, s):
        self.uid += 1
        return f"L_{s}_{self.uid}"

    def stamp(self, i):
        if self.stamps:
            self.p(f"s_waitcnt lgkmcnt(0)\ns_memrealtime s[70:71]\ns_waitcnt lgkmcnt(0)\ns_mov_b32 s{72+i}, s70")

    def cnt_signal(self, k, vaddr, vone):
        self.p(f"s_mov_b64 exec, 1\nds_add_u32 v{vaddr}, v{vone} offset:{4*k}\ns_mov_b64 exec, -1")

    def cnt_wait(self, k, target, vaddr, vt, sleep=1):
        p = self.p
        l, d = self.lab("cw"), self.lab("cd")
        p(f"s_mov_b32 s54, {SPIN}\n{l}:\nds_read_b32 v{vt}, v{vaddr} offset:{4*k}\ns_waitcnt lgkmcnt(0)")
        p(f"v_readfirstlane_b32 s55, v{vt}\ns_cmp_ge_u32 s55, {target}\ns_cbranch_scc1 {d}")
        if sleep:
            p(f"s_sleep {sleep}")
        p(f"s_sub_u32 s54, s54, 1\ns_cmp_lg_u32 s54, 0\ns_cbranch_scc1 {l}\n{d}:")

    def flag_wait(self, vaddr, soff, vt, sleep=1):
        p = self.p
        l, d = self.lab("fw"), self.lab("fd")
        p(f"s_mov_b32 s54, {SPIN}\n{l}:\nbuffer_load_dword v{vt}, v{vaddr}, {srd(rWS)}, s{soff} offen sc1\ns_waitcnt vmcnt(0)")
        p(f"v_cmp_ne_u32 vcc, s{sN}, v{vt}\ns_cbranch_vccz {d}")
        if sleep:
            p(f"s_sleep {sleep}")
        p(f"s_sub_u32 s54, s54, 1\ns_cmp_lg_u32 s54, 0\ns_cbranch_scc1 {l}\n{d}:")

    @staticmethod
    def merge(*lists):
        out = []
        n = max(len(l) for l in lists)
        for i in range(n):
            for l in lists:
                if i < len(l):
                    out.append(l[i])
        return out

    def entry(self):
        p = self.p
        if self.stamps:
            p("s_memrealtime s[70:71]")
        p(f"""
s_load_dwordx2 s[{rX}:{rX+1}], s[0:1], 0
s_load_dwordx4 s[48:51], s[0:1], 16
s_load_dwordx2 s[{rWS}:{rWS+1}], s[0:1], 96
s_load_dwordx2 s[{rWQ}:{rWQ+1}], s[0:1], 8
s_cmp_ge_u32 s2, 256
s_cbranch_scc1 L_exit
s_getpc_b64 s[54:55]
L_pc:
v_lshlrev_b32 v3, 6, v0
v_min_u32 v3, L_code_end-L_pc-4, v3
v_mov_b32 v5, s55
v_add_co_u32 v4, vcc, s54, v3
v_lshrrev_b32 v7, 6, v0
v_and_b32 v1, 63, v0
v_addc_co_u32 v5, vcc, 0, v5, vcc
v_readfirstlane_b32 s{sW}, v7
global_load_dword v6, v[4:5], off
s_load_dwordx2 s[{rW1}:{rW1+1}], s[0:1], 48
s_load_dwordx2 s[{rB1}:{rB1+1}], s[0:1], 56
s_load_dwordx2 s[{rW2}:{rW2+1}], s[0:1], 64
s_load_dwordx2 s[{rB2}:{rB2+1}], s[0:1], 72
s_load_dwordx2 s[{rOUT}:{rOUT+1}], s[0:1], 80
s_load_dwordx2 s[{rWO}:{rWO+1}], s[0:1], 32
s_and_b32 s3, s2, 7
s_lshr_b32 s54, s2, 3
s_and_b32 s{sCG}, s54, 7
s_lshr_b32 s54, s54, 3
s_lshl_b32 s3, s3, 2
s_add_u32 s{sTG}, s3, s54
s_lshr_b32 s{sTB}, s{sCG}, 1
s_and_b32 s{sJ}, s{sW}, 3
v_lshlrev_b32 v2, 4, v1
v_and_b32 v8, 32, v1
s_lshl_b32 s54, s{sW}, 11
v_lshl_add_u32 v8, v8, 4, v2
v_add_u32 v8, s54, v8
s_mov_b32 s{rX+2}, 2097152
s_mov_b32 s{rX+3}, 0x20000
s_mov_b32 s{rWKV+2}, 16384
s_mov_b32 s{rWKV+3}, 0x20000
s_lshl_b32 s56, s{sTG}, 16
s_lshl_b32 s57, s{sTB}, 14
s_add_u32 m0, s54, {WKV}
s_add_u32 s58, s56, s57
s_and_b32 s3, s{sCG}, 1
s_cmp_eq_u32 s3, 0
s_waitcnt lgkmcnt(0)
s_cselect_b32 s{rWKV}, s48, s50
s_cselect_b32 s{rWKV+1}, s49, s51
""")
        if self.stamps:
            p("s_mov_b32 s72, s70")
        p(f"""
buffer_load_dwordx4 v[16:19], v8, {srd(rX)}, s58 offen
buffer_load_dwordx4 v[20:23], v8, {srd(rX)}, s58 offen offset:512
buffer_load_dwordx4 v2, {srd(rWKV)}, s54 offen lds
buffer_load_dwordx4 v2, {srd(rWKV)}, s54 offen offset:1024 lds
s_load_dword s{sN}, s[{rWS}:{rWS+1}], 0
""")
        for i in (1, 2, 3):
            p(f"""
s_add_u32 s57, s57, 16384
s_and_b32 s57, s57, 0xffff
s_add_u32 s58, s56, s57
buffer_load_dwordx4 {vr(16+8*i,4)}, v8, {srd(rX)}, s58 offen
buffer_load_dwordx4 {vr(20+8*i,4)}, v8, {srd(rX)}, s58 offen offset:512
""")
        for r, n in ((rWS, WS_RANGE), (rWQ, 524288), (rW1, 512 * 2752), (rW2, 1376 * 1024), (rWO, 524288),
                     (rB1, 2752), (rB2, 1024), (rOUT, 2097152)):
            p(f"s_mov_b32 s{r+2}, {n}\ns_mov_b32 s{r+3}, 0x20000")
        p(f"s_mov_b32 s{sONE}, 0x3f803f80\ns_mov_b32 s{sLO}, 0x00003f80\ns_mov_b32 s{sHI}, 0x3f800000")
        p(f"""
v_lshrrev_b32 v3, 2, v1
v_and_b32 v3, 4, v3
v_and_b32 v4, 7, v1
v_xor_b32 v14, v3, v4
v_lshrrev_b32 v15, 3, v1
v_lshlrev_b32 v9, 10, v15
v_lshl_add_u32 v9, v14, 4, v9
s_lshl_b32 s3, s{sCG}, 7
v_add_u32 v9, s3, v9
s_cmp_ge_u32 s{sW}, 4
s_cbranch_scc1 L_pre_g
s_lshl_b32 s54, s{sW}, 17
s_lshl_b32 s55, s{sW}, 14
s_add_u32 s55, s55, {WQ}
""")
        for i in range(16):
            p(f"s_mov_b32 m0, s55\ns_add_u32 s55, s55, 1024\nbuffer_load_dwordx4 v9, {srd(rWQ)}, s54 offen lds\ns_add_u32 s54, s54, 8192")
        p(f"""
s_waitcnt vmcnt(22)
s_branch L_pre_j
L_pre_g:
s_min_u32 s3, s{sCG}, 3
s_mul_i32 s59, s{sCG}, 5
s_add_u32 s59, s59, s3
s_lshr_b32 s3, s{sJ}, 1
s_mul_i32 s3, s3, 3
s_add_u32 s59, s59, s3
s_and_b32 s3, s{sJ}, 1
s_cmp_lt_u32 s{sCG}, 3
s_cselect_b32 s60, 1, 0
s_cmp_lt_u32 s{sJ}, 2
s_cselect_b32 s60, 1, s60
s_and_b32 s61, s60, s3
s_add_u32 s59, s59, s61
s_add_u32 s61, s59, s3
s_xor_b32 s3, s3, 1
s_add_u32 s62, s59, s3
v_lshrrev_b32 v3, 2, v1
v_and_b32 v3, 8, v3
s_lshl_b32 s54, s61, 6
s_lshl_b32 s55, s62, 6
""")
        for a in range(4):
            p(f"buffer_load_dwordx2 {vr(192+2*a,2)}, v3, {srd(rB1)}, s54 offen offset:{16*a}")
        for a in range(4):
            p(f"buffer_load_dwordx2 {vr(200+2*a,2)}, v3, {srd(rB1)}, s55 offen offset:{16*a}")
        p(f"""
s_waitcnt vmcnt(14)
L_pre_j:
v_lshrrev_b32 v3, 5, v1
s_lshl_b32 s3, s{sW}, 1
v_add_u32 v3, s3, v3
v_mul_u32_u24 v10, {XS}, v3
v_and_b32 v4, 31, v1
v_lshl_add_u32 v10, v4, 4, v10
v_lshlrev_b32 v11, 2, v3
v_add_u32 v11, {ST}, v11
v_mov_b32 v12, {CNT}
v_mov_b32 v13, 1
v_mov_b32 v4, 0
v_mov_b32 v5, 0
s_mov_b64 exec, 1
ds_write_b64 v12, v[4:5]
ds_write_b64 v12, v[4:5] offset:8
s_mov_b64 exec, -1
s_barrier
""")
        self.stamp(1)

    def center_ops(self, i, tA, tB, tmp, tadr):
        a = 16 + 8 * i
        o = []
        for k in range(8):
            o.append(f"v_dot2_f32_bf16 v{tA}, v{a+k}, s{sONE}, {'0' if k == 0 else f'v{tA}'}")
            o.append(f"v_dot2_f32_bf16 v{tB}, v{a+k}, v{a+k}, {'0' if k == 0 else f'v{tB}'}")
        o.append(f"s_add_u32 s{48+i}, s{sTB}, {i}")
        o.append(f"s_and_b32 s{48+i}, s{48+i}, 3")
        o.append(f"s_mul_i32 s{96+i}, s{48+i}, {XSL}")
        o.append(f"v_permlane16_swap_b32 v{tA}, v{tB}")
        o.append(f"v_add_f32 v{tA}, v{tA}, v{tB}")
        o.append(f"v_add_u32 v{tadr}, s{96+i}, v10")
        o.append(f"s_lshl_b32 s{48+i}, s{48+i}, 6")
        for c in ("quad_perm:[1,0,3,2]", "quad_perm:[2,3,0,1]", "row_half_mirror", "row_mirror"):
            o.append(f"v_add_f32_dpp v{tA}, v{tA}, v{tA} {c} row_mask:0xf bank_mask:0xf")
        o.append(f"v_mov_b32 v{tB}, v{tA}")
        o.append(f"v_add_u32 v{tadr+1}, s{48+i}, v11")
        o.append(f"v_permlane16_swap_b32 v{tA}, v{tB}")
        o.append(f"v_mul_f32 v{tA}, {hx(-1.0/512)}, v{tA}")
        o.append(f"v_mul_f32 v{tB}, {hx(1.0/512)}, v{tB}")
        for k in range(8):
            o.append(f"v_dot2_f32_bf16 v{tmp+2*k}, v{a+k}, s{sLO}, v{tA}")
            o.append(f"v_dot2_f32_bf16 v{tmp+2*k+1}, v{a+k}, s{sHI}, v{tA}")
        o.append(f"v_fma_f32 v{tB}, -v{tA}, v{tA}, v{tB}")
        o.append(f"v_max_f32 v{tB}, 0, v{tB}")
        o.append(f"v_add_f32 v{tA}, {hx(1e-5)}, v{tB}")
        for k in range(4):
            o.append(f"v_cvt_pk_bf16_f32 v{a+k}, v{tmp+2*k}, v{tmp+2*k+1}")
        o.append(f"v_rsq_f32 v{tA}, v{tA}")
        o.append(f"ds_write_b128 v{tadr}, {vr(a,4)}")
        for k in range(4, 8):
            o.append(f"v_cvt_pk_bf16_f32 v{a+k}, v{tmp+2*k}, v{tmp+2*k+1}")
        o.append(f"v_mul_f32 v{tB}, v{tA}, v{tB}")
        o.append(f"ds_write_b128 v{tadr}, {vr(a+4,4)} offset:512")
        o.append(f"v_mul_f32 v{tB}, v{tA}, v{tB}")
        o.append(f"v_add_f32 v{tB}, {hx(1e-5)}, v{tB}")
        o.append(f"v_rsq_f32 v{tB}, v{tB}")
        o.append(f"v_mul_f32 v{tB}, v{tA}, v{tB}")
        return o

    def stats_write(self, items):
        p = self.p
        p("s_mov_b32 exec_lo, 1\ns_mov_b32 exec_hi, 1")
        for tA, tB, tadr in items:
            p(f"ds_write2st64_b32 v{tadr+1}, v{tA}, v{tB} offset1:1")
        p("s_mov_b64 exec, -1")

    def prologue(self):
        p = self.p
        p(f"""
s_cmp_lg_u32 s{sW}, 7
s_cbranch_scc1 L_nokvw
s_setprio 3
v_lshrrev_b32 v3, 4, v1
v_lshlrev_b32 v3, 8, v3
v_and_b32 v4, 15, v1
v_lshl_add_u32 v3, v4, 3, v3
v_add_u32 v3, {WKV}, v3
""")
        for s in range(16):
            for t in range(2):
                p(f"ds_read_b64_tr_b16 {vr(64+4*s+2*t,2)}, v3 offset:{s*1024+t*128}")
        p("L_nokvw:")
        for l in self.center_ops(0, 48, 49, 208, 50):
            p(l)
        self.stats_write([(48, 49, 50)])
        p("s_waitcnt lgkmcnt(0)\ns_barrier")
        self.stamp(2)
        p(f"s_add_u32 s{sN}, s{sN}, 0x9e3779b9")
        p(f"s_cmp_lg_u32 s{sW}, 7\ns_cbranch_scc1 L_nokv")
        self.kv_job()
        p("L_nokv:")
        p(f"s_cmp_ge_u32 s{sW}, 4\ns_cbranch_scc1 L_c_g\ns_waitcnt vmcnt(16)\ns_branch L_c_j\nL_c_g:\ns_waitcnt vmcnt(8)\nL_c_j:")
        ls = [self.center_ops(i, 48 + 4 * (i - 1), 49 + 4 * (i - 1), 208 + 16 * (i - 1), 50 + 4 * (i - 1)) for i in (1, 2, 3)]
        for l in self.merge(*ls):
            p(l)
        self.stats_write([(48, 49, 50), (52, 53, 54), (56, 57, 58)])
        p(f"s_cmp_ge_u32 s{sW}, 4\ns_cbranch_scc1 L_G")

    def kv_job(self):
        p = self.p
        p(f"""
v_and_b32 v4, 15, v1
v_lshrrev_b32 v5, 4, v1
s_mul_i32 s3, s{sTB}, {XSL}
v_mul_u32_u24 v3, {XS}, v4
v_lshl_add_u32 v3, v5, 4, v3
v_add_u32 v3, s3, v3
""")
        lq = Queue(p, "lgkmcnt", 15)
        for s in range(16):
            p(f"ds_read_b128 {vr(128+4*s,4)}, v3 offset:{s*64}")
            lq.issue(s)
        p(f"""
s_lshl_b32 s54, s{sTG}, 12
s_lshr_b32 s3, s{sTB}, 1
s_lshl_b32 s3, s3, 11
s_add_u32 s54, s54, s3
s_add_u32 s54, s54, {KV}
s_and_b32 s55, s{sTB}, 1
s_lshl_b32 s56, s{sTB}, 6
s_add_u32 s56, s56, {ST}
s_and_b32 s3, s{sCG}, 1
s_cmp_eq_u32 s3, 1
s_cbranch_scc1 L_vjob
v_lshl_add_u32 v7, v4, 2, s56
ds_read_b32 v52, v7
""")
        save = list(lq.q)
        lq.issue("r")
        for s in range(16):
            lq.wait(s)
            p(f"v_mfma_f32_16x16x32_bf16 v[48:51], {vr(64+4*s,4)}, {vr(128+4*s,4)}, {'0' if s == 0 else 'v[48:51]'}")
        p(f"""
v_and_b32 v7, 1, v5
v_lshlrev_b32 v7, 9, v7
v_lshl_add_u32 v7, v4, 4, v7
v_lshrrev_b32 v6, 1, v5
v_lshl_add_u32 v7, v6, 3, v7
s_lshl_b32 s55, s55, 8
s_add_u32 s54, s54, s55
s_waitcnt lgkmcnt(0)
v_mul_f32 v48, v52, v48
v_mul_f32 v49, v52, v49
v_mul_f32 v50, v52, v50
v_mul_f32 v51, v52, v51
v_cvt_pk_bf16_f32 v54, v48, v49
v_cvt_pk_bf16_f32 v55, v50, v51
buffer_store_dwordx2 v[54:55], v7, {srd(rWS)}, s54 offen sc1
v_dot2_f32_bf16 v57, v54, v54, 0
v_dot2_f32_bf16 v57, v55, v55, v57
v_mov_b32 v58, v57
v_permlane16_swap_b32 v57, v58
v_add_f32 v57, v57, v58
v_mov_b32 v58, v57
v_permlane32_swap_b32 v57, v58
v_add_f32 v57, v57, v58
s_branch L_kvpub
L_vjob:
v_lshl_add_u32 v7, v5, 4, s56
ds_read_b128 v[52:55], v7
""")
        lq.q = save + ["r"]
        for s in range(16):
            lq.wait(s)
            p(f"v_mfma_f32_16x16x32_bf16 v[48:51], {vr(128+4*s,4)}, {vr(64+4*s,4)}, {'0' if s == 0 else 'v[48:51]'}")
        p(f"""
v_lshrrev_b32 v7, 1, v5
v_lshlrev_b32 v7, 8, v7
v_lshl_add_u32 v7, v4, 4, v7
v_and_b32 v6, 1, v5
v_lshl_add_u32 v7, v6, 3, v7
s_lshl_b32 s55, s55, 9
s_add_u32 s54, s54, s55
s_add_u32 s54, s54, 1024
s_waitcnt lgkmcnt(0)
v_mul_f32 v48, v52, v48
v_mul_f32 v49, v53, v49
v_mul_f32 v50, v54, v50
v_mul_f32 v51, v55, v51
v_cvt_pk_bf16_f32 v54, v48, v49
v_cvt_pk_bf16_f32 v55, v50, v51
buffer_store_dwordx2 v[54:55], v7, {srd(rWS)}, s54 offen sc1
v_max3_f32 v57, |v48|, |v49|, |v50|
v_max_f32 v57, v57, |v51|
v_mov_b32 v58, v57
v_permlane16_swap_b32 v57, v58
v_max_f32 v57, v57, v58
v_mov_b32 v58, v57
v_permlane32_swap_b32 v57, v58
v_max_f32 v57, v57, v58
L_kvpub:
""")
        for c in ("quad_perm:[1,0,3,2]", "quad_perm:[2,3,0,1]", "row_half_mirror", "row_mirror"):
            p(f"v_max_u32_dpp v57, v57, v57 {c} row_mask:0xf bank_mask:0xf")
        p(f"""
v_mov_b32 v56, s{sN}
s_lshl_b32 s54, s{sTG}, 3
s_add_u32 s54, s54, s{sCG}
s_lshl_b32 s54, s54, 3
s_add_u32 s54, s54, {FKV}
v_mov_b32 v7, 0
s_waitcnt vmcnt(0)
s_mov_b64 exec, 1
buffer_store_dwordx2 v[56:57], v7, {srd(rWS)}, s54 offen sc1
s_mov_b64 exec, -1
s_setprio 0
""")
        self.stamp(3)

    def tr_addr32(self, dst, t0, t1, base_expr, nh_sgpr, perm):
        p = self.p
        p(f"""
v_lshrrev_b32 v{t0}, 1, v1
v_and_b32 v{t0}, 1, v{t0}
v_lshrrev_b32 v{t1}, 3, v1
v_and_b32 v{dst}, 2, v{t1}
v_or_b32 v{t0}, v{t0}, v{dst}
v_and_b32 v{t1}, 1, v{t1}
v_lshl_or_b32 v{t0}, v{t1}, 2, v{t0}
v_lshlrev_b32 v{t0}, 4, v{t0}
v_and_b32 v{t1}, 1, v1
v_lshl_or_b32 v{t0}, v{t1}, 3, v{t0}
v_bfe_u32 v{t1}, v1, 2, 2
v_lshl_or_b32 v{t0}, v{t1}, 7, v{t0}
v_lshrrev_b32 v{t1}, 5, v1
v_lshl_or_b32 v{t0}, v{t1}, {9 if perm else 10}, v{t0}
v_add_u32 v{dst}, {base_expr}, v{t0}
""")
        if nh_sgpr is not None:
            p(f"s_lshl_b32 s3, s{nh_sgpr}, 6\nv_xor_b32 v{dst}, s3, v{dst}")

    def a_wave(self):
        p = self.p
        q0, SA, SB, K0, V0, vI, vK, vV, o0 = 16, 48, 64, 80, 88, 104, 105, 106, 128
        p(f"""
s_and_b32 s56, s{sW}, 1
s_lshr_b32 s57, s{sW}, 1
v_and_b32 v5, 31, v1
s_lshl_b32 s3, s56, 5
v_add_u32 v5, s3, v5
v_mul_u32_u24 v3, {XS}, v5
v_lshrrev_b32 v6, 5, v1
v_lshl_add_u32 v3, v6, 4, v3
v_lshlrev_b32 v5, 2, v5
v_add_u32 v5, {ST}, v5
""")
        self.tr_addr32(4, 6, 7, str(WQ), 57, False)
        p("s_waitcnt vmcnt(0) lgkmcnt(0)\ns_barrier")
        self.stamp(4)
        p("s_setprio 2")
        lq = Queue(p, "lgkmcnt", 15)
        p("ds_read_b32 v8, v5")
        lq.issue("r")
        def rd(s):
            b = 16 + 8 * (s % 4)
            p(f"ds_read_b64_tr_b16 {vr(b,2)}, v4 offset:{s*2048}\nds_read_b64_tr_b16 {vr(b+2,2)}, v4 offset:{s*2048+512}\nds_read_b128 {vr(b+4,4)}, v3 offset:{s*32}")
            for _ in range(3):
                lq.issue(s)
        for s in range(3):
            rd(s)
        for s in range(32):
            if s + 3 < 32:
                rd(s + 3)
            lq.wait(s)
            b = 16 + 8 * (s % 4)
            p(f"v_mfma_f32_32x32x16_bf16 v[48:63], {vr(b,4)}, {vr(b+4,4)}, {'0' if s == 0 else 'v[48:63]'}")
        p(f"""
v_mul_f32 v8, {hx(0.25*LOG2E)}, v8
s_lshl_b32 s3, s57, 12
s_lshl_b32 s54, s56, 10
s_add_u32 s3, s3, s54
s_add_u32 s3, s3, {QX}
v_add_u32 v7, s3, v2
""")
        for i in range(6):
            p(f"v_mov_b32 v{o0+i}, 0")
        for i in range(16):
            p(f"v_mul_f32 v{48+i}, v8, v{48+i}")
        for i in range(8):
            p(f"v_cvt_pk_bf16_f32 v{64+i}, v{48+2*i}, v{49+2*i}")
        p("ds_write_b128 v7, v[64:67]\nds_write_b128 v7, v[68:71] offset:2048\ns_waitcnt lgkmcnt(0)")
        self.cnt_signal(0, 12, 13)
        self.stamp(5)
        for i in range(6, 128):
            p(f"v_mov_b32 v{o0+i}, 0")
        for i in range(8):
            p(f"v_mov_b32 v{SB+8+i}, 0")
        p(f"""
v_mov_b32 v{vI}, 0xdddddddd
v_mov_b32 v{vK}, v2
v_and_b32 v6, 15, v1
v_lshrrev_b32 v7, 5, v1
v_lshl_add_u32 v6, v7, 4, v6
v_lshlrev_b32 v6, 4, v6
v_add_u32 v{vV}, 1024, v6
v_and_b32 v6, 27, v1
v_cmp_eq_u32 vcc, 16, v6
v_mov_b32 v7, s{sONE}
v_cndmask_b32 v{V0}, 0, v7, vcc
""")
        for i in range(1, 16):
            p(f"v_mov_b32 v{V0+i}, v{V0}")
        for k in range(3):
            p(f"""
s_add_u32 s3, s{sJ}, {1+k}
s_and_b32 s3, s3, 3
s_mul_i32 s3, s3, 13824
s_add_u32 s3, s3, {OP + (2-k)*4608}
v_add_u32 v{107+k}, s3, v2
s_add_u32 s3, s3, 4096
v_lshl_add_u32 v{110+k}, v1, 2, s3
""")
        self.cnt_wait(0, 4, 12, 6, sleep=0)
        for k in range(4):
            p(f"""
s_add_u32 s3, s{sJ}, {1+k}
s_and_b32 s3, s3, 3
s_lshl_b32 s3, s3, 11
s_add_u32 s3, s3, {QX}
v_add_u32 v6, s3, v2
ds_read_b128 {vr(q0+8*k,4)}, v6
ds_read_b128 {vr(q0+8*k+4,4)}, v6 offset:1024
""")
        p("s_waitcnt lgkmcnt(0)")
        for r in range(4):
            for t in range(8):
                p(f"v_dot2_f32_bf16 v{48+t}, v{q0+4*t+r}, v{q0+4*t+r}, {'0' if r == 0 else f'v{48+t}'}")
        for t in range(0, 8, 2):
            p(f"v_permlane32_swap_b32 v{48+t}, v{49+t}")
        for t in range(0, 8, 2):
            p(f"v_add_f32 v{48+t}, v{48+t}, v{49+t}")
        p("v_max3_u32 v48, v48, v50, v52\nv_max_u32 v48, v48, v54")
        for c in ("quad_perm:[1,0,3,2]", "quad_perm:[2,3,0,1]", "row_half_mirror", "row_mirror"):
            p(f"v_max_u32_dpp v48, v48, v48 {c} row_mask:0xf bank_mask:0xf")
        p("""
v_mov_b32 v49, v48
v_permlane16_swap_b32 v48, v49
v_max_u32 v48, v48, v49
v_mov_b32 v49, v48
v_permlane32_swap_b32 v48, v49
v_max_u32 v48, v48, v49
""")
        self.stamp(6)
        l, d = self.lab("kw"), self.lab("kd")
        p(f"""
v_lshlrev_b32 v6, 5, v1
s_mov_b32 s56, {FKV}
s_lshl_b32 s57, s{sJ}, 15
s_add_u32 s57, s57, {KV}
s_mov_b32 s54, {SPIN}
{l}:
buffer_load_dwordx4 v[52:55], v6, {srd(rWS)}, s56 offen sc1
buffer_load_dwordx4 v[56:59], v6, {srd(rWS)}, s56 offen offset:16 sc1
s_waitcnt vmcnt(0)
v_xor_b32 v52, s{sN}, v52
v_xor_b32 v54, s{sN}, v54
v_xor_b32 v56, s{sN}, v56
v_xor_b32 v58, s{sN}, v58
v_or3_b32 v52, v52, v54, v56
v_or_b32 v52, v52, v58
v_cmp_ne_u32 vcc, 0, v52
s_cbranch_vccz {d}
s_sub_u32 s54, s54, 1
s_cmp_lg_u32 s54, 0
s_cbranch_scc1 {l}
{d}:
s_mov_b32 s68, 0x0000ffff
s_mov_b32 s69, 0x0000ffff
buffer_load_dwordx4 {vr(K0,4)}, v{vK}, {srd(rWS)}, s57 offen sc1
s_mov_b64 exec, s[68:69]
buffer_load_dwordx4 {vr(V0,4)}, v{vV}, {srd(rWS)}, s57 offen sc1
buffer_load_dwordx4 {vr(V0+4,4)}, v{vV}, {srd(rWS)}, s57 offen offset:512 sc1
s_mov_b64 exec, -1
s_or_b32 s3, s2, s{sW}
s_cmp_lg_u32 s3, 0
s_cbranch_scc1 L_noE
v_mov_b32 v6, s{sN}
v_mov_b32 v7, 0
s_mov_b64 exec, 1
buffer_store_dword v6, v7, {srd(rWS)}, 0 offen sc1
s_mov_b64 exec, -1
L_noE:
v_max_u32 v53, v53, v57
v_max_u32 v55, v55, v59
v_mul_f32 v53, v53, v48
v_cmp_nge_f32 vcc, {hx(4096.0)}, v53
v_mov_b32 v6, {hx(2.0**40)}
v_cmp_nge_f32 s[54:55], v6, v55
v_mov_b32 v6, {hx(2.0**-40)}
v_cmp_le_f32 s[58:59], v6, v55
s_or_b64 s[54:55], s[54:55], vcc
s_cmp_eq_u64 s[58:59], 0
s_cselect_b64 s[58:59], 1, 0
s_or_b64 s[54:55], s[54:55], s[58:59]
""")
        if self.o.get("force_slow"):
            p("s_branch L_slow")
        else:
            p("s_cbranch_scc1 L_slow")
        self.stamp(7)
        S = [SA, SB]
        def qk(dst, kb, t):
            return f"v_mfma_f32_32x32x16_bf16 {vr(dst,16)}, {vr(kb,4)}, {vr(q0+4*t,4)}, 0"
        def pv(t, vb, sb):
            return f"v_smfmac_f32_32x32x32_bf16 {vr(o0+16*t,16)}, {vr(vb,4)}, {vr(sb,8)}, v{vI}"
        def opw(t):
            k, e = t >> 1, t & 1
            w = [f"ds_write_b128 v{107+k}, {vr(o0+16*t,4)} offset:{2048*e}",
                 f"ds_write_b128 v{107+k}, {vr(o0+16*t+4,4)} offset:{2048*e+1024}"]
            if e:
                w.append(f"ds_write2st64_b32 v{110+k}, v{o0+16*(t-1)+8}, v{o0+16*t+8} offset1:1")
            return w
        def tile(pb, last=False):
            Kc, Kn = K0 + 4 * pb, K0 + 4 * (pb ^ 1)
            Vc, Vn = V0 + 8 * pb, V0 + 8 * (pb ^ 1)
            for t in range(8):
                Xb, Yb = S[t & 1], S[(t + 1) & 1]
                wr = opw(t - 2) if (last and t >= 2) else []
                for i in range(16):
                    p(f"v_exp_f32 v{Xb+i}, v{Xb+i}")
                    if i == 1:
                        p(pv((t - 1) & 7, (Vn if t == 0 else Vc) + 4, Yb + 8))
                    if t == 0 and not last:
                        if i == 2:
                            p(f"s_add_u32 s57, s57, 2048\nbuffer_load_dwordx4 {vr(Kn,4)}, v{vK}, {srd(rWS)}, s57 offen sc1")
                        if i == 6:
                            p(f"s_mov_b64 exec, s[68:69]\nbuffer_load_dwordx4 {vr(Vn,4)}, v{vV}, {srd(rWS)}, s57 offen sc1")
                            p(f"buffer_load_dwordx4 {vr(Vn+4,4)}, v{vV}, {srd(rWS)}, s57 offen offset:512 sc1\ns_mov_b64 exec, -1")
                    if i == 4:
                        if t < 7:
                            p(qk(Yb, Kc, t + 1))
                        elif not last:
                            p("s_waitcnt vmcnt(0)")
                            p(qk(Yb, Kn, 0))
                    if i == 9:
                        p(pv(t, Vc, Xb))
                    if wr and i in (3, 7, 11):
                        p(wr.pop(0))
        p("s_waitcnt vmcnt(0)")
        p(qk(SA, K0, 0))
        p(f"s_add_u32 s58, s57, {15*2048}")
        p(f"s_setprio {self.o.get('prioA', 1)}")
        p("s_nop 9")
        p(".p2align 6\nL_att:")
        tile(0)
        p("s_cmp_eq_u32 s57, s58\ns_cbranch_scc1 L_att_last")
        tile(1)
        p("s_branch L_att")
        p("L_att_last:")
        self.stamp(8)
        self.cnt_wait(2, 4, 12, 6)
        tile(1, last=True)
        p("s_nop 1")
        p(pv(7, V0 + 8 + 4, SB + 8))
        p("L_att_done:")
        p(f"""
s_mul_i32 s3, s{sJ}, 13824
s_add_u32 s3, s3, {OP}
v_add_u32 v3, s3, v2
s_add_u32 s3, s3, 4096
v_lshl_add_u32 v4, v1, 2, s3
s_lshl_b32 s56, s{sTG}, 16
s_lshl_b32 s3, s{sCG}, 2
s_add_u32 s57, s3, s{sJ}
s_lshl_b32 s3, s57, 11
s_add_u32 s56, s56, s3
s_add_u32 s56, s56, {OF}
s_waitcnt lgkmcnt(0)
s_barrier
""")
        self.stamp(9)
        lq = Queue(p, "lgkmcnt", 15)
        for k in range(3):
            b = 16 + 18 * k
            for e in range(4):
                p(f"ds_read_b128 {vr(b+4*e,4)}, v3 offset:{k*4608+e*1024}")
                lq.issue(k)
            p(f"ds_read2st64_b32 {vr(b+16,2)}, v4 offset0:{k*18} offset1:{k*18+1}")
            lq.issue(k)
        for k in range(3):
            b = 16 + 18 * k
            lq.wait(k)
            for e in range(2):
                p(f"v_add_f32 v{o0+16*(6+e)+8}, v{o0+16*(6+e)+8}, v{b+16+e}")
            if k == 2:
                for e in range(2):
                    p(f"v_rcp_f32 v{8+2*e}, v{o0+16*(6+e)+8}")
            for e in range(2):
                for i in range(0, 8, 2):
                    r = o0 + 16 * (6 + e) + i
                    p(f"v_pk_add_f32 {vr(r,2)}, {vr(r,2)}, {vr(b+8*e+i,2)}")
        for e in range(2):
            for i in range(0, 8, 2):
                r = o0 + 16 * (6 + e) + i
                p(f"v_pk_mul_f32 {vr(r,2)}, {vr(r,2)}, {vr(8+2*e,2)} op_sel_hi:[1,0]")
            for i in range(4):
                r = o0 + 16 * (6 + e) + 2 * i
                p(f"v_cvt_pk_bf16_f32 v{96+4*e+i}, v{r}, v{r+1}")
            p(f"buffer_store_dwordx4 {vr(96+4*e,4)}, v2, {srd(rWS)}, s56 offen offset:{1024*e} sc1")
        p(f"""
s_lshl_b32 s56, s{sTG}, 7
s_lshl_b32 s57, s57, 2
s_add_u32 s56, s56, s57
s_add_u32 s56, s56, {FO}
v_mov_b32 v6, s{sN}
v_mov_b32 v7, 0
s_waitcnt vmcnt(0)
s_mov_b64 exec, 1
buffer_store_dword v6, v7, {srd(rWS)}, s56 offen sc1
s_mov_b64 exec, -1
""")
        self.stamp(10)
        p("s_branch L_final")
        m0 = 113
        p(f"L_slow:\ns_waitcnt vmcnt(0)")
        for t in range(8):
            p(f"v_mov_b32 v{m0+t}, 0xff800000")
        p(f"s_mov_b32 s58, {KV}\nL_slow_max:\nbuffer_load_dwordx4 {vr(K0+4,4)}, v{vK}, {srd(rWS)}, s58 offen sc1\ns_waitcnt vmcnt(0)")
        for t in range(8):
            p(qk(SA, K0 + 4, t))
            for i in range(0, 16, 2):
                p(f"v_max3_f32 v{m0+t}, v{SA+i}, v{SA+i+1}, v{m0+t}")
        p(f"s_add_u32 s58, s58, 2048\ns_cmp_lt_u32 s58, {KV + 64*2048}\ns_cbranch_scc1 L_slow_max")
        for t in range(8):
            p(f"v_mov_b32 v6, v{m0+t}\nv_permlane32_swap_b32 v6, v{m0+t}\nv_max_f32 v{m0+t}, v6, v{m0+t}")
        p(f"s_add_u32 s58, s57, {16*2048}\nL_slow_pv:")
        p(f"""
buffer_load_dwordx4 {vr(K0,4)}, v{vK}, {srd(rWS)}, s57 offen sc1
s_mov_b64 exec, s[68:69]
buffer_load_dwordx4 {vr(V0,4)}, v{vV}, {srd(rWS)}, s57 offen sc1
buffer_load_dwordx4 {vr(V0+4,4)}, v{vV}, {srd(rWS)}, s57 offen offset:512 sc1
s_mov_b64 exec, -1
s_waitcnt vmcnt(0)
""")
        for t in range(8):
            p(qk(SA, K0, t))
            for i in range(16):
                p(f"v_sub_f32 v{SA+i}, v{SA+i}, v{m0+t}")
            for i in range(16):
                p(f"v_exp_f32 v{SA+i}, v{SA+i}")
            p(pv(t, V0, SA))
            p(pv(t, V0 + 4, SA + 8))
        p("s_add_u32 s57, s57, 2048\ns_cmp_lt_u32 s57, s58\ns_cbranch_scc1 L_slow_pv")
        self.cnt_wait(2, 4, 12, 6)
        for t in range(6):
            for w in opw(t):
                p(w)
        p("s_branch L_att_done")

    def g_wave(self):
        p = self.p
        p("L_G:\ns_waitcnt vmcnt(0)")
        for i in range(16):
            p(f"v_lshlrev_b32 v{16+2*i}, 16, v{192+i}\nv_and_b32 v{17+2*i}, 0xffff0000, v{192+i}")
        p(f"""
s_and_b32 s56, s{sJ}, 1
s_xor_b32 s57, s56, 1
v_and_b32 v5, 31, v1
v_lshrrev_b32 v6, 5, v1
s_lshl_b32 s3, s56, 5
v_add_u32 v7, s3, v5
v_mul_u32_u24 v3, {XS}, v7
v_lshl_add_u32 v3, v6, 4, v3
v_lshlrev_b32 v128, 2, v7
s_lshl_b32 s3, s57, 5
v_add_u32 v7, s3, v5
v_mul_u32_u24 v4, {XS}, v7
v_lshl_add_u32 v4, v6, 4, v4
v_lshlrev_b32 v129, 2, v7
v_add_u32 v128, {ST+256}, v128
v_add_u32 v129, {ST+256}, v129
s_lshl_b32 s63, s{sJ}, 14
s_add_u32 s63, s63, {WQ}
v_mul_u32_u24 v7, 2752, v15
v_lshl_add_u32 v7, v14, 4, v7
s_lshl_b32 s3, s59, 6
v_add_u32 v7, s3, v7
""")
        self.tr_addr32(5, 6, 8, "s63", 56, False)
        p("v_xor_b32 v6, 64, v5")
        p("s_waitcnt lgkmcnt(0)\ns_barrier")
        self.stamp(4)
        p("ds_read_b32 v10, v128\nds_read_b32 v14, v129")
        self.cnt_wait(0, 4, 12, 8)
        self.stamp(5)
        vq = Queue(p, "vmcnt", 63)
        lq = Queue(p, "lgkmcnt", 15)
        p(f"""
s_mov_b32 s54, 0
s_mul_i32 s55, s{sJ}, 22
s_cmp_eq_u32 s{sJ}, 3
s_cselect_b32 s55, 65, s55
s_lshl_b32 s67, s55, 11
s_lshl_b32 s55, s55, 14
""")
        def dma_w1(s):
            for i in range(2):
                p(f"s_add_u32 m0, s63, {(s % 8) * 2048 + i * 1024}\ns_nop 0\nbuffer_load_dwordx4 v7, {srd(rW1)}, s54 offen lds\ns_add_u32 s54, s54, {8*2752}")
                vq.issue(("w1", s))
        def dma_w2(i, base, slot):
            if i == 21:
                p(f"s_min_u32 s55, s55, {85*16384}")
            for h in range(2):
                p(f"s_add_u32 m0, s{base}, {slot * 2048 + h * 1024}\ns_nop 0\nbuffer_load_dwordx4 v9, {srd(rW2)}, s55 offen lds\ns_add_u32 s55, s55, 8192")
                vq.issue(("w2", i))
        def rd1(s):
            b = 96 + 16 * (s & 1)
            o = (s % 8) * 2048
            p(f"ds_read_b64_tr_b16 {vr(b,2)}, v5 offset:{o}\nds_read_b64_tr_b16 {vr(b+2,2)}, v5 offset:{o+512}")
            p(f"ds_read_b128 {vr(b+8,4)}, v3 offset:{s*32}\nds_read_b128 {vr(b+12,4)}, v4 offset:{s*32}")
            p(f"ds_read_b64_tr_b16 {vr(b+4,2)}, v6 offset:{o}\nds_read_b64_tr_b16 {vr(b+6,2)}, v6 offset:{o+512}")
            for _ in range(6):
                lq.issue(s)
        for s in range(8):
            dma_w1(s)
        vq.wait(("w1", 0))
        rd1(0)
        for s in range(32):
            if s + 1 < 32:
                vq.wait(("w1", s + 1))
                rd1(s + 1)
            lq.wait(s)
            if s + 8 < 32:
                dma_w1(s + 8)
            else:
                dma_w2(s + 8 - 32, 63, s % 8)
            b = 96 + 16 * (s & 1)
            c = lambda a: "0" if s == 0 else vr(a, 16)
            p(f"v_mfma_f32_32x32x16_bf16 v[48:63], {vr(b,4)}, {vr(b+8,4)}, {c(48)}")
            p(f"v_mfma_f32_32x32x16_bf16 v[64:79], {vr(b,4)}, {vr(b+12,4)}, {c(64)}")
            p(f"v_mfma_f32_32x32x16_bf16 v[80:95], {vr(b+4,4)}, {vr(b+8,4)}, {c(80)}")
        self.stamp(6)
        c2 = 2 * math.sqrt(2 / math.pi) * LOG2E
        p(f"""
s_setprio {self.o.get('prioGv', 3)}
s_mov_b32 s48, {hx(-c2*0.044715)}
s_mov_b32 s49, {hx(-c2*0.044715)}
v_mov_b32 v128, {hx(-c2)}
v_mov_b32 v129, {hx(-c2)}
s_mul_i32 s54, s{sTG}, {HTG}
s_add_u32 s54, s54, {HF}
s_add_u32 s67, s67, s54
s_lshl_b32 s3, s61, 12
s_add_u32 s50, s54, s3
s_lshl_b32 s3, s56, 10
s_add_u32 s51, s50, s3
s_lshl_b32 s58, s62, 12
s_add_u32 s58, s58, s54
s_add_u32 s58, s58, s3
s_lshl_b32 s3, s57, 10
s_add_u32 s50, s50, s3
""")
        def gelu_pair(acc, bias, rr, t, out):
            return [
                f"v_pk_fma_f32 {vr(acc,2)}, {vr(acc,2)}, {vr(rr,2)}, {vr(bias,2)} op_sel_hi:[1,0,1]",
                f"v_pk_mul_f32 {vr(t,2)}, {vr(acc,2)}, {vr(acc,2)}",
                f"v_pk_fma_f32 {vr(t,2)}, {vr(t,2)}, s[48:49], v[128:129]",
                f"v_pk_mul_f32 {vr(t,2)}, {vr(t,2)}, {vr(acc,2)}",
                f"v_exp_f32 v{t}, v{t}", f"v_exp_f32 v{t+1}, v{t+1}",
                f"v_pk_add_f32 {vr(t,2)}, {vr(t,2)}, 1.0 op_sel_hi:[1,0]",
                f"v_rcp_f32 v{t}, v{t}", f"v_rcp_f32 v{t+1}, v{t+1}",
                f"v_pk_mul_f32 {vr(acc,2)}, {vr(acc,2)}, {vr(t,2)}",
                f"v_cvt_pk_bf16_f32 v{out}, v{acc}, v{acc+1}"]
        for ti, (acc, bias, rr, so) in enumerate(((48, 16, 10, 51), (64, 16, 14, 50), (80, 32, 10, 58))):
            if ti == 2:
                p("s_cmp_eq_u32 s60, 0\ns_cbranch_scc1 L_nohalf")
            for e in range(2):
                ls = [gelu_pair(acc + 8 * e + 2 * k, bias + 8 * e + 2 * k, rr, 132 + 2 * k, 160 + 8 * ti + 4 * e + k) for k in range(4)]
                for l in self.merge(*ls):
                    p(l)
                p(f"buffer_store_dwordx4 {vr(160+8*ti+4*e,4)}, v2, {srd(rWS)}, s{so} offen offset:{2048*e} sc1")
        p(f"""
L_nohalf:
s_setprio 0
s_lshl_b32 s56, s{sTG}, 7
s_add_u32 s56, s56, {FH}
s_lshl_b32 s3, s{sCG}, 2
s_add_u32 s3, s3, s{sJ}
s_lshl_b32 s3, s3, 2
s_add_u32 s57, s56, s3
v_mov_b32 v16, s{sN}
v_mov_b32 v17, 0
v_and_b32 v18, 31, v1
v_lshlrev_b32 v18, 2, v18
s_mul_i32 s62, s{sJ}, {XSL}
""")
        self.tr_addr32(5, 6, 8, "s63", None, True)
        p(f"""
v_xor_b32 v6, 64, v5
s_sub_u32 s3, s62, s63
v_add_u32 v3, s3, v5
v_add_u32 v4, s3, v6
v_and_b32 v7, 6, v15
v_and_b32 v8, 7, v1
v_xor_b32 v7, v7, v8
v_lshlrev_b32 v7, 4, v7
v_lshl_add_u32 v7, v15, 10, v7
s_lshl_b32 s3, s{sCG}, 7
v_add_u32 v7, s3, v7
s_lshl_b32 s61, s{sJ}, 17
s_waitcnt vmcnt(0)
s_mov_b64 exec, 1
buffer_store_dword v16, v17, {srd(rWS)}, s57 offen sc1
s_mov_b64 exec, -1
""")
        vq.q = []
        self.stamp(7)
        p(f"s_add_u32 s58, s54, {85*2048}")
        self.flag_wait(18, 56, 19, sleep=2)
        self.stamp(8)
        HD = 8
        def ld_h(i):
            if i == 21:
                p("s_min_u32 s67, s67, s58")
            b = 128 + 8 * (i % HD)
            p(f"buffer_load_dwordx4 {vr(b,4)}, v2, {srd(rWS)}, s67 offen sc1\nbuffer_load_dwordx4 {vr(b+4,4)}, v2, {srd(rWS)}, s67 offen offset:1024 sc1\ns_add_u32 s67, s67, 2048")
            vq.issue(("h", i)); vq.issue(("h", i))
        def dma_wo(i):
            p(f"s_add_u32 m0, s63, {i * 1024}\ns_nop 0\nbuffer_load_dwordx4 v7, {srd(rWO)}, s61 offen lds\ns_add_u32 s61, s61, 8192")
            vq.issue(("wo", i))
        def rd2(i):
            b = 112 + 8 * (i & 1)
            a0, a1 = (5, 6) if i < 8 else (3, 4)
            o = (i % 8) * 2048
            p(f"ds_read_b64_tr_b16 {vr(b,2)}, v{a0} offset:{o}\nds_read_b64_tr_b16 {vr(b+2,2)}, v{a0} offset:{o+1024}")
            p(f"ds_read_b64_tr_b16 {vr(b+4,2)}, v{a1} offset:{o}\nds_read_b64_tr_b16 {vr(b+6,2)}, v{a1} offset:{o+1024}")
            for _ in range(4):
                lq.issue(i)
        for i in range(8):
            ld_h(i)
            dma_w2(8 + i, 62, i)
        rd2(0)
        for i in range(22):
            if i + 1 < 22:
                vq.wait(("w2", i + 1))
                rd2(i + 1)
            vq.wait(("h", i))
            lq.wait(i)
            if i == 21:
                p(f"s_cmp_ge_u32 s{sJ}, 2\ns_cbranch_scc1 L_skip21")
            b = 112 + 8 * (i & 1)
            h = 128 + 8 * (i % HD)
            for mh in range(2):
                for nb in range(2):
                    a = 48 + 16 * (2 * mh + nb)
                    p(f"v_mfma_f32_32x32x16_bf16 {vr(a,16)}, {vr(b+4*nb,4)}, {vr(h+4*mh,4)}, {'0' if i == 0 else vr(a,16)}")
            if i + HD < 22:
                ld_h(i + HD)
            if 8 <= i and i + 8 < 22:
                dma_w2(i + 8, 62, i % 8)
            if 7 <= i < 15:
                dma_wo(2 * (i - 7)); dma_wo(2 * (i - 7) + 1)
        p("L_skip21:")
        self.stamp(9)
        p(f"""
s_setprio {self.o.get('prioGv', 3)}
v_lshrrev_b32 v8, 4, v1
v_lshlrev_b32 v16, 3, v8
s_lshl_b32 s3, s{sCG}, 7
""")
        for nt in range(4):
            p(f"buffer_load_dwordx2 {vr(192+2*nt,2)}, v16, {srd(rB2)}, s3 offen offset:{32*nt}")
        p(f"""
v_and_b32 v3, 31, v1
v_and_b32 v4, 15, v1
v_lshrrev_b32 v5, 5, v1
v_xor_b32 v5, v5, v4
v_lshlrev_b32 v5, 4, v5
v_lshl_add_u32 v5, v3, 8, v5
v_add_u32 v5, s62, v5
""")
        for nb in range(2):
            for a in range(4):
                p(f"v_xor_b32 v{6 + (a & 1)}, {(8*nb+2*a) << 4}, v5")
                for mh in range(2):
                    p(f"ds_write_b128 v{6 + (a & 1)}, {vr(48+16*(2*mh+nb)+4*a,4)} offset:{8192*mh}")
        p(f"""
s_lshl_b32 s3, s{sJ}, 12
v_xor_b32 v5, v8, v4
v_lshlrev_b32 v5, 4, v5
v_lshl_add_u32 v5, v4, 8, v5
v_add_u32 v5, s3, v5
s_waitcnt vmcnt(0) lgkmcnt(0)
""")
        self.cnt_signal(1, 12, 13)
        for i in range(8):
            p(f"v_lshlrev_b32 v{16+2*i}, 16, v{192+i}\nv_and_b32 v{17+2*i}, 0xffff0000, v{192+i}")
        p(f"s_setprio 0")
        self.cnt_wait(1, 4, 12, 8)
        p(f"s_setprio {self.o.get('prioGv', 3)}")
        lq.q = []
        for nt in range(4):
            if nt:
                p(f"v_xor_b32 v6, {nt << 6}, v5")
            for kq in range(4):
                p(f"ds_read_b128 {vr(48+16*nt+4*kq,4)}, v{6 if nt else 5} offset:{kq*XSL}")
                lq.issue(nt)
        p(f"s_lshl_b32 s3, s{sJ}, 11\ns_add_u32 s3, s3, {GA}\nv_add_u32 v7, s3, v2\ns_mov_b32 s48, {hx(-LOG2E)}\ns_mov_b32 s49, {hx(-LOG2E)}")
        for nt in range(4):
            lq.wait(nt)
            z = 16 + 4 * nt
            def silu_pair(r, t):
                o = [f"v_pk_add_f32 {vr(r,2)}, {vr(r,2)}, {vr(48+16*nt+4*kq+(r-z),2)}" for kq in range(4)]
                return o + [f"v_pk_mul_f32 {vr(t,2)}, {vr(r,2)}, s[48:49]",
                            f"v_exp_f32 v{t}, v{t}", f"v_exp_f32 v{t+1}, v{t+1}",
                            f"v_pk_add_f32 {vr(t,2)}, {vr(t,2)}, 1.0 op_sel_hi:[1,0]",
                            f"v_rcp_f32 v{t}, v{t}", f"v_rcp_f32 v{t+1}, v{t+1}",
                            f"v_pk_mul_f32 {vr(r,2)}, {vr(r,2)}, {vr(t,2)}"]
            for l in self.merge(silu_pair(z, 32), silu_pair(z + 2, 34)):
                p(l)
            p(f"ds_write_b128 v7, {vr(z,4)} offset:{(nt >> 1) * 8192 + (nt & 1) * 1024}")
            lq.issue("w")
        p("s_waitcnt lgkmcnt(0)")
        self.cnt_signal(2, 12, 13)
        p("s_setprio 0")
        self.stamp(10)
        p("s_barrier")

    def final(self):
        p = self.p
        p("L_final:")
        p(f"""
s_lshr_b32 s56, s{sW}, 2
v_lshrrev_b32 v3, 4, v1
v_and_b32 v4, 15, v1
s_lshl_b32 s3, s{sJ}, 4
v_add_u32 v5, s3, v4
v_lshlrev_b32 v5, 10, v5
v_lshl_add_u32 v5, v3, 3, v5
s_lshl_b32 s57, s{sTG}, 16
s_lshl_b32 s3, s{sCG}, 7
s_add_u32 s57, s57, s3
s_lshl_b32 s3, s56, 6
s_add_u32 s57, s57, s3
buffer_load_dwordx2 v[16:17], v5, {srd(rX)}, s57 offen
buffer_load_dwordx2 v[18:19], v5, {srd(rX)}, s57 offen offset:32
s_lshl_b32 s3, s{sW}, 11
s_add_u32 s3, s3, {GA}
v_add_u32 v6, s3, v2
ds_read_b128 v[20:23], v6
ds_read_b128 v[24:27], v6 offset:1024
v_bfe_u32 v8, v1, 2, 3
v_lshlrev_b32 v9, 7, v8
v_lshrrev_b32 v8, 1, v8
s_lshl_b32 s3, s56, 1
v_xor_b32 v8, s3, v8
v_lshl_or_b32 v9, v8, 5, v9
v_and_b32 v8, 3, v1
v_lshl_or_b32 v9, v8, 3, v9
v_lshrrev_b32 v8, 5, v1
v_lshl_or_b32 v9, v8, 11, v9
s_lshl_b32 s3, s56, 15
s_add_u32 s3, s3, {WQ}
v_add_u32 v8, s3, v9
v_xor_b32 v9, 32, v8
v_xor_b32 v10, 64, v8
v_xor_b32 v11, 96, v8
""")
        for s in range(8):
            for nt in range(4):
                for t in range(2):
                    p(f"ds_read_b64_tr_b16 {vr(128+16*s+4*nt+2*t,2)}, v{8+nt} offset:{s*4096+t*1024}")
        p(f"""
s_lshl_b32 s3, s56, 4
v_add_u32 v14, s3, v4
v_lshlrev_b32 v14, 2, v14
s_lshl_b32 s58, s{sTG}, 7
s_add_u32 s58, s58, {FO}
v_and_b32 v7, 1, v3
v_lshlrev_b32 v7, 9, v7
v_lshrrev_b32 v15, 1, v3
v_lshl_add_u32 v7, v15, 11, v7
v_lshl_add_u32 v7, v4, 4, v7
s_lshl_b32 s59, s{sTG}, 16
s_lshl_b32 s3, s56, 15
s_add_u32 s59, s59, s3
s_lshr_b32 s3, s{sJ}, 1
s_lshl_b32 s3, s3, 10
s_add_u32 s59, s59, s3
s_and_b32 s3, s{sJ}, 1
s_lshl_b32 s3, s3, 8
s_add_u32 s59, s59, s3
s_add_u32 s59, s59, {OF}
""")
        self.flag_wait(14, 58, 15, sleep=0)
        self.stamp(11)
        vq = Queue(p, "vmcnt", 63)
        for s in range(8):
            p(f"buffer_load_dwordx4 {vr(64+4*s,4)}, v7, {srd(rWS)}, s59 offen sc1\ns_add_u32 s59, s59, 4096")
            vq.issue(s)
        for i in range(4):
            p(f"v_lshlrev_b32 v{28+2*i}, 16, v{16+i}\nv_and_b32 v{29+2*i}, 0xffff0000, v{16+i}")
        p("s_waitcnt lgkmcnt(0)")
        for s in range(8):
            vq.wait(s)
            for nt in (2, 3, 0, 1):
                p(f"v_mfma_f32_16x16x32_bf16 {vr(48+4*nt,4)}, {vr(128+16*s+4*nt,4)}, {vr(64+4*s,4)}, {'0' if s == 0 else vr(48+4*nt,4)}")
        p(f"""
s_xor_b32 s3, s{sW}, 4
s_lshl_b32 s3, s3, 11
s_add_u32 s3, s3, {GA}
v_add_u32 v7, s3, v2
ds_write_b128 v6, v[56:59]
ds_write_b128 v6, v[60:63] offset:1024
s_waitcnt lgkmcnt(0)
s_barrier
ds_read_b128 v[56:59], v7
ds_read_b128 v[60:63], v7 offset:1024
""")
        for e in range(2):
            p(f"s_waitcnt lgkmcnt({1-e})")
            for i in range(0, 4, 2):
                r = 48 + 4 * e + i
                p(f"v_pk_add_f32 {vr(r,2)}, {vr(r,2)}, {vr(r+8,2)}")
            for i in range(0, 4, 2):
                r = 48 + 4 * e + i
                p(f"v_pk_fma_f32 {vr(r,2)}, {vr(r,2)}, {vr(20+4*e+i,2)}, {vr(28+4*e+i,2)}")
            for i in range(2):
                p(f"v_cvt_pk_bf16_f32 v{16+2*e+i}, v{48+4*e+2*i}, v{49+4*e+2*i}")
            p(f"buffer_store_dwordx2 {vr(16+2*e,2)}, v5, {srd(rOUT)}, s57 offen offset:{32*e}")
        if self.stamps:
            p("s_waitcnt vmcnt(0)")
            self.stamp(12)
            p(f"s_lshl_b32 s3, s2, 3\ns_add_u32 s3, s3, s{sW}\ns_lshl_b32 s3, s3, 6\ns_add_u32 s3, s3, {STAMP}\nv_mov_b32 v7, 0")
            for i in range(0, 16, 4):
                for k in range(4):
                    p(f"v_mov_b32 v{16+k}, s{72+i+k}")
                p(f"buffer_store_dwordx4 v[16:19], v7, {srd(rWS)}, s3 offen offset:{4*i}")
        p("L_exit:\ns_endpgm\nL_code_end:")

    def build(self, verbose=False):
        if self.stamps:
            for i in range(16):
                pass
        self.entry()
        self.prologue()
        self.a_wave()
        self.g_wave()
        self.final()
        ins = self.p.fix_hazards(verbose)
        head = open(f"cdna_kernels/{NAME}.s.ref").read().split("; Override launch")[0]
        return (head + f"; @launch grid=(256,1,1) block=(512,1,1) lds={LDS_BYTES}\n"
                + f""".amdgcn_target "amdgcn-amd-amdhsa--gfx950"
.text
.globl {NAME}_kernel
.p2align 8
.type {NAME}_kernel,@function
{NAME}_kernel:
""" + self.p.text() + f""".section .rodata,"a"
.p2align 6
.amdhsa_kernel {NAME}_kernel
  .amdhsa_next_free_vgpr 256
  .amdhsa_next_free_sgpr 102
  .amdhsa_accum_offset 256
  .amdhsa_group_segment_fixed_size 0
  .amdhsa_kernarg_size 104
  .amdhsa_user_sgpr_count 2
  .amdhsa_user_sgpr_kernarg_segment_ptr 1
  .amdhsa_system_sgpr_workgroup_id_x 1
  .amdhsa_float_denorm_mode_32 3
.end_amdhsa_kernel
""")


if __name__ == "__main__":
    out = sys.argv[1]
    opts = {}
    stamps = False
    for a in sys.argv[2:]:
        if a == "stamps":
            stamps = True
        elif a == "-v":
            opts["v"] = 1
        else:
            k, v = a.split("=")
            opts[k] = int(v)
    open(out, "w").write(Gen(stamps, opts).build(bool(opts.get("v"))))
```

```python
import sys, struct, math
from asmlib import Prog, Queue

NAME = "recurrent_scan__grouped_kv_mqa__mixer_channel_mlp__prompt"

def f2u(x):
    return struct.unpack("<I", struct.pack("<f", x))[0]
def hx(x):
    return f"0x{f2u(x):08x}"

X = 0; XS = 1040; XSL = 16640
WQ = 66560
WKV = 132096; GA = WKV
QX = 148480
ST = 156672
CNT = 157184
LDS_BYTES = 157696
OP = X; GP = X
FKV = 0x1000; FH = 0x2000; FO = 0x3000
KV = 0x10000; OF = 0x40000; HF = 0x240000; HTG = 86 * 2048
STAMP = 0x800000
WS_RANGE = 0x1000000
rX, rWS, rWQ, rWKV, rW1, rW2, rWO, rB1, rB2, rOUT = 4, 8, 12, 16, 20, 24, 28, 32, 36, 40
sW, sTG, sCG, sN, sTB, sJ = 44, 45, 46, 47, 52, 53
sONE, sLO, sHI = 64, 65, 66
srd = lambda r: f"s[{r}:{r+3}]"
vr = lambda a, n: f"v[{a}:{a+n-1}]"
LOG2E = 1.4426950408889634
SPIN = 1 << 20


class Gen:
    def __init__(self, stamps=False, opts=None):
        self.p = Prog()
        self.stamps = stamps
        self.o = opts or {}
        self.uid = 0

    def lab(self, s):
        self.uid += 1
        return f"L_{s}_{self.uid}"

    def stamp(self, i):
        if self.stamps:
            self.p(f"s_waitcnt lgkmcnt(0)\ns_memrealtime s[70:71]\ns_waitcnt lgkmcnt(0)\ns_mov_b32 s{72+i}, s70")
            k = {1: 17, 2: 18, 4: 19, 7: 20, 8: 21, 9: 22, 12: 23}.get(i)
            if k:
                self.p(f"s_memtime s[70:71]\ns_waitcnt lgkmcnt(0)\ns_mov_b32 s{72+k}, s70")

    def cnt_signal(self, k, vaddr, vone):
        self.p(f"s_mov_b64 exec, 1\nds_add_u32 v{vaddr}, v{vone} offset:{4*k}\ns_mov_b64 exec, -1")

    def cnt_wait(self, k, target, vaddr, vt, sleep=1):
        p = self.p
        l, d = self.lab("cw"), self.lab("cd")
        p(f"s_mov_b32 s54, {SPIN}\n{l}:\nds_read_b32 v{vt}, v{vaddr} offset:{4*k}\ns_waitcnt lgkmcnt(0)")
        p(f"v_readfirstlane_b32 s55, v{vt}\ns_cmp_ge_u32 s55, {target}\ns_cbranch_scc1 {d}")
        if sleep:
            p(f"s_sleep {sleep}")
        p(f"s_sub_u32 s54, s54, 1\ns_cmp_lg_u32 s54, 0\ns_cbranch_scc1 {l}\n{d}:")

    def flag_wait(self, vaddr, soff, vt, sleep=1):
        p = self.p
        l, d = self.lab("fw"), self.lab("fd")
        p(f"s_mov_b32 s54, {SPIN}\n{l}:\nbuffer_load_dword v{vt}, v{vaddr}, {srd(rWS)}, s{soff} offen sc1\ns_waitcnt vmcnt(0)")
        p(f"v_cmp_ne_u32 vcc, s{sN}, v{vt}\ns_cbranch_vccz {d}")
        if sleep:
            p(f"s_sleep {sleep}")
        p(f"s_sub_u32 s54, s54, 1\ns_cmp_lg_u32 s54, 0\ns_cbranch_scc1 {l}\n{d}:")

    @staticmethod
    def merge(*lists):
        out = []
        n = max(len(l) for l in lists)
        for i in range(n):
            for l in lists:
                if i < len(l):
                    out.append(l[i])
        return out

    def entry(self):
        p = self.p
        if self.stamps:
            p("s_memrealtime s[70:71]\ns_memtime s[88:89]")
        p(f"""
s_load_dwordx2 s[{rX}:{rX+1}], s[0:1], 0
s_load_dwordx4 s[48:51], s[0:1], 16
s_load_dwordx2 s[{rWS}:{rWS+1}], s[0:1], 96
s_load_dwordx2 s[{rWQ}:{rWQ+1}], s[0:1], 8
s_cmp_ge_u32 s2, 256
s_cbranch_scc1 L_exit
s_getpc_b64 s[54:55]
L_pc:
v_lshlrev_b32 v3, 6, v0
v_min_u32 v3, L_code_end-L_pc-4, v3
v_mov_b32 v5, s55
v_add_co_u32 v4, vcc, s54, v3
v_lshrrev_b32 v7, 6, v0
v_and_b32 v1, 63, v0
v_addc_co_u32 v5, vcc, 0, v5, vcc
v_readfirstlane_b32 s{sW}, v7
{"s_nop 0" if self.o.get("nopf") else "global_load_dword v6, v[4:5], off"}
s_load_dwordx2 s[{rW1}:{rW1+1}], s[0:1], 48
s_load_dwordx2 s[{rB1}:{rB1+1}], s[0:1], 56
s_load_dwordx2 s[{rW2}:{rW2+1}], s[0:1], 64
s_load_dwordx2 s[{rB2}:{rB2+1}], s[0:1], 72
s_load_dwordx2 s[{rOUT}:{rOUT+1}], s[0:1], 80
s_load_dwordx2 s[{rWO}:{rWO+1}], s[0:1], 32
s_and_b32 s3, s2, 7
s_lshr_b32 s54, s2, 3
s_and_b32 s{sCG}, s54, 7
s_lshr_b32 s54, s54, 3
s_lshl_b32 s3, s3, 2
s_add_u32 s{sTG}, s3, s54
s_lshr_b32 s{sTB}, s{sCG}, 1
s_and_b32 s{sJ}, s{sW}, 3
v_lshlrev_b32 v2, 4, v1
v_and_b32 v8, 32, v1
s_lshl_b32 s54, s{sW}, 11
v_lshl_add_u32 v8, v8, 4, v2
v_add_u32 v8, s54, v8
s_mov_b32 s{rX+2}, 2097152
s_mov_b32 s{rX+3}, 0x20000
s_mov_b32 s{rWKV+2}, 16384
s_mov_b32 s{rWKV+3}, 0x20000
s_lshl_b32 s56, s{sTG}, 16
s_lshl_b32 s57, s{sTB}, 14
s_add_u32 m0, s54, {WKV}
s_add_u32 s58, s56, s57
s_and_b32 s3, s{sCG}, 1
s_cmp_eq_u32 s3, 0
s_waitcnt lgkmcnt(0)
s_cselect_b32 s{rWKV}, s48, s50
s_cselect_b32 s{rWKV+1}, s49, s51
""")
        if self.stamps:
            p("s_mov_b32 s72, s70")
        p(f"""
buffer_load_dwordx4 v[16:19], v8, {srd(rX)}, s58 offen
buffer_load_dwordx4 v[20:23], v8, {srd(rX)}, s58 offen offset:512
buffer_load_dwordx4 v2, {srd(rWKV)}, s54 offen lds
buffer_load_dwordx4 v2, {srd(rWKV)}, s54 offen offset:1024 lds
s_load_dword s{sN}, s[{rWS}:{rWS+1}], 0
""")
        for i in (1, 2, 3):
            p(f"""
s_add_u32 s57, s57, 16384
s_and_b32 s57, s57, 0xffff
s_add_u32 s58, s56, s57
buffer_load_dwordx4 {vr(16+8*i,4)}, v8, {srd(rX)}, s58 offen
buffer_load_dwordx4 {vr(20+8*i,4)}, v8, {srd(rX)}, s58 offen offset:512
""")
        for r, n in ((rWS, WS_RANGE), (rWQ, 524288), (rW1, 512 * 2752), (rW2, 1376 * 1024), (rWO, 524288),
                     (rB1, 2752), (rB2, 1024), (rOUT, 2097152)):
            p(f"s_mov_b32 s{r+2}, {n}\ns_mov_b32 s{r+3}, 0x20000")
        p(f"s_mov_b32 s{sONE}, 0x3f803f80\ns_mov_b32 s{sLO}, 0x00003f80\ns_mov_b32 s{sHI}, 0x3f800000")
        p(f"""
v_lshrrev_b32 v3, 2, v1
v_and_b32 v3, 4, v3
v_and_b32 v4, 7, v1
v_xor_b32 v14, v3, v4
v_lshrrev_b32 v15, 3, v1
v_lshlrev_b32 v9, 10, v15
v_lshl_add_u32 v9, v14, 4, v9
s_lshl_b32 s3, s{sCG}, 7
v_add_u32 v9, s3, v9
s_cmp_ge_u32 s{sW}, 4
s_cbranch_scc1 L_pre_g
s_lshl_b32 s54, s{sW}, 17
s_lshl_b32 s55, s{sW}, 14
s_add_u32 s55, s55, {WQ}
""")
        for i in range(16):
            p(f"s_mov_b32 m0, s55\ns_add_u32 s55, s55, 1024\nbuffer_load_dwordx4 v9, {srd(rWQ)}, s54 offen lds\ns_add_u32 s54, s54, 8192")
        p(f"""
s_waitcnt vmcnt(22)
s_branch L_pre_j
L_pre_g:
s_min_u32 s3, s{sCG}, 3
s_mul_i32 s59, s{sCG}, 5
s_add_u32 s59, s59, s3
s_lshr_b32 s3, s{sJ}, 1
s_mul_i32 s3, s3, 3
s_add_u32 s59, s59, s3
s_and_b32 s3, s{sJ}, 1
s_cmp_lt_u32 s{sCG}, 3
s_cselect_b32 s60, 1, 0
s_cmp_lt_u32 s{sJ}, 2
s_cselect_b32 s60, 1, s60
s_and_b32 s61, s60, s3
s_add_u32 s59, s59, s61
s_add_u32 s61, s59, s3
s_xor_b32 s3, s3, 1
s_add_u32 s62, s59, s3
v_lshrrev_b32 v3, 2, v1
v_and_b32 v3, 8, v3
s_lshl_b32 s54, s61, 6
s_lshl_b32 s55, s62, 6
""")
        for a in range(4):
            p(f"buffer_load_dwordx2 {vr(192+2*a,2)}, v3, {srd(rB1)}, s54 offen offset:{16*a}")
        for a in range(4):
            p(f"buffer_load_dwordx2 {vr(200+2*a,2)}, v3, {srd(rB1)}, s55 offen offset:{16*a}")
        p(f"""
s_waitcnt vmcnt(14)
L_pre_j:
v_lshrrev_b32 v3, 5, v1
s_lshl_b32 s3, s{sW}, 1
v_add_u32 v3, s3, v3
v_mul_u32_u24 v10, {XS}, v3
v_and_b32 v4, 31, v1
v_lshl_add_u32 v10, v4, 4, v10
v_lshlrev_b32 v11, 2, v3
v_add_u32 v11, {ST}, v11
v_mov_b32 v12, {CNT}
v_mov_b32 v13, 1
v_mov_b32 v4, 0
v_mov_b32 v5, 0
s_mov_b64 exec, 1
ds_write_b64 v12, v[4:5]
ds_write_b64 v12, v[4:5] offset:8
s_mov_b64 exec, -1
s_barrier
""")
        self.stamp(1)

    def center_ops(self, i, tA, tB, tmp, tadr):
        a = 16 + 8 * i
        o = []
        for k in range(8):
            o.append(f"v_dot2_f32_bf16 v{tA}, v{a+k}, s{sONE}, {'0' if k == 0 else f'v{tA}'}")
            o.append(f"v_dot2_f32_bf16 v{tB}, v{a+k}, v{a+k}, {'0' if k == 0 else f'v{tB}'}")
        o.append(f"s_add_u32 s{48+i}, s{sTB}, {i}")
        o.append(f"s_and_b32 s{48+i}, s{48+i}, 3")
        o.append(f"s_mul_i32 s{96+i}, s{48+i}, {XSL}")
        o.append(f"v_permlane16_swap_b32 v{tA}, v{tB}")
        o.append(f"v_add_f32 v{tA}, v{tA}, v{tB}")
        o.append(f"v_add_u32 v{tadr}, s{96+i}, v10")
        o.append(f"s_lshl_b32 s{48+i}, s{48+i}, 6")
        for c in ("quad_perm:[1,0,3,2]", "quad_perm:[2,3,0,1]", "row_half_mirror", "row_mirror"):
            o.append(f"v_add_f32_dpp v{tA}, v{tA}, v{tA} {c} row_mask:0xf bank_mask:0xf")
        o.append(f"v_mov_b32 v{tB}, v{tA}")
        o.append(f"v_add_u32 v{tadr+1}, s{48+i}, v11")
        o.append(f"v_permlane16_swap_b32 v{tA}, v{tB}")
        o.append(f"v_mul_f32 v{tA}, {hx(-1.0/512)}, v{tA}")
        o.append(f"v_mul_f32 v{tB}, {hx(1.0/512)}, v{tB}")
        for k in range(8):
            o.append(f"v_dot2_f32_bf16 v{tmp+2*k}, v{a+k}, s{sLO}, v{tA}")
            o.append(f"v_dot2_f32_bf16 v{tmp+2*k+1}, v{a+k}, s{sHI}, v{tA}")
        o.append(f"v_fma_f32 v{tB}, -v{tA}, v{tA}, v{tB}")
        o.append(f"v_max_f32 v{tB}, 0, v{tB}")
        o.append(f"v_add_f32 v{tA}, {hx(1e-5)}, v{tB}")
        for k in range(4):
            o.append(f"v_cvt_pk_bf16_f32 v{a+k}, v{tmp+2*k}, v{tmp+2*k+1}")
        o.append(f"v_rsq_f32 v{tA}, v{tA}")
        o.append(f"ds_write_b128 v{tadr}, {vr(a,4)}")
        for k in range(4, 8):
            o.append(f"v_cvt_pk_bf16_f32 v{a+k}, v{tmp+2*k}, v{tmp+2*k+1}")
        o.append(f"v_mul_f32 v{tB}, v{tA}, v{tB}")
        o.append(f"ds_write_b128 v{tadr}, {vr(a+4,4)} offset:512")
        o.append(f"v_mul_f32 v{tB}, v{tA}, v{tB}")
        o.append(f"v_add_f32 v{tB}, {hx(1e-5)}, v{tB}")
        o.append(f"v_rsq_f32 v{tB}, v{tB}")
        o.append(f"v_mul_f32 v{tB}, v{tA}, v{tB}")
        return o

    def stats_write(self, items):
        p = self.p
        p("s_mov_b32 exec_lo, 1\ns_mov_b32 exec_hi, 1")
        for tA, tB, tadr in items:
            p(f"ds_write2st64_b32 v{tadr+1}, v{tA}, v{tB} offset1:1")
        p("s_mov_b64 exec, -1")

    def prologue(self):
        p = self.p
        p(f"""
s_cmp_lg_u32 s{sW}, 7
s_cbranch_scc1 L_nokvw
s_setprio 3
v_lshrrev_b32 v3, 4, v1
v_lshlrev_b32 v3, 8, v3
v_and_b32 v4, 15, v1
v_lshl_add_u32 v3, v4, 3, v3
v_add_u32 v3, {WKV}, v3
""")
        for s in range(16):
            for t in range(2):
                p(f"ds_read_b64_tr_b16 {vr(64+4*s+2*t,2)}, v3 offset:{s*1024+t*128}")
        p("L_nokvw:")
        for l in self.center_ops(0, 48, 49, 208, 50):
            p(l)
        self.stats_write([(48, 49, 50)])
        p("s_waitcnt lgkmcnt(0)\ns_barrier")
        self.stamp(2)
        p(f"s_add_u32 s{sN}, s{sN}, 0x9e3779b9")
        p(f"s_cmp_lg_u32 s{sW}, 7\ns_cbranch_scc1 L_nokv")
        self.kv_job()
        p("L_nokv:")
        p(f"s_cmp_ge_u32 s{sW}, 4\ns_cbranch_scc1 L_c_g\ns_waitcnt vmcnt(16)\ns_branch L_c_j\nL_c_g:\ns_waitcnt vmcnt(8)\nL_c_j:")
        ls = [self.center_ops(i, 48 + 4 * (i - 1), 49 + 4 * (i - 1), 208 + 16 * (i - 1), 50 + 4 * (i - 1)) for i in (1, 2, 3)]
        for l in self.merge(*ls):
            p(l)
        self.stats_write([(48, 49, 50), (52, 53, 54), (56, 57, 58)])
        p(f"s_cmp_ge_u32 s{sW}, 4\ns_cbranch_scc1 L_G")

    def kv_job(self):
        p = self.p
        p(f"""
v_and_b32 v4, 15, v1
v_lshrrev_b32 v5, 4, v1
s_mul_i32 s3, s{sTB}, {XSL}
v_mul_u32_u24 v3, {XS}, v4
v_lshl_add_u32 v3, v5, 4, v3
v_add_u32 v3, s3, v3
""")
        lq = Queue(p, "lgkmcnt", 15)
        for s in range(16):
            p(f"ds_read_b128 {vr(128+4*s,4)}, v3 offset:{s*64}")
            lq.issue(s)
        p(f"""
s_lshl_b32 s54, s{sTG}, 12
s_lshr_b32 s3, s{sTB}, 1
s_lshl_b32 s3, s3, 11
s_add_u32 s54, s54, s3
s_add_u32 s54, s54, {KV}
s_and_b32 s55, s{sTB}, 1
s_lshl_b32 s56, s{sTB}, 6
s_add_u32 s56, s56, {ST}
s_and_b32 s3, s{sCG}, 1
s_cmp_eq_u32 s3, 1
s_cbranch_scc1 L_vjob
v_lshl_add_u32 v7, v4, 2, s56
ds_read_b32 v52, v7
""")
        save = list(lq.q)
        lq.issue("r")
        for s in range(16):
            lq.wait(s)
            p(f"v_mfma_f32_16x16x32_bf16 v[48:51], {vr(64+4*s,4)}, {vr(128+4*s,4)}, {'0' if s == 0 else 'v[48:51]'}")
        p(f"""
v_and_b32 v7, 1, v5
v_lshlrev_b32 v7, 9, v7
v_lshl_add_u32 v7, v4, 4, v7
v_lshrrev_b32 v6, 1, v5
v_lshl_add_u32 v7, v6, 3, v7
s_lshl_b32 s55, s55, 8
s_add_u32 s54, s54, s55
s_waitcnt lgkmcnt(0)
v_mul_f32 v48, v52, v48
v_mul_f32 v49, v52, v49
v_mul_f32 v50, v52, v50
v_mul_f32 v51, v52, v51
v_cvt_pk_bf16_f32 v54, v48, v49
v_cvt_pk_bf16_f32 v55, v50, v51
buffer_store_dwordx2 v[54:55], v7, {srd(rWS)}, s54 offen sc1
v_dot2_f32_bf16 v57, v54, v54, 0
v_dot2_f32_bf16 v57, v55, v55, v57
v_mov_b32 v58, v57
v_permlane16_swap_b32 v57, v58
v_add_f32 v57, v57, v58
v_mov_b32 v58, v57
v_permlane32_swap_b32 v57, v58
v_add_f32 v57, v57, v58
s_branch L_kvpub
L_vjob:
v_lshl_add_u32 v7, v5, 4, s56
ds_read_b128 v[52:55], v7
""")
        lq.q = save + ["r"]
        for s in range(16):
            lq.wait(s)
            p(f"v_mfma_f32_16x16x32_bf16 v[48:51], {vr(128+4*s,4)}, {vr(64+4*s,4)}, {'0' if s == 0 else 'v[48:51]'}")
        p(f"""
v_lshrrev_b32 v7, 1, v5
v_lshlrev_b32 v7, 8, v7
v_lshl_add_u32 v7, v4, 4, v7
v_and_b32 v6, 1, v5
v_lshl_add_u32 v7, v6, 3, v7
s_lshl_b32 s55, s55, 9
s_add_u32 s54, s54, s55
s_add_u32 s54, s54, 1024
s_waitcnt lgkmcnt(0)
v_mul_f32 v48, v52, v48
v_mul_f32 v49, v53, v49
v_mul_f32 v50, v54, v50
v_mul_f32 v51, v55, v51
v_cvt_pk_bf16_f32 v54, v48, v49
v_cvt_pk_bf16_f32 v55, v50, v51
buffer_store_dwordx2 v[54:55], v7, {srd(rWS)}, s54 offen sc1
v_max3_f32 v57, |v48|, |v49|, |v50|
v_max_f32 v57, v57, |v51|
v_mov_b32 v58, v57
v_permlane16_swap_b32 v57, v58
v_max_f32 v57, v57, v58
v_mov_b32 v58, v57
v_permlane32_swap_b32 v57, v58
v_max_f32 v57, v57, v58
L_kvpub:
""")
        for c in ("quad_perm:[1,0,3,2]", "quad_perm:[2,3,0,1]", "row_half_mirror", "row_mirror"):
            p(f"v_max_u32_dpp v57, v57, v57 {c} row_mask:0xf bank_mask:0xf")
        p(f"""
v_mov_b32 v56, s{sN}
s_lshl_b32 s54, s{sTG}, 3
s_add_u32 s54, s54, s{sCG}
s_lshl_b32 s54, s54, 3
s_add_u32 s54, s54, {FKV}
v_mov_b32 v7, 0
s_waitcnt vmcnt(0)
s_mov_b64 exec, 1
buffer_store_dwordx2 v[56:57], v7, {srd(rWS)}, s54 offen sc1
s_mov_b64 exec, -1
s_setprio 0
""")
        self.stamp(3)

    def tr_addr32(self, dst, t0, t1, base_expr, nh_sgpr, perm):
        p = self.p
        p(f"""
v_lshrrev_b32 v{t0}, 1, v1
v_and_b32 v{t0}, 1, v{t0}
v_lshrrev_b32 v{t1}, 3, v1
v_and_b32 v{dst}, 2, v{t1}
v_or_b32 v{t0}, v{t0}, v{dst}
v_and_b32 v{t1}, 1, v{t1}
v_lshl_or_b32 v{t0}, v{t1}, 2, v{t0}
v_lshlrev_b32 v{t0}, 4, v{t0}
v_and_b32 v{t1}, 1, v1
v_lshl_or_b32 v{t0}, v{t1}, 3, v{t0}
v_bfe_u32 v{t1}, v1, 2, 2
v_lshl_or_b32 v{t0}, v{t1}, 7, v{t0}
v_lshrrev_b32 v{t1}, 5, v1
v_lshl_or_b32 v{t0}, v{t1}, {9 if perm else 10}, v{t0}
v_add_u32 v{dst}, {base_expr}, v{t0}
""")
        if nh_sgpr is not None:
            p(f"s_lshl_b32 s3, s{nh_sgpr}, 6\nv_xor_b32 v{dst}, s3, v{dst}")

    def a_wave(self):
        p = self.p
        q0, SA, SB, K0, V0, vI, vK, vV, o0 = 16, 48, 64, 80, 88, 104, 105, 106, 128
        p(f"""
s_and_b32 s56, s{sW}, 1
s_lshr_b32 s57, s{sW}, 1
v_and_b32 v5, 31, v1
s_lshl_b32 s3, s56, 5
v_add_u32 v5, s3, v5
v_mul_u32_u24 v3, {XS}, v5
v_lshrrev_b32 v6, 5, v1
v_lshl_add_u32 v3, v6, 4, v3
v_lshlrev_b32 v5, 2, v5
v_add_u32 v5, {ST}, v5
""")
        self.tr_addr32(4, 6, 7, str(WQ), 57, False)
        p("s_waitcnt vmcnt(0) lgkmcnt(0)\ns_barrier")
        self.stamp(4)
        p("s_setprio 2")
        lq = Queue(p, "lgkmcnt", 15)
        p("ds_read_b32 v8, v5")
        lq.issue("r")
        def rd(s):
            b = 16 + 8 * (s % 4)
            p(f"ds_read_b64_tr_b16 {vr(b,2)}, v4 offset:{s*2048}\nds_read_b64_tr_b16 {vr(b+2,2)}, v4 offset:{s*2048+512}\nds_read_b128 {vr(b+4,4)}, v3 offset:{s*32}")
            for _ in range(3):
                lq.issue(s)
        for s in range(3):
            rd(s)
        for s in range(32):
            if s + 3 < 32:
                rd(s + 3)
            lq.wait(s)
            b = 16 + 8 * (s % 4)
            p(f"v_mfma_f32_32x32x16_bf16 v[48:63], {vr(b,4)}, {vr(b+4,4)}, {'0' if s == 0 else 'v[48:63]'}")
        p(f"""
v_mul_f32 v8, {hx(0.25*LOG2E)}, v8
s_lshl_b32 s3, s57, 12
s_lshl_b32 s54, s56, 10
s_add_u32 s3, s3, s54
s_add_u32 s3, s3, {QX}
v_add_u32 v7, s3, v2
""")
        for i in range(6):
            p(f"v_mov_b32 v{o0+i}, 0")
        for i in range(16):
            p(f"v_mul_f32 v{48+i}, v8, v{48+i}")
        for i in range(8):
            p(f"v_cvt_pk_bf16_f32 v{64+i}, v{48+2*i}, v{49+2*i}")
        p("ds_write_b128 v7, v[64:67]\nds_write_b128 v7, v[68:71] offset:2048\ns_waitcnt lgkmcnt(0)")
        self.cnt_signal(0, 12, 13)
        self.stamp(5)
        for i in range(6, 128):
            p(f"v_mov_b32 v{o0+i}, 0")
        for i in range(8):
            p(f"v_mov_b32 v{SB+8+i}, 0")
        p(f"""
v_mov_b32 v{vI}, 0xdddddddd
v_mov_b32 v{vK}, v2
v_and_b32 v6, 15, v1
v_lshrrev_b32 v7, 5, v1
v_lshl_add_u32 v6, v7, 4, v6
v_lshlrev_b32 v6, 4, v6
v_add_u32 v{vV}, 1024, v6
v_and_b32 v6, 27, v1
v_cmp_eq_u32 vcc, 16, v6
v_mov_b32 v7, s{sONE}
v_cndmask_b32 v{V0}, 0, v7, vcc
""")
        for i in range(1, 16):
            p(f"v_mov_b32 v{V0+i}, v{V0}")
        for k in range(3):
            p(f"""
s_add_u32 s3, s{sJ}, {1+k}
s_and_b32 s3, s3, 3
s_mul_i32 s3, s3, 13824
s_add_u32 s3, s3, {OP + (2-k)*4608}
v_add_u32 v{107+k}, s3, v2
s_add_u32 s3, s3, 4096
v_lshl_add_u32 v{110+k}, v1, 2, s3
""")
        self.cnt_wait(0, 4, 12, 6, sleep=0)
        for k in range(4):
            p(f"""
s_add_u32 s3, s{sJ}, {1+k}
s_and_b32 s3, s3, 3
s_lshl_b32 s3, s3, 11
s_add_u32 s3, s3, {QX}
v_add_u32 v6, s3, v2
ds_read_b128 {vr(q0+8*k,4)}, v6
ds_read_b128 {vr(q0+8*k+4,4)}, v6 offset:1024
""")
        p("s_waitcnt lgkmcnt(0)")
        for r in range(4):
            for t in range(8):
                p(f"v_dot2_f32_bf16 v{48+t}, v{q0+4*t+r}, v{q0+4*t+r}, {'0' if r == 0 else f'v{48+t}'}")
        for t in range(0, 8, 2):
            p(f"v_permlane32_swap_b32 v{48+t}, v{49+t}")
        for t in range(0, 8, 2):
            p(f"v_add_f32 v{48+t}, v{48+t}, v{49+t}")
        p("v_max3_u32 v48, v48, v50, v52\nv_max_u32 v48, v48, v54")
        for c in ("quad_perm:[1,0,3,2]", "quad_perm:[2,3,0,1]", "row_half_mirror", "row_mirror"):
            p(f"v_max_u32_dpp v48, v48, v48 {c} row_mask:0xf bank_mask:0xf")
        p("""
v_mov_b32 v49, v48
v_permlane16_swap_b32 v48, v49
v_max_u32 v48, v48, v49
v_mov_b32 v49, v48
v_permlane32_swap_b32 v48, v49
v_max_u32 v48, v48, v49
""")
        self.stamp(6)
        l, d = self.lab("kw"), self.lab("kd")
        p(f"""
v_lshlrev_b32 v6, 5, v1
s_mov_b32 s56, {FKV}
s_lshl_b32 s57, s{sJ}, 15
s_add_u32 s57, s57, {KV}
s_mov_b32 s54, {SPIN}
{l}:
buffer_load_dwordx4 v[52:55], v6, {srd(rWS)}, s56 offen sc1
buffer_load_dwordx4 v[56:59], v6, {srd(rWS)}, s56 offen offset:16 sc1
s_waitcnt vmcnt(0)
v_xor_b32 v52, s{sN}, v52
v_xor_b32 v54, s{sN}, v54
v_xor_b32 v56, s{sN}, v56
v_xor_b32 v58, s{sN}, v58
v_or3_b32 v52, v52, v54, v56
v_or_b32 v52, v52, v58
v_cmp_ne_u32 vcc, 0, v52
s_cbranch_vccz {d}
s_sub_u32 s54, s54, 1
s_cmp_lg_u32 s54, 0
s_cbranch_scc1 {l}
{d}:
s_mov_b32 s68, 0x0000ffff
s_mov_b32 s69, 0x0000ffff
buffer_load_dwordx4 {vr(K0,4)}, v{vK}, {srd(rWS)}, s57 offen sc1
s_mov_b64 exec, s[68:69]
buffer_load_dwordx4 {vr(V0,4)}, v{vV}, {srd(rWS)}, s57 offen sc1
buffer_load_dwordx4 {vr(V0+4,4)}, v{vV}, {srd(rWS)}, s57 offen offset:512 sc1
s_mov_b64 exec, -1
s_or_b32 s3, s2, s{sW}
s_cmp_lg_u32 s3, 0
s_cbranch_scc1 L_noE
v_mov_b32 v6, s{sN}
v_mov_b32 v7, 0
s_mov_b64 exec, 1
buffer_store_dword v6, v7, {srd(rWS)}, 0 offen sc1
s_mov_b64 exec, -1
L_noE:
v_max_u32 v53, v53, v57
v_max_u32 v55, v55, v59
v_mul_f32 v53, v53, v48
v_cmp_nge_f32 vcc, {hx(4096.0)}, v53
v_mov_b32 v6, {hx(2.0**40)}
v_cmp_nge_f32 s[54:55], v6, v55
v_mov_b32 v6, {hx(2.0**-40)}
v_cmp_le_f32 s[58:59], v6, v55
s_or_b64 s[54:55], s[54:55], vcc
s_cmp_eq_u64 s[58:59], 0
s_cselect_b64 s[58:59], 1, 0
s_or_b64 s[54:55], s[54:55], s[58:59]
""")
        if self.o.get("force_slow"):
            p("s_branch L_slow")
        else:
            p("s_cbranch_scc1 L_slow")
        self.stamp(7)
        S = [SA, SB]
        def qk(dst, kb, t):
            return f"v_mfma_f32_32x32x16_bf16 {vr(dst,16)}, {vr(kb,4)}, {vr(q0+4*t,4)}, 0"
        def pv(t, vb, sb):
            return f"v_smfmac_f32_32x32x32_bf16 {vr(o0+16*t,16)}, {vr(vb,4)}, {vr(sb,8)}, v{vI}"
        def opw(t):
            k, e = t >> 1, t & 1
            w = [f"ds_write_b128 v{107+k}, {vr(o0+16*t,4)} offset:{2048*e}",
                 f"ds_write_b128 v{107+k}, {vr(o0+16*t+4,4)} offset:{2048*e+1024}"]
            if e:
                w.append(f"ds_write2st64_b32 v{110+k}, v{o0+16*(t-1)+8}, v{o0+16*t+8} offset1:1")
            return w
        def tile(pb, last=False):
            Kc, Kn = K0 + 4 * pb, K0 + 4 * (pb ^ 1)
            Vc, Vn = V0 + 8 * pb, V0 + 8 * (pb ^ 1)
            for t in range(8):
                Xb, Yb = S[t & 1], S[(t + 1) & 1]
                wr = opw(t - 2) if (last and t >= 2) else []
                for i in range(16):
                    p(f"v_exp_f32 v{Xb+i}, v{Xb+i}")
                    if i == 1:
                        p(pv((t - 1) & 7, (Vn if t == 0 else Vc) + 4, Yb + 8))
                    if t == 0 and not last:
                        if i == 2:
                            p(f"s_add_u32 s57, s57, 2048\nbuffer_load_dwordx4 {vr(Kn,4)}, v{vK}, {srd(rWS)}, s57 offen sc1")
                        if i == 6:
                            p(f"s_mov_b64 exec, s[68:69]\nbuffer_load_dwordx4 {vr(Vn,4)}, v{vV}, {srd(rWS)}, s57 offen sc1")
                            p(f"buffer_load_dwordx4 {vr(Vn+4,4)}, v{vV}, {srd(rWS)}, s57 offen offset:512 sc1\ns_mov_b64 exec, -1")
                    if i == 4:
                        if t < 7:
                            p(qk(Yb, Kc, t + 1))
                        elif not last:
                            p("s_waitcnt vmcnt(0)")
                            p(qk(Yb, Kn, 0))
                    if i == 9:
                        p(pv(t, Vc, Xb))
                    if wr and i in (3, 7, 11):
                        p(wr.pop(0))
        p("s_waitcnt vmcnt(0)")
        p(qk(SA, K0, 0))
        p(f"s_add_u32 s58, s57, {15*2048}")
        p(f"s_setprio {self.o.get('prioA', 1)}")
        p("s_nop 9")
        p(".p2align 6\nL_att:")
        tile(0)
        p("s_cmp_eq_u32 s57, s58\ns_cbranch_scc1 L_att_last")
        tile(1)
        p("s_branch L_att")
        p("L_att_last:")
        self.stamp(8)
        self.cnt_wait(2, 4, 12, 6)
        tile(1, last=True)
        p("s_nop 1")
        p(pv(7, V0 + 8 + 4, SB + 8))
        p("L_att_done:")
        p(f"""
s_mul_i32 s3, s{sJ}, 13824
s_add_u32 s3, s3, {OP}
v_add_u32 v3, s3, v2
s_add_u32 s3, s3, 4096
v_lshl_add_u32 v4, v1, 2, s3
s_lshl_b32 s56, s{sTG}, 16
s_lshl_b32 s3, s{sCG}, 2
s_add_u32 s57, s3, s{sJ}
s_lshl_b32 s3, s57, 11
s_add_u32 s56, s56, s3
s_add_u32 s56, s56, {OF}
s_waitcnt lgkmcnt(0)
s_barrier
""")
        self.stamp(9)
        lq = Queue(p, "lgkmcnt", 15)
        for k in range(3):
            b = 16 + 18 * k
            for e in range(4):
                p(f"ds_read_b128 {vr(b+4*e,4)}, v3 offset:{k*4608+e*1024}")
                lq.issue(k)
            p(f"ds_read2st64_b32 {vr(b+16,2)}, v4 offset0:{k*18} offset1:{k*18+1}")
            lq.issue(k)
        for k in range(3):
            b = 16 + 18 * k
            lq.wait(k)
            for e in range(2):
                p(f"v_add_f32 v{o0+16*(6+e)+8}, v{o0+16*(6+e)+8}, v{b+16+e}")
            if k == 2:
                for e in range(2):
                    p(f"v_rcp_f32 v{8+2*e}, v{o0+16*(6+e)+8}")
            for e in range(2):
                for i in range(0, 8, 2):
                    r = o0 + 16 * (6 + e) + i
                    p(f"v_pk_add_f32 {vr(r,2)}, {vr(r,2)}, {vr(b+8*e+i,2)}")
        for e in range(2):
            for i in range(0, 8, 2):
                r = o0 + 16 * (6 + e) + i
                p(f"v_pk_mul_f32 {vr(r,2)}, {vr(r,2)}, {vr(8+2*e,2)} op_sel_hi:[1,0]")
            for i in range(4):
                r = o0 + 16 * (6 + e) + 2 * i
                p(f"v_cvt_pk_bf16_f32 v{96+4*e+i}, v{r}, v{r+1}")
            p(f"buffer_store_dwordx4 {vr(96+4*e,4)}, v2, {srd(rWS)}, s56 offen offset:{1024*e} sc1")
        p(f"""
s_lshl_b32 s56, s{sTG}, 7
s_lshl_b32 s57, s57, 2
s_add_u32 s56, s56, s57
s_add_u32 s56, s56, {FO}
v_mov_b32 v6, s{sN}
v_mov_b32 v7, 0
s_waitcnt vmcnt(0)
s_mov_b64 exec, 1
buffer_store_dword v6, v7, {srd(rWS)}, s56 offen sc1
s_mov_b64 exec, -1
""")
        self.stamp(10)
        p("s_branch L_final")
        m0 = 113
        p(f"L_slow:\ns_waitcnt vmcnt(0)")
        for t in range(8):
            p(f"v_mov_b32 v{m0+t}, 0xff800000")
        p(f"s_mov_b32 s58, {KV}\nL_slow_max:\nbuffer_load_dwordx4 {vr(K0+4,4)}, v{vK}, {srd(rWS)}, s58 offen sc1\ns_waitcnt vmcnt(0)")
        for t in range(8):
            p(qk(SA, K0 + 4, t))
            for i in range(0, 16, 2):
                p(f"v_max3_f32 v{m0+t}, v{SA+i}, v{SA+i+1}, v{m0+t}")
        p(f"s_add_u32 s58, s58, 2048\ns_cmp_lt_u32 s58, {KV + 64*2048}\ns_cbranch_scc1 L_slow_max")
        for t in range(8):
            p(f"v_mov_b32 v6, v{m0+t}\nv_permlane32_swap_b32 v6, v{m0+t}\nv_max_f32 v{m0+t}, v6, v{m0+t}")
        p(f"s_add_u32 s58, s57, {16*2048}\nL_slow_pv:")
        p(f"""
buffer_load_dwordx4 {vr(K0,4)}, v{vK}, {srd(rWS)}, s57 offen sc1
s_mov_b64 exec, s[68:69]
buffer_load_dwordx4 {vr(V0,4)}, v{vV}, {srd(rWS)}, s57 offen sc1
buffer_load_dwordx4 {vr(V0+4,4)}, v{vV}, {srd(rWS)}, s57 offen offset:512 sc1
s_mov_b64 exec, -1
s_waitcnt vmcnt(0)
""")
        for t in range(8):
            p(qk(SA, K0, t))
            for i in range(16):
                p(f"v_sub_f32 v{SA+i}, v{SA+i}, v{m0+t}")
            for i in range(16):
                p(f"v_exp_f32 v{SA+i}, v{SA+i}")
            p(pv(t, V0, SA))
            p(pv(t, V0 + 4, SA + 8))
        p("s_add_u32 s57, s57, 2048\ns_cmp_lt_u32 s57, s58\ns_cbranch_scc1 L_slow_pv")
        self.cnt_wait(2, 4, 12, 6)
        for t in range(6):
            for w in opw(t):
                p(w)
        p("s_branch L_att_done")

    def g_wave(self):
        p = self.p
        p("L_G:\ns_waitcnt vmcnt(0)")
        for i in range(16):
            p(f"v_lshlrev_b32 v{16+2*i}, 16, v{192+i}\nv_and_b32 v{17+2*i}, 0xffff0000, v{192+i}")
        p(f"""
s_and_b32 s56, s{sJ}, 1
s_xor_b32 s57, s56, 1
v_and_b32 v5, 31, v1
v_lshrrev_b32 v6, 5, v1
s_lshl_b32 s3, s56, 5
v_add_u32 v7, s3, v5
v_mul_u32_u24 v3, {XS}, v7
v_lshl_add_u32 v3, v6, 4, v3
v_lshlrev_b32 v128, 2, v7
s_lshl_b32 s3, s57, 5
v_add_u32 v7, s3, v5
v_mul_u32_u24 v4, {XS}, v7
v_lshl_add_u32 v4, v6, 4, v4
v_lshlrev_b32 v129, 2, v7
v_add_u32 v128, {ST+256}, v128
v_add_u32 v129, {ST+256}, v129
s_lshl_b32 s63, s{sJ}, 14
s_add_u32 s63, s63, {WQ}
v_mul_u32_u24 v7, 2752, v15
v_lshl_add_u32 v7, v14, 4, v7
s_lshl_b32 s3, s59, 6
v_add_u32 v7, s3, v7
""")
        self.tr_addr32(5, 6, 8, "s63", 56, False)
        p("v_xor_b32 v6, 64, v5")
        p("s_waitcnt lgkmcnt(0)\ns_barrier")
        self.stamp(4)
        p("ds_read_b32 v10, v128\nds_read_b32 v14, v129")
        self.cnt_wait(0, 4, 12, 8)
        self.stamp(5)
        vq = Queue(p, "vmcnt", 63)
        lq = Queue(p, "lgkmcnt", 15)
        p(f"""
s_mov_b32 s54, 0
s_mul_i32 s55, s{sJ}, 22
s_cmp_eq_u32 s{sJ}, 3
s_cselect_b32 s55, 65, s55
s_lshl_b32 s67, s55, 11
s_lshl_b32 s55, s55, 14
""")
        def dma_w1(s):
            for i in range(2):
                p(f"s_add_u32 m0, s63, {(s % 8) * 2048 + i * 1024}\ns_nop 0\nbuffer_load_dwordx4 v7, {srd(rW1)}, s54 offen lds\ns_add_u32 s54, s54, {8*2752}")
                vq.issue(("w1", s))
        def dma_w2(i, base, slot):
            if i == 21:
                p(f"s_min_u32 s55, s55, {85*16384}")
            for h in range(2):
                p(f"s_add_u32 m0, s{base}, {slot * 2048 + h * 1024}\ns_nop 0\nbuffer_load_dwordx4 v9, {srd(rW2)}, s55 offen lds\ns_add_u32 s55, s55, 8192")
                vq.issue(("w2", i))
        def rd1(s):
            b = 96 + 16 * (s & 1)
            o = (s % 8) * 2048
            p(f"ds_read_b64_tr_b16 {vr(b,2)}, v5 offset:{o}\nds_read_b64_tr_b16 {vr(b+2,2)}, v5 offset:{o+512}")
            p(f"ds_read_b128 {vr(b+8,4)}, v3 offset:{s*32}\nds_read_b128 {vr(b+12,4)}, v4 offset:{s*32}")
            p(f"ds_read_b64_tr_b16 {vr(b+4,2)}, v6 offset:{o}\nds_read_b64_tr_b16 {vr(b+6,2)}, v6 offset:{o+512}")
            for _ in range(6):
                lq.issue(s)
        for s in range(8):
            dma_w1(s)
        vq.wait(("w1", 0))
        rd1(0)
        for s in range(32):
            if s + 1 < 32:
                vq.wait(("w1", s + 1))
                rd1(s + 1)
            lq.wait(s)
            if s + 8 < 32:
                dma_w1(s + 8)
            else:
                dma_w2(s + 8 - 32, 63, s % 8)
            b = 96 + 16 * (s & 1)
            c = lambda a: "0" if s == 0 else vr(a, 16)
            p(f"v_mfma_f32_32x32x16_bf16 v[48:63], {vr(b,4)}, {vr(b+8,4)}, {c(48)}")
            p(f"v_mfma_f32_32x32x16_bf16 v[64:79], {vr(b,4)}, {vr(b+12,4)}, {c(64)}")
            p(f"v_mfma_f32_32x32x16_bf16 v[80:95], {vr(b+4,4)}, {vr(b+8,4)}, {c(80)}")
        self.stamp(6)
        c2 = 2 * math.sqrt(2 / math.pi) * LOG2E
        p(f"""
s_setprio {self.o.get('prioGv', 3)}
s_mov_b32 s48, {hx(-c2*0.044715)}
s_mov_b32 s49, {hx(-c2*0.044715)}
v_mov_b32 v128, {hx(-c2)}
v_mov_b32 v129, {hx(-c2)}
s_mul_i32 s54, s{sTG}, {HTG}
s_add_u32 s54, s54, {HF}
s_add_u32 s67, s67, s54
s_lshl_b32 s3, s61, 12
s_add_u32 s50, s54, s3
s_lshl_b32 s3, s56, 10
s_add_u32 s51, s50, s3
s_lshl_b32 s58, s62, 12
s_add_u32 s58, s58, s54
s_add_u32 s58, s58, s3
s_lshl_b32 s3, s57, 10
s_add_u32 s50, s50, s3
""")
        def gelu_pair(acc, bias, rr, t, out):
            return [
                f"v_pk_fma_f32 {vr(acc,2)}, {vr(acc,2)}, {vr(rr,2)}, {vr(bias,2)} op_sel_hi:[1,0,1]",
                f"v_pk_mul_f32 {vr(t,2)}, {vr(acc,2)}, {vr(acc,2)}",
                f"v_pk_fma_f32 {vr(t,2)}, {vr(t,2)}, s[48:49], v[128:129]",
                f"v_pk_mul_f32 {vr(t,2)}, {vr(t,2)}, {vr(acc,2)}",
                f"v_exp_f32 v{t}, v{t}", f"v_exp_f32 v{t+1}, v{t+1}",
                f"v_pk_add_f32 {vr(t,2)}, {vr(t,2)}, 1.0 op_sel_hi:[1,0]",
                f"v_rcp_f32 v{t}, v{t}", f"v_rcp_f32 v{t+1}, v{t+1}",
                f"v_pk_mul_f32 {vr(acc,2)}, {vr(acc,2)}, {vr(t,2)}",
                f"v_cvt_pk_bf16_f32 v{out}, v{acc}, v{acc+1}"]
        for ti, (acc, bias, rr, so) in enumerate(((48, 16, 10, 51), (64, 16, 14, 50), (80, 32, 10, 58))):
            if ti == 2:
                p("s_cmp_eq_u32 s60, 0\ns_cbranch_scc1 L_nohalf")
            for e in range(2):
                ls = [gelu_pair(acc + 8 * e + 2 * k, bias + 8 * e + 2 * k, rr, 132 + 2 * k, 160 + 8 * ti + 4 * e + k) for k in range(4)]
                for l in self.merge(*ls):
                    p(l)
                p(f"buffer_store_dwordx4 {vr(160+8*ti+4*e,4)}, v2, {srd(rWS)}, s{so} offen offset:{2048*e} sc1")
        p(f"""
L_nohalf:
s_setprio 0
s_lshl_b32 s56, s{sTG}, 7
s_add_u32 s56, s56, {FH}
s_lshl_b32 s3, s{sCG}, 2
s_add_u32 s3, s3, s{sJ}
s_lshl_b32 s3, s3, 2
s_add_u32 s57, s56, s3
v_mov_b32 v16, s{sN}
v_mov_b32 v17, 0
v_and_b32 v18, 31, v1
v_lshlrev_b32 v18, 2, v18
s_mul_i32 s62, s{sJ}, {XSL}
""")
        self.tr_addr32(5, 6, 8, "s63", None, True)
        p(f"""
v_xor_b32 v6, 64, v5
s_sub_u32 s3, s62, s63
v_add_u32 v3, s3, v5
v_add_u32 v4, s3, v6
v_and_b32 v7, 6, v15
v_and_b32 v8, 7, v1
v_xor_b32 v7, v7, v8
v_lshlrev_b32 v7, 4, v7
v_lshl_add_u32 v7, v15, 10, v7
s_lshl_b32 s3, s{sCG}, 7
v_add_u32 v7, s3, v7
s_lshl_b32 s61, s{sJ}, 17
s_waitcnt vmcnt(0)
s_mov_b64 exec, 1
buffer_store_dword v16, v17, {srd(rWS)}, s57 offen sc1
s_mov_b64 exec, -1
""")
        vq.q = []
        self.stamp(7)
        p(f"s_add_u32 s58, s54, {85*2048}")
        self.flag_wait(18, 56, 19, sleep=2)
        self.stamp(8)
        HD = 8
        def ld_h(i):
            if i == 21:
                p("s_min_u32 s67, s67, s58")
            b = 128 + 8 * (i % HD)
            p(f"buffer_load_dwordx4 {vr(b,4)}, v2, {srd(rWS)}, s67 offen sc1\nbuffer_load_dwordx4 {vr(b+4,4)}, v2, {srd(rWS)}, s67 offen offset:1024 sc1\ns_add_u32 s67, s67, 2048")
            vq.issue(("h", i)); vq.issue(("h", i))
        def dma_wo(i):
            p(f"s_add_u32 m0, s63, {i * 1024}\ns_nop 0\nbuffer_load_dwordx4 v7, {srd(rWO)}, s61 offen lds\ns_add_u32 s61, s61, 8192")
            vq.issue(("wo", i))
        def rd2(i):
            b = 112 + 8 * (i & 1)
            a0, a1 = (5, 6) if i < 8 else (3, 4)
            o = (i % 8) * 2048
            p(f"ds_read_b64_tr_b16 {vr(b,2)}, v{a0} offset:{o}\nds_read_b64_tr_b16 {vr(b+2,2)}, v{a0} offset:{o+1024}")
            p(f"ds_read_b64_tr_b16 {vr(b+4,2)}, v{a1} offset:{o}\nds_read_b64_tr_b16 {vr(b+6,2)}, v{a1} offset:{o+1024}")
            for _ in range(4):
                lq.issue(i)
        for i in range(8):
            ld_h(i)
            dma_w2(8 + i, 62, i)
        rd2(0)
        for i in range(22):
            if i + 1 < 22:
                vq.wait(("w2", i + 1))
                rd2(i + 1)
            vq.wait(("h", i))
            lq.wait(i)
            if i == 21:
                p(f"s_cmp_ge_u32 s{sJ}, 2\ns_cbranch_scc1 L_skip21")
            b = 112 + 8 * (i & 1)
            h = 128 + 8 * (i % HD)
            for mh in range(2):
                for nb in range(2):
                    a = 48 + 16 * (2 * mh + nb)
                    p(f"v_mfma_f32_32x32x16_bf16 {vr(a,16)}, {vr(b+4*nb,4)}, {vr(h+4*mh,4)}, {'0' if i == 0 else vr(a,16)}")
            if i + HD < 22:
                ld_h(i + HD)
            if 8 <= i and i + 8 < 22:
                dma_w2(i + 8, 62, i % 8)
            if 7 <= i < 15:
                dma_wo(2 * (i - 7)); dma_wo(2 * (i - 7) + 1)
        p("L_skip21:")
        self.stamp(9)
        p(f"""
s_setprio {self.o.get('prioGv', 3)}
v_lshrrev_b32 v8, 4, v1
v_lshlrev_b32 v16, 3, v8
s_lshl_b32 s3, s{sCG}, 7
""")
        for nt in range(4):
            p(f"buffer_load_dwordx2 {vr(192+2*nt,2)}, v16, {srd(rB2)}, s3 offen offset:{32*nt}")
        p(f"""
v_and_b32 v3, 31, v1
v_and_b32 v4, 15, v1
v_lshrrev_b32 v5, 5, v1
v_xor_b32 v5, v5, v4
v_lshlrev_b32 v5, 4, v5
v_lshl_add_u32 v5, v3, 8, v5
v_add_u32 v5, s62, v5
""")
        for nb in range(2):
            for a in range(4):
                p(f"v_xor_b32 v{6 + (a & 1)}, {(8*nb+2*a) << 4}, v5")
                for mh in range(2):
                    p(f"ds_write_b128 v{6 + (a & 1)}, {vr(48+16*(2*mh+nb)+4*a,4)} offset:{8192*mh}")
        p(f"""
s_lshl_b32 s3, s{sJ}, 12
v_xor_b32 v5, v8, v4
v_lshlrev_b32 v5, 4, v5
v_lshl_add_u32 v5, v4, 8, v5
v_add_u32 v5, s3, v5
s_waitcnt vmcnt(0) lgkmcnt(0)
""")
        self.cnt_signal(1, 12, 13)
        for i in range(8):
            p(f"v_lshlrev_b32 v{16+2*i}, 16, v{192+i}\nv_and_b32 v{17+2*i}, 0xffff0000, v{192+i}")
        p(f"s_setprio 0")
        self.cnt_wait(1, 4, 12, 8)
        p(f"s_setprio {self.o.get('prioGv', 3)}")
        lq.q = []
        for nt in range(4):
            if nt:
                p(f"v_xor_b32 v6, {nt << 6}, v5")
            for kq in range(4):
                p(f"ds_read_b128 {vr(48+16*nt+4*kq,4)}, v{6 if nt else 5} offset:{kq*XSL}")
                lq.issue(nt)
        p(f"s_lshl_b32 s3, s{sJ}, 11\ns_add_u32 s3, s3, {GA}\nv_add_u32 v7, s3, v2\ns_mov_b32 s48, {hx(-LOG2E)}\ns_mov_b32 s49, {hx(-LOG2E)}")
        for nt in range(4):
            lq.wait(nt)
            z = 16 + 4 * nt
            def silu_pair(r, t):
                o = [f"v_pk_add_f32 {vr(r,2)}, {vr(r,2)}, {vr(48+16*nt+4*kq+(r-z),2)}" for kq in range(4)]
                return o + [f"v_pk_mul_f32 {vr(t,2)}, {vr(r,2)}, s[48:49]",
                            f"v_exp_f32 v{t}, v{t}", f"v_exp_f32 v{t+1}, v{t+1}",
                            f"v_pk_add_f32 {vr(t,2)}, {vr(t,2)}, 1.0 op_sel_hi:[1,0]",
                            f"v_rcp_f32 v{t}, v{t}", f"v_rcp_f32 v{t+1}, v{t+1}",
                            f"v_pk_mul_f32 {vr(r,2)}, {vr(r,2)}, {vr(t,2)}"]
            for l in self.merge(silu_pair(z, 32), silu_pair(z + 2, 34)):
                p(l)
            p(f"ds_write_b128 v7, {vr(z,4)} offset:{(nt >> 1) * 8192 + (nt & 1) * 1024}")
            lq.issue("w")
        p("s_waitcnt lgkmcnt(0)")
        self.cnt_signal(2, 12, 13)
        p("s_setprio 0")
        self.stamp(10)
        p("s_barrier")

    def final(self):
        p = self.p
        p("L_final:")
        p(f"""
s_lshr_b32 s56, s{sW}, 2
v_lshrrev_b32 v3, 4, v1
v_and_b32 v4, 15, v1
s_lshl_b32 s3, s{sJ}, 4
v_add_u32 v5, s3, v4
v_lshlrev_b32 v5, 10, v5
v_lshl_add_u32 v5, v3, 3, v5
s_lshl_b32 s57, s{sTG}, 16
s_lshl_b32 s3, s{sCG}, 7
s_add_u32 s57, s57, s3
s_lshl_b32 s3, s56, 6
s_add_u32 s57, s57, s3
buffer_load_dwordx2 v[16:17], v5, {srd(rX)}, s57 offen
buffer_load_dwordx2 v[18:19], v5, {srd(rX)}, s57 offen offset:32
s_lshl_b32 s3, s{sW}, 11
s_add_u32 s3, s3, {GA}
v_add_u32 v6, s3, v2
ds_read_b128 v[20:23], v6
ds_read_b128 v[24:27], v6 offset:1024
v_bfe_u32 v8, v1, 2, 3
v_lshlrev_b32 v9, 7, v8
v_lshrrev_b32 v8, 1, v8
s_lshl_b32 s3, s56, 1
v_xor_b32 v8, s3, v8
v_lshl_or_b32 v9, v8, 5, v9
v_and_b32 v8, 3, v1
v_lshl_or_b32 v9, v8, 3, v9
v_lshrrev_b32 v8, 5, v1
v_lshl_or_b32 v9, v8, 11, v9
s_lshl_b32 s3, s56, 15
s_add_u32 s3, s3, {WQ}
v_add_u32 v8, s3, v9
v_xor_b32 v9, 32, v8
v_xor_b32 v10, 64, v8
v_xor_b32 v11, 96, v8
""")
        for s in range(8):
            for nt in range(4):
                for t in range(2):
                    p(f"ds_read_b64_tr_b16 {vr(128+16*s+4*nt+2*t,2)}, v{8+nt} offset:{s*4096+t*1024}")
        p(f"""
s_lshl_b32 s3, s56, 4
v_add_u32 v14, s3, v4
v_lshlrev_b32 v14, 2, v14
s_lshl_b32 s58, s{sTG}, 7
s_add_u32 s58, s58, {FO}
v_and_b32 v7, 1, v3
v_lshlrev_b32 v7, 9, v7
v_lshrrev_b32 v15, 1, v3
v_lshl_add_u32 v7, v15, 11, v7
v_lshl_add_u32 v7, v4, 4, v7
s_lshl_b32 s59, s{sTG}, 16
s_lshl_b32 s3, s56, 15
s_add_u32 s59, s59, s3
s_lshr_b32 s3, s{sJ}, 1
s_lshl_b32 s3, s3, 10
s_add_u32 s59, s59, s3
s_and_b32 s3, s{sJ}, 1
s_lshl_b32 s3, s3, 8
s_add_u32 s59, s59, s3
s_add_u32 s59, s59, {OF}
""")
        self.flag_wait(14, 58, 15, sleep=0)
        self.stamp(11)
        vq = Queue(p, "vmcnt", 63)
        for s in range(8):
            p(f"buffer_load_dwordx4 {vr(64+4*s,4)}, v7, {srd(rWS)}, s59 offen sc1\ns_add_u32 s59, s59, 4096")
            vq.issue(s)
        for i in range(4):
            p(f"v_lshlrev_b32 v{28+2*i}, 16, v{16+i}\nv_and_b32 v{29+2*i}, 0xffff0000, v{16+i}")
        p("s_waitcnt lgkmcnt(0)")
        for s in range(8):
            vq.wait(s)
            for nt in (2, 3, 0, 1):
                p(f"v_mfma_f32_16x16x32_bf16 {vr(48+4*nt,4)}, {vr(128+16*s+4*nt,4)}, {vr(64+4*s,4)}, {'0' if s == 0 else vr(48+4*nt,4)}")
        p(f"""
s_xor_b32 s3, s{sW}, 4
s_lshl_b32 s3, s3, 11
s_add_u32 s3, s3, {GA}
v_add_u32 v7, s3, v2
ds_write_b128 v6, v[56:59]
ds_write_b128 v6, v[60:63] offset:1024
s_waitcnt lgkmcnt(0)
s_barrier
ds_read_b128 v[56:59], v7
ds_read_b128 v[60:63], v7 offset:1024
""")
        for e in range(2):
            p(f"s_waitcnt lgkmcnt({1-e})")
            for i in range(0, 4, 2):
                r = 48 + 4 * e + i
                p(f"v_pk_add_f32 {vr(r,2)}, {vr(r,2)}, {vr(r+8,2)}")
            for i in range(0, 4, 2):
                r = 48 + 4 * e + i
                p(f"v_pk_fma_f32 {vr(r,2)}, {vr(r,2)}, {vr(20+4*e+i,2)}, {vr(28+4*e+i,2)}")
            for i in range(2):
                p(f"v_cvt_pk_bf16_f32 v{16+2*e+i}, v{48+4*e+2*i}, v{49+4*e+2*i}")
            p(f"buffer_store_dwordx2 {vr(16+2*e,2)}, v5, {srd(rOUT)}, s57 offen offset:{32*e}")
        if self.stamps:
            p("s_waitcnt vmcnt(0)")
            self.stamp(12)
            p(f"s_lshl_b32 s3, s2, 3\ns_add_u32 s3, s3, s{sW}\ns_lshl_b32 s3, s3, 7\ns_add_u32 s3, s3, {STAMP}\nv_mov_b32 v7, 0")
            for i in range(0, 24, 4):
                for k in range(4):
                    p(f"v_mov_b32 v{16+k}, s{72+i+k}")
                p(f"buffer_store_dwordx4 v[16:19], v7, {srd(rWS)}, s3 offen offset:{4*i}")
        p("L_exit:\ns_endpgm\nL_code_end:")

    def build(self, verbose=False):
        if self.stamps:
            for i in range(16):
                pass
        self.entry()
        self.prologue()
        self.a_wave()
        self.g_wave()
        self.final()
        ins = self.p.fix_hazards(verbose)
        head = open(f"cdna_kernels/{NAME}.s.ref").read().split("; Override launch")[0]
        return (head + f"; @launch grid=(256,1,1) block=(512,1,1) lds={LDS_BYTES}\n"
                + f""".amdgcn_target "amdgcn-amd-amdhsa--gfx950"
.text
.globl {NAME}_kernel
.p2align 8
.type {NAME}_kernel,@function
{NAME}_kernel:
""" + self.p.text() + f""".section .rodata,"a"
.p2align 6
.amdhsa_kernel {NAME}_kernel
  .amdhsa_next_free_vgpr 256
  .amdhsa_next_free_sgpr 102
  .amdhsa_accum_offset 256
  .amdhsa_group_segment_fixed_size 0
  .amdhsa_kernarg_size 104
  .amdhsa_user_sgpr_count 2
  .amdhsa_user_sgpr_kernarg_segment_ptr 1
  .amdhsa_system_sgpr_workgroup_id_x 1
  .amdhsa_float_denorm_mode_32 3
.end_amdhsa_kernel
""")


if __name__ == "__main__":
    out = sys.argv[1]
    opts = {}
    stamps = False
    for a in sys.argv[2:]:
        if a == "stamps":
            stamps = True
        elif a == "-v":
            opts["v"] = 1
        else:
            k, v = a.split("=")
            opts[k] = int(v)
    open(out, "w").write(Gen(stamps, opts).build(bool(opts.get("v"))))
```

```python
import sys, struct, math
from asmlib import Prog, Queue

NAME = "recurrent_scan__grouped_kv_mqa__mixer_channel_mlp__prompt"

def f2u(x):
    return struct.unpack("<I", struct.pack("<f", x))[0]
def hx(x):
    return f"0x{f2u(x):08x}"

X = 0; XS = 1040; XSL = 16640
WQ = 66560
WKV = 132096; GA = WKV
QX = 148480
ST = 156672
CNT = 157184
LDS_BYTES = 157696
OP = X; GP = X
FKV = 0x1000; FH = 0x2000; FO = 0x3000
KV = 0x10000; OF = 0x40000; HF = 0x240000; HTG = 86 * 2048
STAMP = 0x800000
WS_RANGE = 0x1000000
rX, rWS, rWQ, rWKV, rW1, rW2, rWO, rB1, rB2, rOUT = 4, 8, 12, 16, 20, 24, 28, 32, 36, 40
sW, sTG, sCG, sN, sTB, sJ = 44, 45, 46, 47, 52, 53
sONE, sLO, sHI = 64, 65, 66
srd = lambda r: f"s[{r}:{r+3}]"
vr = lambda a, n: f"v[{a}:{a+n-1}]"
LOG2E = 1.4426950408889634
SPIN = 1 << 20


class Gen:
    def __init__(self, stamps=False, opts=None):
        self.p = Prog()
        self.stamps = stamps
        self.o = opts or {}
        self.uid = 0

    def lab(self, s):
        self.uid += 1
        return f"L_{s}_{self.uid}"

    def stamp(self, i):
        if self.stamps:
            self.p(f"s_waitcnt lgkmcnt(0)\ns_memrealtime s[70:71]\ns_waitcnt lgkmcnt(0)\ns_mov_b32 s{72+i}, s70")
            k = {1: 17, 2: 18, 4: 19, 7: 20, 8: 21, 9: 22, 12: 23}.get(i)
            if k:
                self.p(f"s_memtime s[70:71]\ns_waitcnt lgkmcnt(0)\ns_mov_b32 s{72+k}, s70")

    def cnt_signal(self, k, vaddr, vone):
        self.p(f"s_mov_b64 exec, 1\nds_add_u32 v{vaddr}, v{vone} offset:{4*k}\ns_mov_b64 exec, -1")

    def cnt_wait(self, k, target, vaddr, vt, sleep=1):
        p = self.p
        l, d = self.lab("cw"), self.lab("cd")
        p(f"s_mov_b32 s54, {SPIN}\n{l}:\nds_read_b32 v{vt}, v{vaddr} offset:{4*k}\ns_waitcnt lgkmcnt(0)")
        p(f"v_readfirstlane_b32 s55, v{vt}\ns_cmp_ge_u32 s55, {target}\ns_cbranch_scc1 {d}")
        if sleep:
            p(f"s_sleep {sleep}")
        p(f"s_sub_u32 s54, s54, 1\ns_cmp_lg_u32 s54, 0\ns_cbranch_scc1 {l}\n{d}:")

    def flag_wait(self, vaddr, soff, vt, sleep=1):
        p = self.p
        l, d = self.lab("fw"), self.lab("fd")
        p(f"s_mov_b32 s54, {SPIN}\n{l}:\nbuffer_load_dword v{vt}, v{vaddr}, {srd(rWS)}, s{soff} offen sc1\ns_waitcnt vmcnt(0)")
        p(f"v_cmp_ne_u32 vcc, s{sN}, v{vt}\ns_cbranch_vccz {d}")
        if sleep:
            p(f"s_sleep {sleep}")
        p(f"s_sub_u32 s54, s54, 1\ns_cmp_lg_u32 s54, 0\ns_cbranch_scc1 {l}\n{d}:")

    @staticmethod
    def merge(*lists):
        out = []
        n = max(len(l) for l in lists)
        for i in range(n):
            for l in lists:
                if i < len(l):
                    out.append(l[i])
        return out

    def entry(self):
        p = self.p
        if self.stamps:
            p("s_memrealtime s[70:71]\ns_memtime s[88:89]")
        if self.o.get("fix") or self.o.get("xcc"):
            p("s_memrealtime s[92:93]")
        p(f"""
s_load_dwordx2 s[{rX}:{rX+1}], s[0:1], 0
s_load_dwordx4 s[48:51], s[0:1], 16
s_load_dwordx2 s[{rWS}:{rWS+1}], s[0:1], 96
s_load_dwordx2 s[{rWQ}:{rWQ+1}], s[0:1], 8
s_cmp_ge_u32 s2, 256
s_cbranch_scc1 L_exit
s_getpc_b64 s[54:55]
L_pc:
v_lshlrev_b32 v3, 6, v0
v_min_u32 v3, L_code_end-L_pc-4, v3
v_mov_b32 v5, s55
v_add_co_u32 v4, vcc, s54, v3
v_lshrrev_b32 v7, 6, v0
v_and_b32 v1, 63, v0
v_addc_co_u32 v5, vcc, 0, v5, vcc
v_readfirstlane_b32 s{sW}, v7
{"s_nop 0" if self.o.get("nopf") else "global_load_dword v6, v[4:5], off"}
s_load_dwordx2 s[{rW1}:{rW1+1}], s[0:1], 48
s_load_dwordx2 s[{rB1}:{rB1+1}], s[0:1], 56
s_load_dwordx2 s[{rW2}:{rW2+1}], s[0:1], 64
s_load_dwordx2 s[{rB2}:{rB2+1}], s[0:1], 72
s_load_dwordx2 s[{rOUT}:{rOUT+1}], s[0:1], 80
s_load_dwordx2 s[{rWO}:{rWO+1}], s[0:1], 32
s_and_b32 s3, s2, 7
s_lshr_b32 s54, s2, 3
s_and_b32 s{sCG}, s54, 7
s_lshr_b32 s54, s54, 3
s_lshl_b32 s3, s3, 2
s_add_u32 s{sTG}, s3, s54
s_lshr_b32 s{sTB}, s{sCG}, 1
s_and_b32 s{sJ}, s{sW}, 3
v_lshlrev_b32 v2, 4, v1
v_and_b32 v8, 32, v1
s_lshl_b32 s54, s{sW}, 11
v_lshl_add_u32 v8, v8, 4, v2
v_add_u32 v8, s54, v8
s_mov_b32 s{rX+2}, 2097152
s_mov_b32 s{rX+3}, 0x20000
s_mov_b32 s{rWKV+2}, 16384
s_mov_b32 s{rWKV+3}, 0x20000
s_lshl_b32 s56, s{sTG}, 16
s_lshl_b32 s57, s{sTB}, 14
s_add_u32 m0, s54, {WKV}
s_add_u32 s58, s56, s57
s_and_b32 s3, s{sCG}, 1
s_cmp_eq_u32 s3, 0
s_waitcnt lgkmcnt(0)
s_cselect_b32 s{rWKV}, s48, s50
s_cselect_b32 s{rWKV+1}, s49, s51
""")
        if self.stamps:
            p("s_mov_b32 s72, s70")
        p(f"""
buffer_load_dwordx4 v[16:19], v8, {srd(rX)}, s58 offen
buffer_load_dwordx4 v[20:23], v8, {srd(rX)}, s58 offen offset:512
buffer_load_dwordx4 v2, {srd(rWKV)}, s54 offen lds
buffer_load_dwordx4 v2, {srd(rWKV)}, s54 offen offset:1024 lds
s_load_dword s{sN}, s[{rWS}:{rWS+1}], 0
""")
        for i in (1, 2, 3):
            p(f"""
s_add_u32 s57, s57, 16384
s_and_b32 s57, s57, 0xffff
s_add_u32 s58, s56, s57
buffer_load_dwordx4 {vr(16+8*i,4)}, v8, {srd(rX)}, s58 offen
buffer_load_dwordx4 {vr(20+8*i,4)}, v8, {srd(rX)}, s58 offen offset:512
""")
        for r, n in ((rWS, WS_RANGE), (rWQ, 524288), (rW1, 512 * 2752), (rW2, 1376 * 1024), (rWO, 524288),
                     (rB1, 2752), (rB2, 1024), (rOUT, 2097152)):
            p(f"s_mov_b32 s{r+2}, {n}\ns_mov_b32 s{r+3}, 0x20000")
        p(f"s_mov_b32 s{sONE}, 0x3f803f80\ns_mov_b32 s{sLO}, 0x00003f80\ns_mov_b32 s{sHI}, 0x3f800000")
        p(f"""
v_lshrrev_b32 v3, 2, v1
v_and_b32 v3, 4, v3
v_and_b32 v4, 7, v1
v_xor_b32 v14, v3, v4
v_lshrrev_b32 v15, 3, v1
v_lshlrev_b32 v9, 10, v15
v_lshl_add_u32 v9, v14, 4, v9
s_lshl_b32 s3, s{sCG}, 7
v_add_u32 v9, s3, v9
s_cmp_ge_u32 s{sW}, 4
s_cbranch_scc1 L_pre_g
s_lshl_b32 s54, s{sW}, 17
s_lshl_b32 s55, s{sW}, 14
s_add_u32 s55, s55, {WQ}
""")
        for i in range(16):
            p(f"s_mov_b32 m0, s55\ns_add_u32 s55, s55, 1024\nbuffer_load_dwordx4 v9, {srd(rWQ)}, s54 offen lds\ns_add_u32 s54, s54, 8192")
        p(f"""
s_waitcnt vmcnt(22)
s_branch L_pre_j
L_pre_g:
s_min_u32 s3, s{sCG}, 3
s_mul_i32 s59, s{sCG}, 5
s_add_u32 s59, s59, s3
s_lshr_b32 s3, s{sJ}, 1
s_mul_i32 s3, s3, 3
s_add_u32 s59, s59, s3
s_and_b32 s3, s{sJ}, 1
s_cmp_lt_u32 s{sCG}, 3
s_cselect_b32 s60, 1, 0
s_cmp_lt_u32 s{sJ}, 2
s_cselect_b32 s60, 1, s60
s_and_b32 s61, s60, s3
s_add_u32 s59, s59, s61
s_add_u32 s61, s59, s3
s_xor_b32 s3, s3, 1
s_add_u32 s62, s59, s3
v_lshrrev_b32 v3, 2, v1
v_and_b32 v3, 8, v3
s_lshl_b32 s54, s61, 6
s_lshl_b32 s55, s62, 6
""")
        for a in range(4):
            p(f"buffer_load_dwordx2 {vr(192+2*a,2)}, v3, {srd(rB1)}, s54 offen offset:{16*a}")
        for a in range(4):
            p(f"buffer_load_dwordx2 {vr(200+2*a,2)}, v3, {srd(rB1)}, s55 offen offset:{16*a}")
        p(f"""
s_waitcnt vmcnt(14)
L_pre_j:
v_lshrrev_b32 v3, 5, v1
s_lshl_b32 s3, s{sW}, 1
v_add_u32 v3, s3, v3
v_mul_u32_u24 v10, {XS}, v3
v_and_b32 v4, 31, v1
v_lshl_add_u32 v10, v4, 4, v10
v_lshlrev_b32 v11, 2, v3
v_add_u32 v11, {ST}, v11
v_mov_b32 v12, {CNT}
v_mov_b32 v13, 1
v_mov_b32 v4, 0
v_mov_b32 v5, 0
s_mov_b64 exec, 1
ds_write_b64 v12, v[4:5]
ds_write_b64 v12, v[4:5] offset:8
s_mov_b64 exec, -1
s_barrier
""")
        self.stamp(1)

    def center_ops(self, i, tA, tB, tmp, tadr):
        a = 16 + 8 * i
        o = []
        for k in range(8):
            o.append(f"v_dot2_f32_bf16 v{tA}, v{a+k}, s{sONE}, {'0' if k == 0 else f'v{tA}'}")
            o.append(f"v_dot2_f32_bf16 v{tB}, v{a+k}, v{a+k}, {'0' if k == 0 else f'v{tB}'}")
        o.append(f"s_add_u32 s{48+i}, s{sTB}, {i}")
        o.append(f"s_and_b32 s{48+i}, s{48+i}, 3")
        o.append(f"s_mul_i32 s{96+i}, s{48+i}, {XSL}")
        o.append(f"v_permlane16_swap_b32 v{tA}, v{tB}")
        o.append(f"v_add_f32 v{tA}, v{tA}, v{tB}")
        o.append(f"v_add_u32 v{tadr}, s{96+i}, v10")
        o.append(f"s_lshl_b32 s{48+i}, s{48+i}, 6")
        for c in ("quad_perm:[1,0,3,2]", "quad_perm:[2,3,0,1]", "row_half_mirror", "row_mirror"):
            o.append(f"v_add_f32_dpp v{tA}, v{tA}, v{tA} {c} row_mask:0xf bank_mask:0xf")
        o.append(f"v_mov_b32 v{tB}, v{tA}")
        o.append(f"v_add_u32 v{tadr+1}, s{48+i}, v11")
        o.append(f"v_permlane16_swap_b32 v{tA}, v{tB}")
        o.append(f"v_mul_f32 v{tA}, {hx(-1.0/512)}, v{tA}")
        o.append(f"v_mul_f32 v{tB}, {hx(1.0/512)}, v{tB}")
        for k in range(8):
            o.append(f"v_dot2_f32_bf16 v{tmp+2*k}, v{a+k}, s{sLO}, v{tA}")
            o.append(f"v_dot2_f32_bf16 v{tmp+2*k+1}, v{a+k}, s{sHI}, v{tA}")
        o.append(f"v_fma_f32 v{tB}, -v{tA}, v{tA}, v{tB}")
        o.append(f"v_max_f32 v{tB}, 0, v{tB}")
        o.append(f"v_add_f32 v{tA}, {hx(1e-5)}, v{tB}")
        for k in range(4):
            o.append(f"v_cvt_pk_bf16_f32 v{a+k}, v{tmp+2*k}, v{tmp+2*k+1}")
        o.append(f"v_rsq_f32 v{tA}, v{tA}")
        o.append(f"ds_write_b128 v{tadr}, {vr(a,4)}")
        for k in range(4, 8):
            o.append(f"v_cvt_pk_bf16_f32 v{a+k}, v{tmp+2*k}, v{tmp+2*k+1}")
        o.append(f"v_mul_f32 v{tB}, v{tA}, v{tB}")
        o.append(f"ds_write_b128 v{tadr}, {vr(a+4,4)} offset:512")
        o.append(f"v_mul_f32 v{tB}, v{tA}, v{tB}")
        o.append(f"v_add_f32 v{tB}, {hx(1e-5)}, v{tB}")
        o.append(f"v_rsq_f32 v{tB}, v{tB}")
        o.append(f"v_mul_f32 v{tB}, v{tA}, v{tB}")
        return o

    def stats_write(self, items):
        p = self.p
        p("s_mov_b32 exec_lo, 1\ns_mov_b32 exec_hi, 1")
        for tA, tB, tadr in items:
            p(f"ds_write2st64_b32 v{tadr+1}, v{tA}, v{tB} offset1:1")
        p("s_mov_b64 exec, -1")

    def prologue(self):
        p = self.p
        p(f"""
s_cmp_lg_u32 s{sW}, 7
s_cbranch_scc1 L_nokvw
s_setprio 3
v_lshrrev_b32 v3, 4, v1
v_lshlrev_b32 v3, 8, v3
v_and_b32 v4, 15, v1
v_lshl_add_u32 v3, v4, 3, v3
v_add_u32 v3, {WKV}, v3
""")
        for s in range(16):
            for t in range(2):
                p(f"ds_read_b64_tr_b16 {vr(64+4*s+2*t,2)}, v3 offset:{s*1024+t*128}")
        p("L_nokvw:")
        for l in self.center_ops(0, 48, 49, 208, 50):
            p(l)
        self.stats_write([(48, 49, 50)])
        p("s_waitcnt lgkmcnt(0)\ns_barrier")
        self.stamp(2)
        p(f"s_add_u32 s{sN}, s{sN}, 0x9e3779b9")
        p(f"s_cmp_lg_u32 s{sW}, 7\ns_cbranch_scc1 L_nokv")
        self.kv_job()
        p("L_nokv:")
        p(f"s_cmp_ge_u32 s{sW}, 4\ns_cbranch_scc1 L_c_g\ns_waitcnt vmcnt(16)\ns_branch L_c_j\nL_c_g:\ns_waitcnt vmcnt(8)\nL_c_j:")
        ls = [self.center_ops(i, 48 + 4 * (i - 1), 49 + 4 * (i - 1), 208 + 16 * (i - 1), 50 + 4 * (i - 1)) for i in (1, 2, 3)]
        for l in self.merge(*ls):
            p(l)
        self.stats_write([(48, 49, 50), (52, 53, 54), (56, 57, 58)])
        p(f"s_cmp_ge_u32 s{sW}, 4\ns_cbranch_scc1 L_G")

    def kv_job(self):
        p = self.p
        p(f"""
v_and_b32 v4, 15, v1
v_lshrrev_b32 v5, 4, v1
s_mul_i32 s3, s{sTB}, {XSL}
v_mul_u32_u24 v3, {XS}, v4
v_lshl_add_u32 v3, v5, 4, v3
v_add_u32 v3, s3, v3
""")
        lq = Queue(p, "lgkmcnt", 15)
        for s in range(16):
            p(f"ds_read_b128 {vr(128+4*s,4)}, v3 offset:{s*64}")
            lq.issue(s)
        p(f"""
s_lshl_b32 s54, s{sTG}, 12
s_lshr_b32 s3, s{sTB}, 1
s_lshl_b32 s3, s3, 11
s_add_u32 s54, s54, s3
s_add_u32 s54, s54, {KV}
s_and_b32 s55, s{sTB}, 1
s_lshl_b32 s56, s{sTB}, 6
s_add_u32 s56, s56, {ST}
s_and_b32 s3, s{sCG}, 1
s_cmp_eq_u32 s3, 1
s_cbranch_scc1 L_vjob
v_lshl_add_u32 v7, v4, 2, s56
ds_read_b32 v52, v7
""")
        save = list(lq.q)
        lq.issue("r")
        for s in range(16):
            lq.wait(s)
            p(f"v_mfma_f32_16x16x32_bf16 v[48:51], {vr(64+4*s,4)}, {vr(128+4*s,4)}, {'0' if s == 0 else 'v[48:51]'}")
        p(f"""
v_and_b32 v7, 1, v5
v_lshlrev_b32 v7, 9, v7
v_lshl_add_u32 v7, v4, 4, v7
v_lshrrev_b32 v6, 1, v5
v_lshl_add_u32 v7, v6, 3, v7
s_lshl_b32 s55, s55, 8
s_add_u32 s54, s54, s55
s_waitcnt lgkmcnt(0)
v_mul_f32 v48, v52, v48
v_mul_f32 v49, v52, v49
v_mul_f32 v50, v52, v50
v_mul_f32 v51, v52, v51
v_cvt_pk_bf16_f32 v54, v48, v49
v_cvt_pk_bf16_f32 v55, v50, v51
buffer_store_dwordx2 v[54:55], v7, {srd(rWS)}, s54 offen sc1
v_dot2_f32_bf16 v57, v54, v54, 0
v_dot2_f32_bf16 v57, v55, v55, v57
v_mov_b32 v58, v57
v_permlane16_swap_b32 v57, v58
v_add_f32 v57, v57, v58
v_mov_b32 v58, v57
v_permlane32_swap_b32 v57, v58
v_add_f32 v57, v57, v58
s_branch L_kvpub
L_vjob:
v_lshl_add_u32 v7, v5, 4, s56
ds_read_b128 v[52:55], v7
""")
        lq.q = save + ["r"]
        for s in range(16):
            lq.wait(s)
            p(f"v_mfma_f32_16x16x32_bf16 v[48:51], {vr(128+4*s,4)}, {vr(64+4*s,4)}, {'0' if s == 0 else 'v[48:51]'}")
        p(f"""
v_lshrrev_b32 v7, 1, v5
v_lshlrev_b32 v7, 8, v7
v_lshl_add_u32 v7, v4, 4, v7
v_and_b32 v6, 1, v5
v_lshl_add_u32 v7, v6, 3, v7
s_lshl_b32 s55, s55, 9
s_add_u32 s54, s54, s55
s_add_u32 s54, s54, 1024
s_waitcnt lgkmcnt(0)
v_mul_f32 v48, v52, v48
v_mul_f32 v49, v53, v49
v_mul_f32 v50, v54, v50
v_mul_f32 v51, v55, v51
v_cvt_pk_bf16_f32 v54, v48, v49
v_cvt_pk_bf16_f32 v55, v50, v51
buffer_store_dwordx2 v[54:55], v7, {srd(rWS)}, s54 offen sc1
v_max3_f32 v57, |v48|, |v49|, |v50|
v_max_f32 v57, v57, |v51|
v_mov_b32 v58, v57
v_permlane16_swap_b32 v57, v58
v_max_f32 v57, v57, v58
v_mov_b32 v58, v57
v_permlane32_swap_b32 v57, v58
v_max_f32 v57, v57, v58
L_kvpub:
""")
        for c in ("quad_perm:[1,0,3,2]", "quad_perm:[2,3,0,1]", "row_half_mirror", "row_mirror"):
            p(f"v_max_u32_dpp v57, v57, v57 {c} row_mask:0xf bank_mask:0xf")
        p(f"""
v_mov_b32 v56, s{sN}
s_lshl_b32 s54, s{sTG}, 3
s_add_u32 s54, s54, s{sCG}
s_lshl_b32 s54, s54, 3
s_add_u32 s54, s54, {FKV}
v_mov_b32 v7, 0
s_waitcnt vmcnt(0)
s_mov_b64 exec, 1
buffer_store_dwordx2 v[56:57], v7, {srd(rWS)}, s54 offen sc1
s_mov_b64 exec, -1
s_setprio 0
""")
        self.stamp(3)

    def tr_addr32(self, dst, t0, t1, base_expr, nh_sgpr, perm):
        p = self.p
        p(f"""
v_lshrrev_b32 v{t0}, 1, v1
v_and_b32 v{t0}, 1, v{t0}
v_lshrrev_b32 v{t1}, 3, v1
v_and_b32 v{dst}, 2, v{t1}
v_or_b32 v{t0}, v{t0}, v{dst}
v_and_b32 v{t1}, 1, v{t1}
v_lshl_or_b32 v{t0}, v{t1}, 2, v{t0}
v_lshlrev_b32 v{t0}, 4, v{t0}
v_and_b32 v{t1}, 1, v1
v_lshl_or_b32 v{t0}, v{t1}, 3, v{t0}
v_bfe_u32 v{t1}, v1, 2, 2
v_lshl_or_b32 v{t0}, v{t1}, 7, v{t0}
v_lshrrev_b32 v{t1}, 5, v1
v_lshl_or_b32 v{t0}, v{t1}, {9 if perm else 10}, v{t0}
v_add_u32 v{dst}, {base_expr}, v{t0}
""")
        if nh_sgpr is not None:
            p(f"s_lshl_b32 s3, s{nh_sgpr}, 6\nv_xor_b32 v{dst}, s3, v{dst}")

    def a_wave(self):
        p = self.p
        q0, SA, SB, K0, V0, vI, vK, vV, o0 = 16, 48, 64, 80, 88, 104, 105, 106, 128
        p(f"""
s_and_b32 s56, s{sW}, 1
s_lshr_b32 s57, s{sW}, 1
v_and_b32 v5, 31, v1
s_lshl_b32 s3, s56, 5
v_add_u32 v5, s3, v5
v_mul_u32_u24 v3, {XS}, v5
v_lshrrev_b32 v6, 5, v1
v_lshl_add_u32 v3, v6, 4, v3
v_lshlrev_b32 v5, 2, v5
v_add_u32 v5, {ST}, v5
""")
        self.tr_addr32(4, 6, 7, str(WQ), 57, False)
        p("s_waitcnt vmcnt(0) lgkmcnt(0)\ns_barrier")
        self.stamp(4)
        p("s_setprio 2")
        lq = Queue(p, "lgkmcnt", 15)
        p("ds_read_b32 v8, v5")
        lq.issue("r")
        def rd(s):
            b = 16 + 8 * (s % 4)
            p(f"ds_read_b64_tr_b16 {vr(b,2)}, v4 offset:{s*2048}\nds_read_b64_tr_b16 {vr(b+2,2)}, v4 offset:{s*2048+512}\nds_read_b128 {vr(b+4,4)}, v3 offset:{s*32}")
            for _ in range(3):
                lq.issue(s)
        for s in range(3):
            rd(s)
        for s in range(32):
            if s + 3 < 32:
                rd(s + 3)
            lq.wait(s)
            b = 16 + 8 * (s % 4)
            p(f"v_mfma_f32_32x32x16_bf16 v[48:63], {vr(b,4)}, {vr(b+4,4)}, {'0' if s == 0 else 'v[48:63]'}")
        p(f"""
v_mul_f32 v8, {hx(0.25*LOG2E)}, v8
s_lshl_b32 s3, s57, 12
s_lshl_b32 s54, s56, 10
s_add_u32 s3, s3, s54
s_add_u32 s3, s3, {QX}
v_add_u32 v7, s3, v2
""")
        for i in range(6):
            p(f"v_mov_b32 v{o0+i}, 0")
        for i in range(16):
            p(f"v_mul_f32 v{48+i}, v8, v{48+i}")
        for i in range(8):
            p(f"v_cvt_pk_bf16_f32 v{64+i}, v{48+2*i}, v{49+2*i}")
        p("ds_write_b128 v7, v[64:67]\nds_write_b128 v7, v[68:71] offset:2048\ns_waitcnt lgkmcnt(0)")
        self.cnt_signal(0, 12, 13)
        self.stamp(5)
        for i in range(6, 128):
            p(f"v_mov_b32 v{o0+i}, 0")
        for i in range(8):
            p(f"v_mov_b32 v{SB+8+i}, 0")
        p(f"""
v_mov_b32 v{vI}, 0xdddddddd
v_mov_b32 v{vK}, v2
v_and_b32 v6, 15, v1
v_lshrrev_b32 v7, 5, v1
v_lshl_add_u32 v6, v7, 4, v6
v_lshlrev_b32 v6, 4, v6
v_add_u32 v{vV}, 1024, v6
v_and_b32 v6, 27, v1
v_cmp_eq_u32 vcc, 16, v6
v_mov_b32 v7, s{sONE}
v_cndmask_b32 v{V0}, 0, v7, vcc
""")
        for i in range(1, 16):
            p(f"v_mov_b32 v{V0+i}, v{V0}")
        for k in range(3):
            p(f"""
s_add_u32 s3, s{sJ}, {1+k}
s_and_b32 s3, s3, 3
s_mul_i32 s3, s3, 13824
s_add_u32 s3, s3, {OP + (2-k)*4608}
v_add_u32 v{107+k}, s3, v2
s_add_u32 s3, s3, 4096
v_lshl_add_u32 v{110+k}, v1, 2, s3
""")
        self.cnt_wait(0, 4, 12, 6, sleep=0)
        for k in range(4):
            p(f"""
s_add_u32 s3, s{sJ}, {1+k}
s_and_b32 s3, s3, 3
s_lshl_b32 s3, s3, 11
s_add_u32 s3, s3, {QX}
v_add_u32 v6, s3, v2
ds_read_b128 {vr(q0+8*k,4)}, v6
ds_read_b128 {vr(q0+8*k+4,4)}, v6 offset:1024
""")
        p("s_waitcnt lgkmcnt(0)")
        for r in range(4):
            for t in range(8):
                p(f"v_dot2_f32_bf16 v{48+t}, v{q0+4*t+r}, v{q0+4*t+r}, {'0' if r == 0 else f'v{48+t}'}")
        for t in range(0, 8, 2):
            p(f"v_permlane32_swap_b32 v{48+t}, v{49+t}")
        for t in range(0, 8, 2):
            p(f"v_add_f32 v{48+t}, v{48+t}, v{49+t}")
        p("v_max3_u32 v48, v48, v50, v52\nv_max_u32 v48, v48, v54")
        for c in ("quad_perm:[1,0,3,2]", "quad_perm:[2,3,0,1]", "row_half_mirror", "row_mirror"):
            p(f"v_max_u32_dpp v48, v48, v48 {c} row_mask:0xf bank_mask:0xf")
        p("""
v_mov_b32 v49, v48
v_permlane16_swap_b32 v48, v49
v_max_u32 v48, v48, v49
v_mov_b32 v49, v48
v_permlane32_swap_b32 v48, v49
v_max_u32 v48, v48, v49
""")
        self.stamp(6)
        l, d = self.lab("kw"), self.lab("kd")
        p(f"""
v_lshlrev_b32 v6, 5, v1
s_mov_b32 s56, {FKV}
s_lshl_b32 s57, s{sJ}, 15
s_add_u32 s57, s57, {KV}
s_mov_b32 s54, {SPIN}
{l}:
buffer_load_dwordx4 v[52:55], v6, {srd(rWS)}, s56 offen sc1
buffer_load_dwordx4 v[56:59], v6, {srd(rWS)}, s56 offen offset:16 sc1
s_waitcnt vmcnt(0)
v_xor_b32 v52, s{sN}, v52
v_xor_b32 v54, s{sN}, v54
v_xor_b32 v56, s{sN}, v56
v_xor_b32 v58, s{sN}, v58
v_or3_b32 v52, v52, v54, v56
v_or_b32 v52, v52, v58
v_cmp_ne_u32 vcc, 0, v52
s_cbranch_vccz {d}
s_sub_u32 s54, s54, 1
s_cmp_lg_u32 s54, 0
s_cbranch_scc1 {l}
{d}:
s_mov_b32 s68, 0x0000ffff
s_mov_b32 s69, 0x0000ffff
buffer_load_dwordx4 {vr(K0,4)}, v{vK}, {srd(rWS)}, s57 offen sc1
s_mov_b64 exec, s[68:69]
buffer_load_dwordx4 {vr(V0,4)}, v{vV}, {srd(rWS)}, s57 offen sc1
buffer_load_dwordx4 {vr(V0+4,4)}, v{vV}, {srd(rWS)}, s57 offen offset:512 sc1
s_mov_b64 exec, -1
s_or_b32 s3, s2, s{sW}
s_cmp_lg_u32 s3, 0
s_cbranch_scc1 L_noE
v_mov_b32 v6, s{sN}
v_mov_b32 v7, 0
s_mov_b64 exec, 1
buffer_store_dword v6, v7, {srd(rWS)}, 0 offen sc1
s_mov_b64 exec, -1
L_noE:
v_max_u32 v53, v53, v57
v_max_u32 v55, v55, v59
v_mul_f32 v53, v53, v48
v_cmp_nge_f32 vcc, {hx(4096.0)}, v53
v_mov_b32 v6, {hx(2.0**40)}
v_cmp_nge_f32 s[54:55], v6, v55
v_mov_b32 v6, {hx(2.0**-40)}
v_cmp_le_f32 s[58:59], v6, v55
s_or_b64 s[54:55], s[54:55], vcc
s_cmp_eq_u64 s[58:59], 0
s_cselect_b64 s[58:59], 1, 0
s_or_b64 s[54:55], s[54:55], s[58:59]
""")
        if self.o.get("force_slow"):
            p("s_branch L_slow")
        else:
            p("s_cbranch_scc1 L_slow")
        self.stamp(7)
        S = [SA, SB]
        def qk(dst, kb, t):
            return f"v_mfma_f32_32x32x16_bf16 {vr(dst,16)}, {vr(kb,4)}, {vr(q0+4*t,4)}, 0"
        def pv(t, vb, sb):
            return f"v_smfmac_f32_32x32x32_bf16 {vr(o0+16*t,16)}, {vr(vb,4)}, {vr(sb,8)}, v{vI}"
        def opw(t):
            k, e = t >> 1, t & 1
            w = [f"ds_write_b128 v{107+k}, {vr(o0+16*t,4)} offset:{2048*e}",
                 f"ds_write_b128 v{107+k}, {vr(o0+16*t+4,4)} offset:{2048*e+1024}"]
            if e:
                w.append(f"ds_write2st64_b32 v{110+k}, v{o0+16*(t-1)+8}, v{o0+16*t+8} offset1:1")
            return w
        def tile(pb, last=False):
            Kc, Kn = K0 + 4 * pb, K0 + 4 * (pb ^ 1)
            Vc, Vn = V0 + 8 * pb, V0 + 8 * (pb ^ 1)
            for t in range(8):
                Xb, Yb = S[t & 1], S[(t + 1) & 1]
                wr = opw(t - 2) if (last and t >= 2) else []
                for i in range(16):
                    p(f"v_exp_f32 v{Xb+i}, v{Xb+i}")
                    if i == 1:
                        p(pv((t - 1) & 7, (Vn if t == 0 else Vc) + 4, Yb + 8))
                    if t == 0 and not last:
                        if i == 2:
                            p(f"s_add_u32 s57, s57, 2048\nbuffer_load_dwordx4 {vr(Kn,4)}, v{vK}, {srd(rWS)}, s57 offen sc1")
                        if i == 6:
                            p(f"s_mov_b64 exec, s[68:69]\nbuffer_load_dwordx4 {vr(Vn,4)}, v{vV}, {srd(rWS)}, s57 offen sc1")
                            p(f"buffer_load_dwordx4 {vr(Vn+4,4)}, v{vV}, {srd(rWS)}, s57 offen offset:512 sc1\ns_mov_b64 exec, -1")
                    if i == 4:
                        if t < 7:
                            p(qk(Yb, Kc, t + 1))
                        elif not last:
                            p("s_waitcnt vmcnt(0)")
                            p(qk(Yb, Kn, 0))
                    if i == 9:
                        p(pv(t, Vc, Xb))
                    if wr and i in (3, 7, 11):
                        p(wr.pop(0))
        p("s_waitcnt vmcnt(0)")
        p(qk(SA, K0, 0))
        p(f"s_add_u32 s58, s57, {15*2048}")
        p(f"s_setprio {self.o.get('prioA', 1)}")
        p("s_nop 9")
        p(".p2align 6\nL_att:")
        tile(0)
        p("s_cmp_eq_u32 s57, s58\ns_cbranch_scc1 L_att_last")
        tile(1)
        p("s_branch L_att")
        p("L_att_last:")
        self.stamp(8)
        self.cnt_wait(2, 4, 12, 6)
        tile(1, last=True)
        p("s_nop 1")
        p(pv(7, V0 + 8 + 4, SB + 8))
        p("L_att_done:")
        p(f"""
s_mul_i32 s3, s{sJ}, 13824
s_add_u32 s3, s3, {OP}
v_add_u32 v3, s3, v2
s_add_u32 s3, s3, 4096
v_lshl_add_u32 v4, v1, 2, s3
s_lshl_b32 s56, s{sTG}, 16
s_lshl_b32 s3, s{sCG}, 2
s_add_u32 s57, s3, s{sJ}
s_lshl_b32 s3, s57, 11
s_add_u32 s56, s56, s3
s_add_u32 s56, s56, {OF}
s_waitcnt lgkmcnt(0)
s_barrier
""")
        self.stamp(9)
        lq = Queue(p, "lgkmcnt", 15)
        for k in range(3):
            b = 16 + 18 * k
            for e in range(4):
                p(f"ds_read_b128 {vr(b+4*e,4)}, v3 offset:{k*4608+e*1024}")
                lq.issue(k)
            p(f"ds_read2st64_b32 {vr(b+16,2)}, v4 offset0:{k*18} offset1:{k*18+1}")
            lq.issue(k)
        for k in range(3):
            b = 16 + 18 * k
            lq.wait(k)
            for e in range(2):
                p(f"v_add_f32 v{o0+16*(6+e)+8}, v{o0+16*(6+e)+8}, v{b+16+e}")
            if k == 2:
                for e in range(2):
                    p(f"v_rcp_f32 v{8+2*e}, v{o0+16*(6+e)+8}")
            for e in range(2):
                for i in range(0, 8, 2):
                    r = o0 + 16 * (6 + e) + i
                    p(f"v_pk_add_f32 {vr(r,2)}, {vr(r,2)}, {vr(b+8*e+i,2)}")
        for e in range(2):
            for i in range(0, 8, 2):
                r = o0 + 16 * (6 + e) + i
                p(f"v_pk_mul_f32 {vr(r,2)}, {vr(r,2)}, {vr(8+2*e,2)} op_sel_hi:[1,0]")
            for i in range(4):
                r = o0 + 16 * (6 + e) + 2 * i
                p(f"v_cvt_pk_bf16_f32 v{96+4*e+i}, v{r}, v{r+1}")
            p(f"buffer_store_dwordx4 {vr(96+4*e,4)}, v2, {srd(rWS)}, s56 offen offset:{1024*e} sc1")
        p(f"""
s_lshl_b32 s56, s{sTG}, 7
s_lshl_b32 s57, s57, 2
s_add_u32 s56, s56, s57
s_add_u32 s56, s56, {FO}
v_mov_b32 v6, s{sN}
v_mov_b32 v7, 0
s_waitcnt vmcnt(0)
s_mov_b64 exec, 1
buffer_store_dword v6, v7, {srd(rWS)}, s56 offen sc1
s_mov_b64 exec, -1
""")
        self.stamp(10)
        p("s_branch L_final")
        m0 = 113
        p(f"L_slow:\ns_waitcnt vmcnt(0)")
        for t in range(8):
            p(f"v_mov_b32 v{m0+t}, 0xff800000")
        p(f"s_mov_b32 s58, {KV}\nL_slow_max:\nbuffer_load_dwordx4 {vr(K0+4,4)}, v{vK}, {srd(rWS)}, s58 offen sc1\ns_waitcnt vmcnt(0)")
        for t in range(8):
            p(qk(SA, K0 + 4, t))
            for i in range(0, 16, 2):
                p(f"v_max3_f32 v{m0+t}, v{SA+i}, v{SA+i+1}, v{m0+t}")
        p(f"s_add_u32 s58, s58, 2048\ns_cmp_lt_u32 s58, {KV + 64*2048}\ns_cbranch_scc1 L_slow_max")
        for t in range(8):
            p(f"v_mov_b32 v6, v{m0+t}\nv_permlane32_swap_b32 v6, v{m0+t}\nv_max_f32 v{m0+t}, v6, v{m0+t}")
        p(f"s_add_u32 s58, s57, {16*2048}\nL_slow_pv:")
        p(f"""
buffer_load_dwordx4 {vr(K0,4)}, v{vK}, {srd(rWS)}, s57 offen sc1
s_mov_b64 exec, s[68:69]
buffer_load_dwordx4 {vr(V0,4)}, v{vV}, {srd(rWS)}, s57 offen sc1
buffer_load_dwordx4 {vr(V0+4,4)}, v{vV}, {srd(rWS)}, s57 offen offset:512 sc1
s_mov_b64 exec, -1
s_waitcnt vmcnt(0)
""")
        for t in range(8):
            p(qk(SA, K0, t))
            for i in range(16):
                p(f"v_sub_f32 v{SA+i}, v{SA+i}, v{m0+t}")
            for i in range(16):
                p(f"v_exp_f32 v{SA+i}, v{SA+i}")
            p(pv(t, V0, SA))
            p(pv(t, V0 + 4, SA + 8))
        p("s_add_u32 s57, s57, 2048\ns_cmp_lt_u32 s57, s58\ns_cbranch_scc1 L_slow_pv")
        self.cnt_wait(2, 4, 12, 6)
        for t in range(6):
            for w in opw(t):
                p(w)
        p("s_branch L_att_done")

    def g_wave(self):
        p = self.p
        p("L_G:\ns_waitcnt vmcnt(0)")
        for i in range(16):
            p(f"v_lshlrev_b32 v{16+2*i}, 16, v{192+i}\nv_and_b32 v{17+2*i}, 0xffff0000, v{192+i}")
        p(f"""
s_and_b32 s56, s{sJ}, 1
s_xor_b32 s57, s56, 1
v_and_b32 v5, 31, v1
v_lshrrev_b32 v6, 5, v1
s_lshl_b32 s3, s56, 5
v_add_u32 v7, s3, v5
v_mul_u32_u24 v3, {XS}, v7
v_lshl_add_u32 v3, v6, 4, v3
v_lshlrev_b32 v128, 2, v7
s_lshl_b32 s3, s57, 5
v_add_u32 v7, s3, v5
v_mul_u32_u24 v4, {XS}, v7
v_lshl_add_u32 v4, v6, 4, v4
v_lshlrev_b32 v129, 2, v7
v_add_u32 v128, {ST+256}, v128
v_add_u32 v129, {ST+256}, v129
s_lshl_b32 s63, s{sJ}, 14
s_add_u32 s63, s63, {WQ}
v_mul_u32_u24 v7, 2752, v15
v_lshl_add_u32 v7, v14, 4, v7
s_lshl_b32 s3, s59, 6
v_add_u32 v7, s3, v7
""")
        self.tr_addr32(5, 6, 8, "s63", 56, False)
        p("v_xor_b32 v6, 64, v5")
        p("s_waitcnt lgkmcnt(0)\ns_barrier")
        self.stamp(4)
        p("ds_read_b32 v10, v128\nds_read_b32 v14, v129")
        self.cnt_wait(0, 4, 12, 8)
        self.stamp(5)
        vq = Queue(p, "vmcnt", 63)
        lq = Queue(p, "lgkmcnt", 15)
        p(f"""
s_mov_b32 s54, 0
s_mul_i32 s55, s{sJ}, 22
s_cmp_eq_u32 s{sJ}, 3
s_cselect_b32 s55, 65, s55
s_lshl_b32 s67, s55, 11
s_lshl_b32 s55, s55, 14
""")
        def dma_w1(s):
            for i in range(2):
                p(f"s_add_u32 m0, s63, {(s % 8) * 2048 + i * 1024}\ns_nop 0\nbuffer_load_dwordx4 v7, {srd(rW1)}, s54 offen lds\ns_add_u32 s54, s54, {8*2752}")
                vq.issue(("w1", s))
        def dma_w2(i, base, slot):
            if i == 21:
                p(f"s_min_u32 s55, s55, {85*16384}")
            for h in range(2):
                p(f"s_add_u32 m0, s{base}, {slot * 2048 + h * 1024}\ns_nop 0\nbuffer_load_dwordx4 v9, {srd(rW2)}, s55 offen lds\ns_add_u32 s55, s55, 8192")
                vq.issue(("w2", i))
        def rd1(s):
            b = 96 + 16 * (s & 1)
            o = (s % 8) * 2048
            p(f"ds_read_b64_tr_b16 {vr(b,2)}, v5 offset:{o}\nds_read_b64_tr_b16 {vr(b+2,2)}, v5 offset:{o+512}")
            p(f"ds_read_b128 {vr(b+8,4)}, v3 offset:{s*32}\nds_read_b128 {vr(b+12,4)}, v4 offset:{s*32}")
            p(f"ds_read_b64_tr_b16 {vr(b+4,2)}, v6 offset:{o}\nds_read_b64_tr_b16 {vr(b+6,2)}, v6 offset:{o+512}")
            for _ in range(6):
                lq.issue(s)
        for s in range(8):
            dma_w1(s)
        vq.wait(("w1", 0))
        rd1(0)
        for s in range(32):
            if s + 1 < 32:
                vq.wait(("w1", s + 1))
                rd1(s + 1)
            lq.wait(s)
            if s + 8 < 32:
                dma_w1(s + 8)
            else:
                dma_w2(s + 8 - 32, 63, s % 8)
            b = 96 + 16 * (s & 1)
            c = lambda a: "0" if s == 0 else vr(a, 16)
            p(f"v_mfma_f32_32x32x16_bf16 v[48:63], {vr(b,4)}, {vr(b+8,4)}, {c(48)}")
            p(f"v_mfma_f32_32x32x16_bf16 v[64:79], {vr(b,4)}, {vr(b+12,4)}, {c(64)}")
            p(f"v_mfma_f32_32x32x16_bf16 v[80:95], {vr(b+4,4)}, {vr(b+8,4)}, {c(80)}")
        self.stamp(6)
        c2 = 2 * math.sqrt(2 / math.pi) * LOG2E
        p(f"""
s_setprio {self.o.get('prioGv', 3)}
s_mov_b32 s48, {hx(-c2*0.044715)}
s_mov_b32 s49, {hx(-c2*0.044715)}
v_mov_b32 v128, {hx(-c2)}
v_mov_b32 v129, {hx(-c2)}
s_mul_i32 s54, s{sTG}, {HTG}
s_add_u32 s54, s54, {HF}
s_add_u32 s67, s67, s54
s_lshl_b32 s3, s61, 12
s_add_u32 s50, s54, s3
s_lshl_b32 s3, s56, 10
s_add_u32 s51, s50, s3
s_lshl_b32 s58, s62, 12
s_add_u32 s58, s58, s54
s_add_u32 s58, s58, s3
s_lshl_b32 s3, s57, 10
s_add_u32 s50, s50, s3
""")
        def gelu_pair(acc, bias, rr, t, out):
            return [
                f"v_pk_fma_f32 {vr(acc,2)}, {vr(acc,2)}, {vr(rr,2)}, {vr(bias,2)} op_sel_hi:[1,0,1]",
                f"v_pk_mul_f32 {vr(t,2)}, {vr(acc,2)}, {vr(acc,2)}",
                f"v_pk_fma_f32 {vr(t,2)}, {vr(t,2)}, s[48:49], v[128:129]",
                f"v_pk_mul_f32 {vr(t,2)}, {vr(t,2)}, {vr(acc,2)}",
                f"v_exp_f32 v{t}, v{t}", f"v_exp_f32 v{t+1}, v{t+1}",
                f"v_pk_add_f32 {vr(t,2)}, {vr(t,2)}, 1.0 op_sel_hi:[1,0]",
                f"v_rcp_f32 v{t}, v{t}", f"v_rcp_f32 v{t+1}, v{t+1}",
                f"v_pk_mul_f32 {vr(acc,2)}, {vr(acc,2)}, {vr(t,2)}",
                f"v_cvt_pk_bf16_f32 v{out}, v{acc}, v{acc+1}"]
        for ti, (acc, bias, rr, so) in enumerate(((48, 16, 10, 51), (64, 16, 14, 50), (80, 32, 10, 58))):
            if ti == 2:
                p("s_cmp_eq_u32 s60, 0\ns_cbranch_scc1 L_nohalf")
            for e in range(2):
                ls = [gelu_pair(acc + 8 * e + 2 * k, bias + 8 * e + 2 * k, rr, 132 + 2 * k, 160 + 8 * ti + 4 * e + k) for k in range(4)]
                for l in self.merge(*ls):
                    p(l)
                p(f"buffer_store_dwordx4 {vr(160+8*ti+4*e,4)}, v2, {srd(rWS)}, s{so} offen offset:{2048*e} sc1")
        p(f"""
L_nohalf:
s_setprio 0
s_lshl_b32 s56, s{sTG}, 7
s_add_u32 s56, s56, {FH}
s_lshl_b32 s3, s{sCG}, 2
s_add_u32 s3, s3, s{sJ}
s_lshl_b32 s3, s3, 2
s_add_u32 s57, s56, s3
v_mov_b32 v16, s{sN}
v_mov_b32 v17, 0
v_and_b32 v18, 31, v1
v_lshlrev_b32 v18, 2, v18
s_mul_i32 s62, s{sJ}, {XSL}
""")
        self.tr_addr32(5, 6, 8, "s63", None, True)
        p(f"""
v_xor_b32 v6, 64, v5
s_sub_u32 s3, s62, s63
v_add_u32 v3, s3, v5
v_add_u32 v4, s3, v6
v_and_b32 v7, 6, v15
v_and_b32 v8, 7, v1
v_xor_b32 v7, v7, v8
v_lshlrev_b32 v7, 4, v7
v_lshl_add_u32 v7, v15, 10, v7
s_lshl_b32 s3, s{sCG}, 7
v_add_u32 v7, s3, v7
s_lshl_b32 s61, s{sJ}, 17
s_waitcnt vmcnt(0)
s_mov_b64 exec, 1
buffer_store_dword v16, v17, {srd(rWS)}, s57 offen sc1
s_mov_b64 exec, -1
""")
        vq.q = []
        self.stamp(7)
        p(f"s_add_u32 s58, s54, {85*2048}")
        self.flag_wait(18, 56, 19, sleep=2)
        self.stamp(8)
        HD = 8
        def ld_h(i):
            if i == 21:
                p("s_min_u32 s67, s67, s58")
            b = 128 + 8 * (i % HD)
            p(f"buffer_load_dwordx4 {vr(b,4)}, v2, {srd(rWS)}, s67 offen sc1\nbuffer_load_dwordx4 {vr(b+4,4)}, v2, {srd(rWS)}, s67 offen offset:1024 sc1\ns_add_u32 s67, s67, 2048")
            vq.issue(("h", i)); vq.issue(("h", i))
        def dma_wo(i):
            p(f"s_add_u32 m0, s63, {i * 1024}\ns_nop 0\nbuffer_load_dwordx4 v7, {srd(rWO)}, s61 offen lds\ns_add_u32 s61, s61, 8192")
            vq.issue(("wo", i))
        def rd2(i):
            b = 112 + 8 * (i & 1)
            a0, a1 = (5, 6) if i < 8 else (3, 4)
            o = (i % 8) * 2048
            p(f"ds_read_b64_tr_b16 {vr(b,2)}, v{a0} offset:{o}\nds_read_b64_tr_b16 {vr(b+2,2)}, v{a0} offset:{o+1024}")
            p(f"ds_read_b64_tr_b16 {vr(b+4,2)}, v{a1} offset:{o}\nds_read_b64_tr_b16 {vr(b+6,2)}, v{a1} offset:{o+1024}")
            for _ in range(4):
                lq.issue(i)
        for i in range(8):
            ld_h(i)
            dma_w2(8 + i, 62, i)
        rd2(0)
        for i in range(22):
            if i + 1 < 22:
                vq.wait(("w2", i + 1))
                rd2(i + 1)
            vq.wait(("h", i))
            lq.wait(i)
            if i == 21:
                p(f"s_cmp_ge_u32 s{sJ}, 2\ns_cbranch_scc1 L_skip21")
            b = 112 + 8 * (i & 1)
            h = 128 + 8 * (i % HD)
            for mh in range(2):
                for nb in range(2):
                    a = 48 + 16 * (2 * mh + nb)
                    p(f"v_mfma_f32_32x32x16_bf16 {vr(a,16)}, {vr(b+4*nb,4)}, {vr(h+4*mh,4)}, {'0' if i == 0 else vr(a,16)}")
            if i + HD < 22:
                ld_h(i + HD)
            if 8 <= i and i + 8 < 22:
                dma_w2(i + 8, 62, i % 8)
            if 7 <= i < 15:
                dma_wo(2 * (i - 7)); dma_wo(2 * (i - 7) + 1)
        p("L_skip21:")
        self.stamp(9)
        p(f"""
s_setprio {self.o.get('prioGv', 3)}
v_lshrrev_b32 v8, 4, v1
v_lshlrev_b32 v16, 3, v8
s_lshl_b32 s3, s{sCG}, 7
""")
        for nt in range(4):
            p(f"buffer_load_dwordx2 {vr(192+2*nt,2)}, v16, {srd(rB2)}, s3 offen offset:{32*nt}")
        p(f"""
v_and_b32 v3, 31, v1
v_and_b32 v4, 15, v1
v_lshrrev_b32 v5, 5, v1
v_xor_b32 v5, v5, v4
v_lshlrev_b32 v5, 4, v5
v_lshl_add_u32 v5, v3, 8, v5
v_add_u32 v5, s62, v5
""")
        for nb in range(2):
            for a in range(4):
                p(f"v_xor_b32 v{6 + (a & 1)}, {(8*nb+2*a) << 4}, v5")
                for mh in range(2):
                    p(f"ds_write_b128 v{6 + (a & 1)}, {vr(48+16*(2*mh+nb)+4*a,4)} offset:{8192*mh}")
        p(f"""
s_lshl_b32 s3, s{sJ}, 12
v_xor_b32 v5, v8, v4
v_lshlrev_b32 v5, 4, v5
v_lshl_add_u32 v5, v4, 8, v5
v_add_u32 v5, s3, v5
s_waitcnt vmcnt(0) lgkmcnt(0)
""")
        self.cnt_signal(1, 12, 13)
        for i in range(8):
            p(f"v_lshlrev_b32 v{16+2*i}, 16, v{192+i}\nv_and_b32 v{17+2*i}, 0xffff0000, v{192+i}")
        p(f"s_setprio 0")
        self.cnt_wait(1, 4, 12, 8)
        p(f"s_setprio {self.o.get('prioGv', 3)}")
        lq.q = []
        for nt in range(4):
            if nt:
                p(f"v_xor_b32 v6, {nt << 6}, v5")
            for kq in range(4):
                p(f"ds_read_b128 {vr(48+16*nt+4*kq,4)}, v{6 if nt else 5} offset:{kq*XSL}")
                lq.issue(nt)
        p(f"s_lshl_b32 s3, s{sJ}, 11\ns_add_u32 s3, s3, {GA}\nv_add_u32 v7, s3, v2\ns_mov_b32 s48, {hx(-LOG2E)}\ns_mov_b32 s49, {hx(-LOG2E)}")
        for nt in range(4):
            lq.wait(nt)
            z = 16 + 4 * nt
            def silu_pair(r, t):
                o = [f"v_pk_add_f32 {vr(r,2)}, {vr(r,2)}, {vr(48+16*nt+4*kq+(r-z),2)}" for kq in range(4)]
                return o + [f"v_pk_mul_f32 {vr(t,2)}, {vr(r,2)}, s[48:49]",
                            f"v_exp_f32 v{t}, v{t}", f"v_exp_f32 v{t+1}, v{t+1}",
                            f"v_pk_add_f32 {vr(t,2)}, {vr(t,2)}, 1.0 op_sel_hi:[1,0]",
                            f"v_rcp_f32 v{t}, v{t}", f"v_rcp_f32 v{t+1}, v{t+1}",
                            f"v_pk_mul_f32 {vr(r,2)}, {vr(r,2)}, {vr(t,2)}"]
            for l in self.merge(silu_pair(z, 32), silu_pair(z + 2, 34)):
                p(l)
            p(f"ds_write_b128 v7, {vr(z,4)} offset:{(nt >> 1) * 8192 + (nt & 1) * 1024}")
            lq.issue("w")
        p("s_waitcnt lgkmcnt(0)")
        self.cnt_signal(2, 12, 13)
        p("s_setprio 0")
        self.stamp(10)
        p("s_barrier")

    def final(self):
        p = self.p
        p("L_final:")
        p(f"""
s_lshr_b32 s56, s{sW}, 2
v_lshrrev_b32 v3, 4, v1
v_and_b32 v4, 15, v1
s_lshl_b32 s3, s{sJ}, 4
v_add_u32 v5, s3, v4
v_lshlrev_b32 v5, 10, v5
v_lshl_add_u32 v5, v3, 3, v5
s_lshl_b32 s57, s{sTG}, 16
s_lshl_b32 s3, s{sCG}, 7
s_add_u32 s57, s57, s3
s_lshl_b32 s3, s56, 6
s_add_u32 s57, s57, s3
buffer_load_dwordx2 v[16:17], v5, {srd(rX)}, s57 offen
buffer_load_dwordx2 v[18:19], v5, {srd(rX)}, s57 offen offset:32
s_lshl_b32 s3, s{sW}, 11
s_add_u32 s3, s3, {GA}
v_add_u32 v6, s3, v2
ds_read_b128 v[20:23], v6
ds_read_b128 v[24:27], v6 offset:1024
v_bfe_u32 v8, v1, 2, 3
v_lshlrev_b32 v9, 7, v8
v_lshrrev_b32 v8, 1, v8
s_lshl_b32 s3, s56, 1
v_xor_b32 v8, s3, v8
v_lshl_or_b32 v9, v8, 5, v9
v_and_b32 v8, 3, v1
v_lshl_or_b32 v9, v8, 3, v9
v_lshrrev_b32 v8, 5, v1
v_lshl_or_b32 v9, v8, 11, v9
s_lshl_b32 s3, s56, 15
s_add_u32 s3, s3, {WQ}
v_add_u32 v8, s3, v9
v_xor_b32 v9, 32, v8
v_xor_b32 v10, 64, v8
v_xor_b32 v11, 96, v8
""")
        for s in range(8):
            for nt in range(4):
                for t in range(2):
                    p(f"ds_read_b64_tr_b16 {vr(128+16*s+4*nt+2*t,2)}, v{8+nt} offset:{s*4096+t*1024}")
        p(f"""
s_lshl_b32 s3, s56, 4
v_add_u32 v14, s3, v4
v_lshlrev_b32 v14, 2, v14
s_lshl_b32 s58, s{sTG}, 7
s_add_u32 s58, s58, {FO}
v_and_b32 v7, 1, v3
v_lshlrev_b32 v7, 9, v7
v_lshrrev_b32 v15, 1, v3
v_lshl_add_u32 v7, v15, 11, v7
v_lshl_add_u32 v7, v4, 4, v7
s_lshl_b32 s59, s{sTG}, 16
s_lshl_b32 s3, s56, 15
s_add_u32 s59, s59, s3
s_lshr_b32 s3, s{sJ}, 1
s_lshl_b32 s3, s3, 10
s_add_u32 s59, s59, s3
s_and_b32 s3, s{sJ}, 1
s_lshl_b32 s3, s3, 8
s_add_u32 s59, s59, s3
s_add_u32 s59, s59, {OF}
""")
        self.flag_wait(14, 58, 15, sleep=0)
        self.stamp(11)
        vq = Queue(p, "vmcnt", 63)
        for s in range(8):
            p(f"buffer_load_dwordx4 {vr(64+4*s,4)}, v7, {srd(rWS)}, s59 offen sc1\ns_add_u32 s59, s59, 4096")
            vq.issue(s)
        for i in range(4):
            p(f"v_lshlrev_b32 v{28+2*i}, 16, v{16+i}\nv_and_b32 v{29+2*i}, 0xffff0000, v{16+i}")
        p("s_waitcnt lgkmcnt(0)")
        for s in range(8):
            vq.wait(s)
            for nt in (2, 3, 0, 1):
                p(f"v_mfma_f32_16x16x32_bf16 {vr(48+4*nt,4)}, {vr(128+16*s+4*nt,4)}, {vr(64+4*s,4)}, {'0' if s == 0 else vr(48+4*nt,4)}")
        p(f"""
s_xor_b32 s3, s{sW}, 4
s_lshl_b32 s3, s3, 11
s_add_u32 s3, s3, {GA}
v_add_u32 v7, s3, v2
ds_write_b128 v6, v[56:59]
ds_write_b128 v6, v[60:63] offset:1024
s_waitcnt lgkmcnt(0)
s_barrier
ds_read_b128 v[56:59], v7
ds_read_b128 v[60:63], v7 offset:1024
""")
        for e in range(2):
            p(f"s_waitcnt lgkmcnt({1-e})")
            for i in range(0, 4, 2):
                r = 48 + 4 * e + i
                p(f"v_pk_add_f32 {vr(r,2)}, {vr(r,2)}, {vr(r+8,2)}")
            for i in range(0, 4, 2):
                r = 48 + 4 * e + i
                p(f"v_pk_fma_f32 {vr(r,2)}, {vr(r,2)}, {vr(20+4*e+i,2)}, {vr(28+4*e+i,2)}")
            for i in range(2):
                p(f"v_cvt_pk_bf16_f32 v{16+2*e+i}, v{48+4*e+2*i}, v{49+4*e+2*i}")
            p(f"buffer_store_dwordx2 {vr(16+2*e,2)}, v5, {srd(rOUT)}, s57 offen offset:{32*e}")
        if self.stamps:
            p("s_waitcnt vmcnt(0)")
            self.stamp(12)
            p(f"s_lshl_b32 s3, s2, 3\ns_add_u32 s3, s3, s{sW}\ns_lshl_b32 s3, s3, 7\ns_add_u32 s3, s3, {STAMP}\nv_mov_b32 v7, 0")
            for i in range(0, 24, 4):
                for k in range(4):
                    p(f"v_mov_b32 v{16+k}, s{72+i+k}")
                p(f"buffer_store_dwordx4 v[16:19], v7, {srd(rWS)}, s3 offen offset:{4*i}")
        if self.o.get("xcc"):
            p("s_getreg_b32 s90, hwreg(HW_REG_XCC_ID, 0, 4)\ns_and_b32 s91, s2, 7\ns_sub_u32 s90, s90, s91\ns_and_b32 s90, s90, 7")
            p("s_load_dwordx2 s[56:57], s[0:1], 88\ns_waitcnt lgkmcnt(0)\ns_mov_b32 s58, 256\ns_mov_b32 s59, 0x20000\ns_lshl_b32 s90, s90, 2\nv_mov_b32 v7, s90\nv_mov_b32 v8, 1")
            p("s_mov_b64 exec, 1\nbuffer_atomic_add v8, v7, s[56:59], 0 offen sc0\ns_waitcnt vmcnt(0)\nv_readfirstlane_b32 s90, v8\ns_mov_b64 exec, -1")
            p("s_cmp_lt_u32 s90, 1500\ns_cbranch_scc1 L_exit")
        if self.o.get("fix") or self.o.get("xcc"):
            p(f"s_waitcnt vmcnt(0)\nL_fix:\ns_memrealtime s[94:95]\ns_waitcnt lgkmcnt(0)\ns_sub_u32 s94, s94, s92\ns_cmp_lt_u32 s94, 10000\ns_cbranch_scc1 L_fix")
        p("L_exit:\ns_endpgm\nL_code_end:")

    def build(self, verbose=False):
        if self.stamps:
            for i in range(16):
                pass
        self.entry()
        self.prologue()
        self.a_wave()
        self.g_wave()
        self.final()
        ins = self.p.fix_hazards(verbose)
        head = open(f"cdna_kernels/{NAME}.s.ref").read().split("; Override launch")[0]
        return (head + f"; @launch grid=(256,1,1) block=(512,1,1) lds={LDS_BYTES}\n"
                + f""".amdgcn_target "amdgcn-amd-amdhsa--gfx950"
.text
.globl {NAME}_kernel
.p2align 8
.type {NAME}_kernel,@function
{NAME}_kernel:
""" + self.p.text() + f""".section .rodata,"a"
.p2align 6
.amdhsa_kernel {NAME}_kernel
  .amdhsa_next_free_vgpr 256
  .amdhsa_next_free_sgpr 102
  .amdhsa_accum_offset 256
  .amdhsa_group_segment_fixed_size 0
  .amdhsa_kernarg_size 104
  .amdhsa_user_sgpr_count 2
  .amdhsa_user_sgpr_kernarg_segment_ptr 1
  .amdhsa_system_sgpr_workgroup_id_x 1
  .amdhsa_float_denorm_mode_32 3
.end_amdhsa_kernel
""")


if __name__ == "__main__":
    out = sys.argv[1]
    opts = {}
    stamps = False
    for a in sys.argv[2:]:
        if a == "stamps":
            stamps = True
        elif a == "-v":
            opts["v"] = 1
        else:
            k, v = a.split("=")
            opts[k] = int(v)
    open(out, "w").write(Gen(stamps, opts).build(bool(opts.get("v"))))
```

```python
import sys, struct, math
from asmlib import Prog, Queue

NAME = "recurrent_scan__grouped_kv_mqa__mixer_channel_mlp__prompt"

def f2u(x):
    return struct.unpack("<I", struct.pack("<f", x))[0]
def hx(x):
    return f"0x{f2u(x):08x}"

X = 0; XS = 1040; XSL = 16640
WQ = 66560
WKV = 132096; GA = WKV
QX = 148480
ST = 156672
CNT = 157184
LDS_BYTES = 157696
OP = X; GP = X
FKV = 0x1000; FH = 0x2000; FO = 0x3000
KV = 0x10000; OF = 0x40000; HF = 0x240000; HTG = 86 * 2048
STAMP = 0x800000
WS_RANGE = 0x1000000
rX, rWS, rWQ, rWKV, rW1, rW2, rWO, rB1, rB2, rOUT = 4, 8, 12, 16, 20, 24, 28, 32, 36, 40
sW, sTG, sCG, sN, sTB, sJ = 44, 45, 46, 47, 52, 53
sONE, sLO, sHI = 64, 65, 66
sXCC, sSAME = 100, 101
srd = lambda r: f"s[{r}:{r+3}]"
vr = lambda a, n: f"v[{a}:{a+n-1}]"
LOG2E = 1.4426950408889634
SPIN = 1 << 20


class Gen:
    def __init__(self, stamps=False, opts=None):
        self.p = Prog()
        self.stamps = stamps
        self.o = opts or {}
        self.uid = 0

    def lab(self, s):
        self.uid += 1
        return f"L_{s}_{self.uid}"

    def stamp(self, i):
        if self.stamps:
            self.p(f"s_waitcnt lgkmcnt(0)\ns_memrealtime s[70:71]\ns_waitcnt lgkmcnt(0)\ns_mov_b32 s{72+i}, s70")
            k = {1: 17, 2: 18, 4: 19, 7: 20, 8: 21, 9: 22, 12: 23}.get(i)
            if k:
                self.p(f"s_memtime s[70:71]\ns_waitcnt lgkmcnt(0)\ns_mov_b32 s{72+k}, s70")

    def cnt_signal(self, k, vaddr, vone):
        self.p(f"s_mov_b64 exec, 1\nds_add_u32 v{vaddr}, v{vone} offset:{4*k}\ns_mov_b64 exec, -1")

    def cnt_wait(self, k, target, vaddr, vt, sleep=1):
        p = self.p
        l, d = self.lab("cw"), self.lab("cd")
        p(f"s_mov_b32 s54, {SPIN}\n{l}:\nds_read_b32 v{vt}, v{vaddr} offset:{4*k}\ns_waitcnt lgkmcnt(0)")
        p(f"v_readfirstlane_b32 s55, v{vt}\ns_cmp_ge_u32 s55, {target}\ns_cbranch_scc1 {d}")
        if sleep:
            p(f"s_sleep {sleep}")
        p(f"s_sub_u32 s54, s54, 1\ns_cmp_lg_u32 s54, 0\ns_cbranch_scc1 {l}\n{d}:")

    def flag_wait(self, vaddr, soff, vt, sleep=1):
        p = self.p
        l, d = self.lab("fw"), self.lab("fd")
        p(f"s_mov_b32 s54, {SPIN}\n{l}:\nbuffer_load_dword v{vt}, v{vaddr}, {srd(rWS)}, s{soff} offen sc1\ns_waitcnt vmcnt(0)")
        p(f"v_cmp_ne_u32 vcc, s{sN}, v{vt}\ns_cbranch_vccz {d}")
        if sleep:
            p(f"s_sleep {sleep}")
        p(f"s_sub_u32 s54, s54, 1\ns_cmp_lg_u32 s54, 0\ns_cbranch_scc1 {l}\n{d}:")

    @staticmethod
    def merge(*lists):
        out = []
        n = max(len(l) for l in lists)
        for i in range(n):
            for l in lists:
                if i < len(l):
                    out.append(l[i])
        return out

    def entry(self):
        p = self.p
        if self.stamps:
            p("s_memrealtime s[70:71]\ns_memtime s[88:89]")
        if self.o.get("fix"):
            p("s_memrealtime s[92:93]")
        p(f"""
s_load_dwordx2 s[{rX}:{rX+1}], s[0:1], 0
s_load_dwordx4 s[48:51], s[0:1], 16
s_load_dwordx2 s[{rWS}:{rWS+1}], s[0:1], 96
s_load_dwordx2 s[{rWQ}:{rWQ+1}], s[0:1], 8
s_cmp_ge_u32 s2, 256
s_cbranch_scc1 L_exit
s_getpc_b64 s[54:55]
L_pc:
v_lshlrev_b32 v3, 6, v0
v_min_u32 v3, L_code_end-L_pc-4, v3
v_mov_b32 v5, s55
v_add_co_u32 v4, vcc, s54, v3
v_lshrrev_b32 v7, 6, v0
v_and_b32 v1, 63, v0
v_addc_co_u32 v5, vcc, 0, v5, vcc
v_readfirstlane_b32 s{sW}, v7
global_load_dword v6, v[4:5], off
s_load_dwordx2 s[{rW1}:{rW1+1}], s[0:1], 48
s_load_dwordx2 s[{rB1}:{rB1+1}], s[0:1], 56
s_load_dwordx2 s[{rW2}:{rW2+1}], s[0:1], 64
s_load_dwordx2 s[{rB2}:{rB2+1}], s[0:1], 72
s_load_dwordx2 s[{rOUT}:{rOUT+1}], s[0:1], 80
s_load_dwordx2 s[{rWO}:{rWO+1}], s[0:1], 32
s_and_b32 s3, s2, 7
s_lshr_b32 s54, s2, 3
s_and_b32 s{sCG}, s54, 7
s_lshr_b32 s54, s54, 3
s_lshl_b32 s3, s3, 2
s_add_u32 s{sTG}, s3, s54
s_lshr_b32 s{sTB}, s{sCG}, 1
s_and_b32 s{sJ}, s{sW}, 3
v_lshlrev_b32 v2, 4, v1
v_and_b32 v8, 32, v1
s_lshl_b32 s54, s{sW}, 11
v_lshl_add_u32 v8, v8, 4, v2
v_add_u32 v8, s54, v8
s_mov_b32 s{rX+2}, 2097152
s_mov_b32 s{rX+3}, 0x20000
s_mov_b32 s{rWKV+2}, 16384
s_mov_b32 s{rWKV+3}, 0x20000
s_lshl_b32 s56, s{sTG}, 16
s_lshl_b32 s57, s{sTB}, 14
s_add_u32 m0, s54, {WKV}
s_add_u32 s58, s56, s57
s_and_b32 s3, s{sCG}, 1
s_cmp_eq_u32 s3, 0
s_waitcnt lgkmcnt(0)
s_cselect_b32 s{rWKV}, s48, s50
s_cselect_b32 s{rWKV+1}, s49, s51
""")
        if self.stamps:
            p("s_mov_b32 s72, s70")
        p(f"""
buffer_load_dwordx4 v[16:19], v8, {srd(rX)}, s58 offen
buffer_load_dwordx4 v[20:23], v8, {srd(rX)}, s58 offen offset:512
buffer_load_dwordx4 v2, {srd(rWKV)}, s54 offen lds
buffer_load_dwordx4 v2, {srd(rWKV)}, s54 offen offset:1024 lds
s_load_dword s{sN}, s[{rWS}:{rWS+1}], 0
s_getreg_b32 s{sXCC}, hwreg(HW_REG_XCC_ID, 0, 4)
""")
        for r, n in ((rWS, WS_RANGE), (rWQ, 524288), (rW1, 512 * 2752), (rW2, 1376 * 1024), (rWO, 524288),
                     (rB1, 2752), (rB2, 1024), (rOUT, 2097152)):
            p(f"s_mov_b32 s{r+2}, {n}\ns_mov_b32 s{r+3}, 0x20000")
        p(f"s_mov_b32 s{sONE}, 0x3f803f80\ns_mov_b32 s{sLO}, 0x00003f80\ns_mov_b32 s{sHI}, 0x3f800000")
        p(f"""
v_lshrrev_b32 v3, 2, v1
v_and_b32 v3, 4, v3
v_and_b32 v4, 7, v1
v_xor_b32 v14, v3, v4
v_lshrrev_b32 v15, 3, v1
v_lshlrev_b32 v9, 10, v15
v_lshl_add_u32 v9, v14, 4, v9
s_lshl_b32 s3, s{sCG}, 7
v_add_u32 v9, s3, v9
v_lshrrev_b32 v3, 5, v1
s_lshl_b32 s3, s{sW}, 1
v_add_u32 v3, s3, v3
v_mul_u32_u24 v10, {XS}, v3
v_and_b32 v4, 31, v1
v_lshl_add_u32 v10, v4, 4, v10
v_lshlrev_b32 v11, 2, v3
v_add_u32 v11, {ST}, v11
v_mov_b32 v12, {CNT}
v_mov_b32 v13, 1
v_mov_b32 v4, 0
v_mov_b32 v5, 0
s_mov_b64 exec, 1
ds_write_b64 v12, v[4:5]
ds_write_b64 v12, v[4:5] offset:8
s_mov_b64 exec, -1
""")
        for i in (1, 2, 3):
            p(f"""
s_add_u32 s57, s57, 16384
s_and_b32 s57, s57, 0xffff
s_add_u32 s58, s56, s57
buffer_load_dwordx4 {vr(16+8*i,4)}, v8, {srd(rX)}, s58 offen
buffer_load_dwordx4 {vr(20+8*i,4)}, v8, {srd(rX)}, s58 offen offset:512
""")
        p(f"s_cmp_ge_u32 s{sW}, 4\ns_cbranch_scc1 L_G")

    def center_ops(self, i, tA, tB, tmp, tadr):
        a = 16 + 8 * i
        o = []
        for k in range(8):
            o.append(f"v_dot2_f32_bf16 v{tA}, v{a+k}, s{sONE}, {'0' if k == 0 else f'v{tA}'}")
            o.append(f"v_dot2_f32_bf16 v{tB}, v{a+k}, v{a+k}, {'0' if k == 0 else f'v{tB}'}")
        o.append(f"s_add_u32 s{48+i}, s{sTB}, {i}")
        o.append(f"s_and_b32 s{48+i}, s{48+i}, 3")
        o.append(f"s_mul_i32 s{96+i}, s{48+i}, {XSL}")
        o.append(f"v_permlane16_swap_b32 v{tA}, v{tB}")
        o.append(f"v_add_f32 v{tA}, v{tA}, v{tB}")
        o.append(f"v_add_u32 v{tadr}, s{96+i}, v10")
        o.append(f"s_lshl_b32 s{48+i}, s{48+i}, 6")
        for c in ("quad_perm:[1,0,3,2]", "quad_perm:[2,3,0,1]", "row_half_mirror", "row_mirror"):
            o.append(f"v_add_f32_dpp v{tA}, v{tA}, v{tA} {c} row_mask:0xf bank_mask:0xf")
        o.append(f"v_mov_b32 v{tB}, v{tA}")
        o.append(f"v_add_u32 v{tadr+1}, s{48+i}, v11")
        o.append(f"v_permlane16_swap_b32 v{tA}, v{tB}")
        o.append(f"v_mul_f32 v{tA}, {hx(-1.0/512)}, v{tA}")
        o.append(f"v_mul_f32 v{tB}, {hx(1.0/512)}, v{tB}")
        for k in range(8):
            o.append(f"v_dot2_f32_bf16 v{tmp+2*k}, v{a+k}, s{sLO}, v{tA}")
            o.append(f"v_dot2_f32_bf16 v{tmp+2*k+1}, v{a+k}, s{sHI}, v{tA}")
        o.append(f"v_fma_f32 v{tB}, -v{tA}, v{tA}, v{tB}")
        o.append(f"v_max_f32 v{tB}, 0, v{tB}")
        o.append(f"v_add_f32 v{tA}, {hx(1e-5)}, v{tB}")
        for k in range(4):
            o.append(f"v_cvt_pk_bf16_f32 v{a+k}, v{tmp+2*k}, v{tmp+2*k+1}")
        o.append(f"v_rsq_f32 v{tA}, v{tA}")
        o.append(f"ds_write_b128 v{tadr}, {vr(a,4)}")
        for k in range(4, 8):
            o.append(f"v_cvt_pk_bf16_f32 v{a+k}, v{tmp+2*k}, v{tmp+2*k+1}")
        o.append(f"v_mul_f32 v{tB}, v{tA}, v{tB}")
        o.append(f"ds_write_b128 v{tadr}, {vr(a+4,4)} offset:512")
        o.append(f"v_mul_f32 v{tB}, v{tA}, v{tB}")
        o.append(f"v_add_f32 v{tB}, {hx(1e-5)}, v{tB}")
        o.append(f"v_rsq_f32 v{tB}, v{tB}")
        o.append(f"v_mul_f32 v{tB}, v{tA}, v{tB}")
        return o

    def stats_write(self, items):
        p = self.p
        p("s_mov_b32 exec_lo, 1\ns_mov_b32 exec_hi, 1")
        for tA, tB, tadr in items:
            p(f"ds_write2st64_b32 v{tadr+1}, v{tA}, v{tB} offset1:1")
        p("s_mov_b64 exec, -1")

    def batch0(self):
        p = self.p
        for l in self.center_ops(0, 48, 49, 64, 50):
            p(l)
        self.stats_write([(48, 49, 50)])
        p("s_waitcnt lgkmcnt(0)\ns_barrier")
        self.stamp(2)
        p(f"s_add_u32 s{sN}, s{sN}, 0x9e3779b9")

    def batch123_ops(self):
        ls = [self.center_ops(i, 48 + 4 * (i - 1), 49 + 4 * (i - 1), 64 + 16 * (i - 1), 50 + 4 * (i - 1)) for i in (1, 2, 3)]
        return self.merge(*ls)

    def dual_store(self, text):
        a, b = self.lab("ds"), self.lab("de")
        self.p(f"s_cmp_lg_u32 s{sSAME}, 0\ns_cbranch_scc1 {a}\n" + "\n".join(l + " sc1" for l in text) + f"\ns_branch {b}\n{a}:\n" + "\n".join(text) + f"\n{b}:")

    def kv_job(self):
        p = self.p
        WF, XF = 128, 192
        p(f"""
v_and_b32 v4, 15, v1
v_lshrrev_b32 v5, 4, v1
s_mul_i32 s3, s{sTB}, {XSL}
v_mul_u32_u24 v3, {XS}, v4
v_lshl_add_u32 v3, v5, 4, v3
v_add_u32 v3, s3, v3
""")
        lq = Queue(p, "lgkmcnt", 15)
        for s in range(16):
            p(f"ds_read_b128 {vr(XF+4*s,4)}, v3 offset:{s*64}")
            lq.issue(s)
        p(f"""
s_lshl_b32 s54, s{sTG}, 12
s_lshr_b32 s3, s{sTB}, 1
s_lshl_b32 s3, s3, 11
s_add_u32 s54, s54, s3
s_add_u32 s54, s54, {KV}
s_and_b32 s55, s{sTB}, 1
s_lshl_b32 s56, s{sTB}, 6
s_add_u32 s56, s56, {ST}
s_and_b32 s3, s{sCG}, 1
s_cmp_eq_u32 s3, 1
s_cbranch_scc1 L_vjob
v_lshl_add_u32 v7, v4, 2, s56
ds_read_b32 v52, v7
""")
        save = list(lq.q)
        lq.issue("r")
        for s in range(16):
            lq.wait(s)
            p(f"v_mfma_f32_16x16x32_bf16 v[48:51], {vr(WF+4*s,4)}, {vr(XF+4*s,4)}, {'0' if s == 0 else 'v[48:51]'}")
        p(f"""
v_and_b32 v7, 1, v5
v_lshlrev_b32 v7, 9, v7
v_lshl_add_u32 v7, v4, 4, v7
v_lshrrev_b32 v6, 1, v5
v_lshl_add_u32 v7, v6, 3, v7
s_lshl_b32 s55, s55, 8
s_add_u32 s54, s54, s55
s_waitcnt lgkmcnt(0)
v_mul_f32 v48, v52, v48
v_mul_f32 v49, v52, v49
v_mul_f32 v50, v52, v50
v_mul_f32 v51, v52, v51
v_cvt_pk_bf16_f32 v54, v48, v49
v_cvt_pk_bf16_f32 v55, v50, v51
buffer_store_dwordx2 v[54:55], v7, {srd(rWS)}, s54 offen sc1
v_dot2_f32_bf16 v57, v54, v54, 0
v_dot2_f32_bf16 v57, v55, v55, v57
v_mov_b32 v58, v57
v_permlane16_swap_b32 v57, v58
v_add_f32 v57, v57, v58
v_mov_b32 v58, v57
v_permlane32_swap_b32 v57, v58
v_add_f32 v57, v57, v58
s_branch L_kvpub
L_vjob:
v_lshl_add_u32 v7, v5, 4, s56
ds_read_b128 v[52:55], v7
""")
        lq.q = save + ["r"]
        for s in range(16):
            lq.wait(s)
            p(f"v_mfma_f32_16x16x32_bf16 v[48:51], {vr(XF+4*s,4)}, {vr(WF+4*s,4)}, {'0' if s == 0 else 'v[48:51]'}")
        p(f"""
v_lshrrev_b32 v7, 1, v5
v_lshlrev_b32 v7, 8, v7
v_lshl_add_u32 v7, v4, 4, v7
v_and_b32 v6, 1, v5
v_lshl_add_u32 v7, v6, 3, v7
s_lshl_b32 s55, s55, 9
s_add_u32 s54, s54, s55
s_add_u32 s54, s54, 1024
s_waitcnt lgkmcnt(0)
v_mul_f32 v48, v52, v48
v_mul_f32 v49, v53, v49
v_mul_f32 v50, v54, v50
v_mul_f32 v51, v55, v51
v_cvt_pk_bf16_f32 v54, v48, v49
v_cvt_pk_bf16_f32 v55, v50, v51
buffer_store_dwordx2 v[54:55], v7, {srd(rWS)}, s54 offen sc1
v_max3_f32 v57, |v48|, |v49|, |v50|
v_max_f32 v57, v57, |v51|
v_mov_b32 v58, v57
v_permlane16_swap_b32 v57, v58
v_max_f32 v57, v57, v58
v_mov_b32 v58, v57
v_permlane32_swap_b32 v57, v58
v_max_f32 v57, v57, v58
L_kvpub:
""")
        for c in ("quad_perm:[1,0,3,2]", "quad_perm:[2,3,0,1]", "row_half_mirror", "row_mirror"):
            p(f"v_max_u32_dpp v57, v57, v57 {c} row_mask:0xf bank_mask:0xf")
        p(f"""
v_add_u32 v57, 16, v57
v_and_b32 v57, -16, v57
v_or_b32 v61, s{sXCC}, v57
v_mov_b32 v60, s{sN}
s_lshl_b32 s58, s{sTG}, 3
s_add_u32 s58, s58, s{sCG}
s_lshl_b32 s58, s58, 3
s_add_u32 s58, s58, {FKV}
""")

    def kv_flag(self):
        self.p(f"""
s_waitcnt vmcnt(0)
s_mov_b64 exec, 1
buffer_store_dwordx2 v[60:61], v62, {srd(rWS)}, s58 offen sc1
s_mov_b64 exec, -1
s_setprio 0
""")
        self.stamp(3)

    def tr_addr32(self, dst, t0, t1, base_expr, nh_sgpr, perm):
        p = self.p
        p(f"""
v_lshrrev_b32 v{t0}, 1, v1
v_and_b32 v{t0}, 1, v{t0}
v_lshrrev_b32 v{t1}, 3, v1
v_and_b32 v{dst}, 2, v{t1}
v_or_b32 v{t0}, v{t0}, v{dst}
v_and_b32 v{t1}, 1, v{t1}
v_lshl_or_b32 v{t0}, v{t1}, 2, v{t0}
v_lshlrev_b32 v{t0}, 4, v{t0}
v_and_b32 v{t1}, 1, v1
v_lshl_or_b32 v{t0}, v{t1}, 3, v{t0}
v_bfe_u32 v{t1}, v1, 2, 2
v_lshl_or_b32 v{t0}, v{t1}, 7, v{t0}
v_lshrrev_b32 v{t1}, 5, v1
v_lshl_or_b32 v{t0}, v{t1}, {9 if perm else 10}, v{t0}
v_add_u32 v{dst}, {base_expr}, v{t0}
""")
        if nh_sgpr is not None:
            p(f"s_lshl_b32 s3, s{nh_sgpr}, 6\nv_xor_b32 v{dst}, s3, v{dst}")

    def a_wave(self):
        p = self.p
        q0, SA, SB, K0, V0, vI, vK, vV, o0 = 16, 48, 64, 80, 92, 116, 2, 117, 128
        for i in range(128):
            p(f"v_mov_b32 v{o0+i}, 0")
        p(f"""
s_and_b32 s56, s{sW}, 1
s_lshr_b32 s57, s{sW}, 1
v_and_b32 v5, 31, v1
s_lshl_b32 s3, s56, 5
v_add_u32 v5, s3, v5
v_mul_u32_u24 v3, {XS}, v5
v_lshrrev_b32 v7, 5, v1
v_lshl_add_u32 v3, v7, 4, v3
v_lshlrev_b32 v5, 2, v5
v_add_u32 v5, {ST}, v5
v_mov_b32 v{vI}, 0xdddddddd
v_and_b32 v8, 15, v1
v_lshl_add_u32 v8, v7, 4, v8
v_lshlrev_b32 v8, 4, v8
v_add_u32 v{vV}, 1024, v8
s_lshl_b32 s3, s57, 12
s_lshl_b32 s54, s56, 10
s_add_u32 s3, s3, s54
s_add_u32 s3, s3, {QX}
v_add_u32 v124, s3, v2
v_lshlrev_b32 v125, 5, v1
v_and_b32 v126, 7, v1
v_lshlrev_b32 v126, 3, v126
s_lshl_b32 s3, s{sTG}, 6
v_add_u32 v126, s3, v126
s_mov_b32 s68, 0x0000ffff
s_mov_b32 s69, 0x0000ffff
s_lshl_b32 s60, s{sW}, 16
s_lshl_b32 s61, s{sW}, 13
s_add_u32 s61, s61, {WQ}
""")
        self.tr_addr32(4, 7, 8, str(WQ), 57, False)
        for k in range(3):
            p(f"""
s_add_u32 s3, s{sJ}, {1+k}
s_and_b32 s3, s3, 3
s_mul_i32 s3, s3, 13824
s_add_u32 s3, s3, {OP + (2-k)*4608}
v_add_u32 v{118+k}, s3, v2
s_add_u32 s3, s3, 4096
v_lshl_add_u32 v{121+k}, v1, 2, s3
""")
        p("s_waitcnt vmcnt(6)\ns_barrier")
        self.stamp(1)
        self.batch0()
        def dma_wq(i):
            r = [f"s_mov_b32 m0, s61", f"s_add_u32 s61, s61, {1024 if i != 7 else 32768 - 7 * 1024}",
                 f"buffer_load_dwordx4 v9, {srd(rWQ)}, s60 offen lds", f"s_add_u32 s60, s60, {8192 if i != 7 else 262144 - 7 * 8192}"]
            return "\n".join(r)
        for i in range(4):
            p(dma_wq(i))
        p("s_waitcnt vmcnt(4)")
        ops = self.batch123_ops()
        nxt = 4
        for n, l in enumerate(ops):
            p(l)
            if n % 12 == 11 and nxt < 16:
                p(dma_wq(nxt)); nxt += 1
        assert nxt == 16
        self.stats_write([(48, 49, 50), (52, 53, 54), (56, 57, 58)])
        p(f"""
v_and_b32 v7, 27, v1
v_cmp_eq_u32 vcc, 16, v7
v_mov_b32 v7, s{sONE}
s_mov_b32 s56, {FKV}
v_cndmask_b32 v{V0}, 0, v7, vcc
""")
        for i in range(1, 24):
            p(f"v_mov_b32 v{V0+i}, v{V0}")
        p("s_waitcnt vmcnt(8) lgkmcnt(0)\ns_barrier")
        self.stamp(4)
        lq = Queue(p, "lgkmcnt", 15)
        p("ds_read_b32 v8, v5")
        lq.issue("r")
        def rd(s):
            b = 16 + 8 * (s % 4)
            p(f"ds_read_b64_tr_b16 {vr(b,2)}, v4 offset:{s*2048}\nds_read_b64_tr_b16 {vr(b+2,2)}, v4 offset:{s*2048+512}\nds_read_b128 {vr(b+4,4)}, v3 offset:{s*32}")
            for _ in range(3):
                lq.issue(s)
        poll = f"""
buffer_load_dwordx4 v[64:67], v125, {srd(rWS)}, s56 offen sc1
buffer_load_dwordx4 v[68:71], v125, {srd(rWS)}, s56 offen offset:16 sc1
buffer_load_dwordx2 v[72:73], v126, {srd(rWS)}, s56 offen sc1
"""
        for s in range(3):
            rd(s)
        for s in range(32):
            if s + 3 == 16:
                p("s_waitcnt vmcnt(0)\ns_barrier")
            if s == self.o.get("pollat", 20):
                p(poll)
            if s + 3 < 32:
                rd(s + 3)
            lq.wait(s)
            b = 16 + 8 * (s % 4)
            p(f"v_mfma_f32_32x32x16_bf16 v[48:63], {vr(b,4)}, {vr(b+4,4)}, {'0' if s == 0 else 'v[48:63]'}")
        p(f"""
v_mul_f32 v8, {hx(0.25*LOG2E)}, v8
s_lshl_b32 s57, s{sJ}, 15
s_add_u32 s57, s57, {KV}
s_add_u32 s58, s57, 2048
""")
        for k in range(4):
            p(f"s_add_u32 s3, s{sJ}, {1+k}\ns_and_b32 s3, s3, 3\ns_lshl_b32 s3, s3, 11\ns_add_u32 s3, s3, {QX}\nv_add_u32 v{(3,4,5,7)[k]}, s3, v2")
        for i in range(0, 16, 2):
            p(f"v_pk_mul_f32 {vr(48+i,2)}, {vr(48+i,2)}, v[8:9] op_sel_hi:[1,0]")
        for i in range(8):
            p(f"v_cvt_pk_bf16_f32 v{16+i}, v{48+2*i}, v{49+2*i}")
        p("ds_write_b128 v124, v[16:19]\nds_write_b128 v124, v[20:23] offset:2048")
        for r in range(4):
            for e in range(2):
                p(f"v_dot2_f32_bf16 v{48+e}, v{16+4*e+r}, v{16+4*e+r}, {'0' if r == 0 else f'v{48+e}'}")
        p("v_permlane32_swap_b32 v48, v49\nv_add_f32 v48, v48, v49\nds_max_u32 v12, v48 offset:4")
        self.cnt_signal(0, 12, 13)
        self.stamp(5)
        l, d = self.lab("kw"), self.lab("kd")
        p(f"""
s_mov_b32 s54, {SPIN}
{l}:
s_waitcnt vmcnt(0)
v_xor_b32 v64, s{sN}, v64
v_xor_b32 v66, s{sN}, v66
v_xor_b32 v68, s{sN}, v68
v_xor_b32 v70, s{sN}, v70
v_xor_b32 v72, s{sN}, v72
v_or3_b32 v64, v64, v66, v68
v_or3_b32 v64, v64, v70, v72
v_cmp_ne_u32 vcc, 0, v64
s_cbranch_vccz {d}
{poll}
s_sub_u32 s54, s54, 1
s_cmp_lg_u32 s54, 0
s_cbranch_scc1 {l}
s_waitcnt vmcnt(0)
{d}:
buffer_load_dwordx4 {vr(K0,4)}, v{vK}, {srd(rWS)}, s57 offen sc1
s_mov_b64 exec, s[68:69]
buffer_load_dwordx4 {vr(V0,4)}, v{vV}, {srd(rWS)}, s57 offen sc1
buffer_load_dwordx4 {vr(V0+4,4)}, v{vV}, {srd(rWS)}, s57 offen offset:512 sc1
buffer_load_dwordx4 {vr(V0+8,4)}, v{vV}, {srd(rWS)}, s58 offen sc1
buffer_load_dwordx4 {vr(V0+12,4)}, v{vV}, {srd(rWS)}, s58 offen offset:512 sc1
s_mov_b64 exec, -1
buffer_load_dwordx4 {vr(K0+4,4)}, v{vK}, {srd(rWS)}, s58 offen sc1
""")
        self.stamp(6)
        p(f"""
s_or_b32 s3, s2, s{sW}
s_cmp_lg_u32 s3, 0
s_cbranch_scc1 L_noE
v_mov_b32 v6, s{sN}
v_mov_b32 v8, 0
s_mov_b64 exec, 1
buffer_store_dword v6, v8, {srd(rWS)}, 0 offen sc1
s_mov_b64 exec, -1
s_waitcnt vmcnt(0)
L_noE:
v_max_u32 v65, v65, v69
v_max_u32 v67, v67, v71
v_and_b32 v73, 15, v73
v_cmp_ne_u32 vcc, s{sXCC}, v73
v_mov_b32 v6, {hx(2.0**40)}
v_cmp_nge_f32 s[60:61], v6, v67
s_cmp_eq_u64 vcc, 0
s_cselect_b32 s{sSAME}, {0 if self.o.get('nosame') else 1}, 0
v_mov_b32 v6, {hx(2.0**-40)}
v_cmp_le_f32 s[62:63], v6, v67
""")
        for i in range(8):
            p(f"v_mov_b32 v{SB+8+i}, 0")
        l, d = self.lab("qw"), self.lab("qd")
        p(f"""
s_mov_b32 s54, {SPIN}
{l}:
ds_read_b64 v[8:9], v12
s_waitcnt lgkmcnt(0)
v_readfirstlane_b32 s55, v8
s_cmp_ge_u32 s55, 4
s_cbranch_scc1 {d}
s_sub_u32 s54, s54, 1
s_cmp_lg_u32 s54, 0
s_cbranch_scc1 {l}
{d}:
""")
        for k in range(4):
            p(f"ds_read_b128 {vr(q0+8*k,4)}, v{(3,4,5,7)[k]}\nds_read_b128 {vr(q0+8*k+4,4)}, v{(3,4,5,7)[k]} offset:1024")
        p(f"""
v_mul_f32 v65, v65, v9
v_cmp_nge_f32 vcc, {hx(4096.0)}, v65
s_cmp_eq_u64 s[62:63], 0
s_cselect_b64 s[62:63], 1, 0
s_or_b64 s[60:61], s[60:61], s[62:63]
s_or_b64 s[60:61], s[60:61], vcc
s_waitcnt lgkmcnt(0)
""")
        if self.o.get("force_slow"):
            p("s_branch L_slow")
        else:
            p("s_cbranch_scc1 L_slow")
        self.stamp(7)
        S = [SA, SB]
        def qk(dst, kb, t):
            return f"v_mfma_f32_32x32x16_bf16 {vr(dst,16)}, {vr(kb,4)}, {vr(q0+4*t,4)}, 0"
        def pv(t, vb, sb):
            return f"v_smfmac_f32_32x32x32_bf16 {vr(o0+16*t,16)}, {vr(vb,4)}, {vr(sb,8)}, v{vI}"
        def opw(t):
            k, e = t >> 1, t & 1
            w = [f"ds_write_b128 v{118+k}, {vr(o0+16*t,4)} offset:{2048*e}",
                 f"ds_write_b128 v{118+k}, {vr(o0+16*t+4,4)} offset:{2048*e+1024}"]
            if e:
                w.append(f"ds_write2st64_b32 v{121+k}, v{o0+16*(t-1)+8}, v{o0+16*t+8} offset1:1")
            return w
        def tile(pb, last=False):
            Kc, Kn, Kp = K0 + 4 * pb, K0 + 4 * ((pb + 1) % 3), K0 + 4 * ((pb + 2) % 3)
            Vc, Vp = V0 + 8 * pb, V0 + 8 * ((pb + 2) % 3)
            for t in range(8):
                Xb, Yb = S[t & 1], S[(t + 1) & 1]
                wr = opw(t - 2) if (last and t >= 2) else []
                for i in range(16):
                    p(f"v_exp_f32 v{Xb+i}, v{Xb+i}")
                    if i == 1:
                        p(pv((t - 1) & 7, (Vp if t == 0 else Vc) + 4, Yb + 8))
                    if t == 0 and not last:
                        if i == 2:
                            p(f"s_add_u32 s58, s58, 2048\nbuffer_load_dwordx4 {vr(Kp,4)}, v{vK}, {srd(rWS)}, s58 offen sc1")
                        if i == 6:
                            p(f"s_mov_b64 exec, s[68:69]\nbuffer_load_dwordx4 {vr(Vp,4)}, v{vV}, {srd(rWS)}, s58 offen sc1")
                            p(f"buffer_load_dwordx4 {vr(Vp+4,4)}, v{vV}, {srd(rWS)}, s58 offen offset:512 sc1\ns_mov_b64 exec, -1")
                    if i == 4:
                        if t < 7:
                            p(qk(Yb, Kc, t + 1))
                        elif not last:
                            p("s_waitcnt vmcnt(3)")
                            p(qk(Yb, Kn, 0))
                    if i == 9:
                        p(pv(t, Vc, Xb))
                    if wr and i in (3, 7, 11):
                        p(wr.pop(0))
        p("s_waitcnt vmcnt(5)")
        p(qk(SA, K0, 0))
        p(f"s_add_u32 s59, s57, {16*2048}")
        p(f"s_setprio {self.o.get('prioA', 0)}")
        p("s_waitcnt vmcnt(3)")
        p("s_nop 8")
        p(".p2align 6\nL_att:")
        tile(0)
        tile(1)
        tile(2)
        p("s_cmp_lg_u32 s58, s59\ns_cbranch_scc1 L_att")
        self.stamp(8)
        self.cnt_wait(3, 4, 12, 6)
        tile(0, last=True)
        p("s_nop 1")
        p(pv(7, V0 + 4, SB + 8))
        p("L_att_done:")
        p(f"""
s_mul_i32 s3, s{sJ}, 13824
s_add_u32 s3, s3, {OP}
v_add_u32 v3, s3, v2
s_add_u32 s3, s3, 4096
v_lshl_add_u32 v4, v1, 2, s3
s_lshl_b32 s56, s{sTG}, 16
s_lshl_b32 s3, s{sCG}, 2
s_add_u32 s57, s3, s{sJ}
s_lshl_b32 s3, s57, 11
s_add_u32 s56, s56, s3
s_add_u32 s56, s56, {OF}
s_waitcnt vmcnt(0) lgkmcnt(0)
s_barrier
""")
        self.stamp(9)
        lq = Queue(p, "lgkmcnt", 15)
        for k in range(3):
            b = 16 + 18 * k
            for e in range(4):
                p(f"ds_read_b128 {vr(b+4*e,4)}, v3 offset:{k*4608+e*1024}")
                lq.issue(k)
            p(f"ds_read2st64_b32 {vr(b+16,2)}, v4 offset0:{k*18} offset1:{k*18+1}")
            lq.issue(k)
        for k in range(3):
            b = 16 + 18 * k
            lq.wait(k)
            for e in range(2):
                p(f"v_add_f32 v{o0+16*(6+e)+8}, v{o0+16*(6+e)+8}, v{b+16+e}")
            if k == 2:
                for e in range(2):
                    p(f"v_rcp_f32 v{8+2*e}, v{o0+16*(6+e)+8}")
            for e in range(2):
                for i in range(0, 8, 2):
                    r = o0 + 16 * (6 + e) + i
                    p(f"v_pk_add_f32 {vr(r,2)}, {vr(r,2)}, {vr(b+8*e+i,2)}")
        for e in range(2):
            for i in range(0, 8, 2):
                r = o0 + 16 * (6 + e) + i
                p(f"v_pk_mul_f32 {vr(r,2)}, {vr(r,2)}, {vr(8+2*e,2)} op_sel_hi:[1,0]")
            for i in range(4):
                r = o0 + 16 * (6 + e) + 2 * i
                p(f"v_cvt_pk_bf16_f32 v{96+4*e+i}, v{r}, v{r+1}")
            self.dual_store([f"buffer_store_dwordx4 {vr(96+4*e,4)}, v2, {srd(rWS)}, s56 offen offset:{1024*e}"])
        p(f"""
s_lshl_b32 s56, s{sTG}, 7
s_lshl_b32 s57, s57, 2
s_add_u32 s56, s56, s57
s_add_u32 s56, s56, {FO}
v_mov_b32 v6, s{sN}
v_mov_b32 v7, 0
s_waitcnt vmcnt(0)
s_mov_b64 exec, 1
""")
        self.dual_store([f"buffer_store_dword v6, v7, {srd(rWS)}, s56 offen"])
        p("s_mov_b64 exec, -1")
        self.stamp(10)
        p("s_branch L_final")
        m0 = V0 + 16
        p(f"L_slow:\ns_waitcnt vmcnt(0)")
        for t in range(8):
            p(f"v_mov_b32 v{m0+t}, 0xff800000")
        p(f"s_mov_b32 s58, {KV}\nL_slow_max:\nbuffer_load_dwordx4 {vr(K0+4,4)}, v{vK}, {srd(rWS)}, s58 offen sc1\ns_waitcnt vmcnt(0)")
        for t in range(8):
            p(qk(SA, K0 + 4, t))
            for i in range(0, 16, 2):
                p(f"v_max3_f32 v{m0+t}, v{SA+i}, v{SA+i+1}, v{m0+t}")
        p(f"s_add_u32 s58, s58, 2048\ns_cmp_lt_u32 s58, {KV + 64*2048}\ns_cbranch_scc1 L_slow_max")
        for t in range(8):
            p(f"v_mov_b32 v6, v{m0+t}\nv_permlane32_swap_b32 v6, v{m0+t}\nv_max_f32 v{m0+t}, v6, v{m0+t}")
        p(f"s_add_u32 s58, s57, {16*2048}\nL_slow_pv:")
        p(f"""
buffer_load_dwordx4 {vr(K0,4)}, v{vK}, {srd(rWS)}, s57 offen sc1
s_mov_b64 exec, s[68:69]
buffer_load_dwordx4 {vr(V0,4)}, v{vV}, {srd(rWS)}, s57 offen sc1
buffer_load_dwordx4 {vr(V0+4,4)}, v{vV}, {srd(rWS)}, s57 offen offset:512 sc1
s_mov_b64 exec, -1
s_waitcnt vmcnt(0)
""")
        for t in range(8):
            p(qk(SA, K0, t))
            for i in range(16):
                p(f"v_sub_f32 v{SA+i}, v{SA+i}, v{m0+t}")
            for i in range(16):
                p(f"v_exp_f32 v{SA+i}, v{SA+i}")
            p(pv(t, V0, SA))
            p(pv(t, V0 + 4, SA + 8))
        p("s_add_u32 s57, s57, 2048\ns_cmp_lt_u32 s57, s58\ns_cbranch_scc1 L_slow_pv")
        self.cnt_wait(3, 4, 12, 6)
        for t in range(6):
            for w in opw(t):
                p(w)
        p("s_branch L_att_done")

    def g_wave(self):
        p = self.p
        D1 = self.o.get("d1", 6); HD = self.o.get("hd", 4); WD = self.o.get("wd", 4)
        p(f"""
L_G:
s_min_u32 s3, s{sCG}, 3
s_mul_i32 s59, s{sCG}, 5
s_add_u32 s59, s59, s3
s_lshr_b32 s3, s{sJ}, 1
s_mul_i32 s3, s3, 3
s_add_u32 s59, s59, s3
s_and_b32 s3, s{sJ}, 1
s_cmp_lt_u32 s{sCG}, 3
s_cselect_b32 s60, 1, 0
s_cmp_lt_u32 s{sJ}, 2
s_cselect_b32 s60, 1, s60
s_and_b32 s61, s60, s3
s_add_u32 s59, s59, s61
s_add_u32 s61, s59, s3
s_xor_b32 s3, s3, 1
s_add_u32 s62, s59, s3
v_lshrrev_b32 v3, 2, v1
v_and_b32 v3, 8, v3
s_lshl_b32 s54, s61, 6
s_lshl_b32 s55, s62, 6
""")
        for a in range(4):
            p(f"buffer_load_dwordx2 {vr(112+2*a,2)}, v3, {srd(rB1)}, s54 offen offset:{16*a}")
        for a in range(4):
            p(f"buffer_load_dwordx2 {vr(120+2*a,2)}, v3, {srd(rB1)}, s55 offen offset:{16*a}")
        p(f"""
v_lshrrev_b32 v3, 4, v1
v_lshlrev_b32 v3, 8, v3
v_and_b32 v4, 15, v1
v_lshl_add_u32 v3, v4, 3, v3
v_add_u32 v3, {WKV}, v3
v_mov_b32 v62, 0
s_waitcnt vmcnt(14)
s_barrier
""")
        self.stamp(1)
        p(f"s_cmp_lg_u32 s{sW}, 7\ns_cbranch_scc1 L_nokvw\ns_setprio 3")
        for s in range(16):
            for t in range(2):
                p(f"ds_read_b64_tr_b16 {vr(128+4*s+2*t,2)}, v3 offset:{s*1024+t*128}")
        p("L_nokvw:")
        self.batch0()
        p(f"s_cmp_lg_u32 s{sW}, 7\ns_cbranch_scc1 L_nokv")
        self.kv_job()
        p("L_nokv:\ns_waitcnt vmcnt(8)")
        ops = self.batch123_ops()
        cut = self.o.get("kvcut", 60)
        for l in ops[:cut]:
            p(l)
        p(f"s_cmp_lg_u32 s{sW}, 7\ns_cbranch_scc1 L_nokvf")
        self.kv_flag()
        p("L_nokvf:")
        for l in ops[cut:]:
            p(l)
        self.stats_write([(48, 49, 50), (52, 53, 54), (56, 57, 58)])
        p(f"""
s_and_b32 s56, s{sJ}, 1
s_xor_b32 s57, s56, 1
v_and_b32 v5, 31, v1
v_lshrrev_b32 v6, 5, v1
s_lshl_b32 s3, s56, 5
v_add_u32 v7, s3, v5
v_mul_u32_u24 v3, {XS}, v7
v_lshl_add_u32 v3, v6, 4, v3
v_lshlrev_b32 v128, 2, v7
s_lshl_b32 s3, s57, 5
v_add_u32 v7, s3, v5
v_mul_u32_u24 v4, {XS}, v7
v_lshl_add_u32 v4, v6, 4, v4
v_lshlrev_b32 v129, 2, v7
v_add_u32 v128, {ST+256}, v128
v_add_u32 v129, {ST+256}, v129
s_lshl_b32 s63, s{sJ}, 14
s_add_u32 s63, s63, {WQ}
v_mul_u32_u24 v7, 2752, v15
v_lshl_add_u32 v7, v14, 4, v7
s_lshl_b32 s3, s59, 6
v_add_u32 v7, s3, v7
v_and_b32 v132, 7, v1
v_lshlrev_b32 v132, 3, v132
s_lshl_b32 s3, s{sTG}, 6
s_add_u32 s3, s3, {FKV}
v_add_u32 v132, s3, v132
""")
        self.tr_addr32(5, 6, 8, "s63", 56, False)
        p(f"""
v_xor_b32 v6, 64, v5
s_lshl_b32 s58, s{sJ}, 12
s_add_u32 s58, s58, {WKV}
s_sub_u32 s3, s58, s63
v_add_u32 v130, s3, v5
v_add_u32 v131, s3, v6
s_waitcnt vmcnt(0)
""")
        for i in range(16):
            p(f"v_lshlrev_b32 v{16+2*i}, 16, v{112+i}\nv_and_b32 v{17+2*i}, 0xffff0000, v{112+i}")
        p("s_waitcnt lgkmcnt(0)\ns_barrier")
        self.stamp(4)
        vq = Queue(p, "vmcnt", 63)
        lq = Queue(p, "lgkmcnt", 15)
        p(f"""
s_mov_b32 s50, 0
s_mul_i32 s51, s{sJ}, 22
s_cmp_eq_u32 s{sJ}, 3
s_cselect_b32 s51, 65, s51
s_lshl_b32 s67, s51, 11
s_lshl_b32 s51, s51, 14
""")
        slot1 = lambda s: (s - 2) % 8
        def dma_w1(s):
            for i in range(2):
                base, off = ("s58", s * 2048) if s < 2 else ("s63", slot1(s) * 2048)
                p(f"s_add_u32 m0, {base}, {off + i * 1024}\ns_nop 0\nbuffer_load_dwordx4 v7, {srd(rW1)}, s50 offen lds\ns_add_u32 s50, s50, {8*2752}")
                vq.issue(("w1", s))
        def dma_w2(i, base, slot):
            if i == 21:
                p(f"s_min_u32 s51, s51, {85*16384}")
            for h in range(2):
                p(f"s_add_u32 m0, s{base}, {slot * 2048 + h * 1024}\ns_nop 0\nbuffer_load_dwordx4 v9, {srd(rW2)}, s51 offen lds\ns_add_u32 s51, s51, 8192")
                vq.issue(("w2", i))
        def rd1(s):
            b = 96 + 16 * (s & 1)
            a0, a1, o = (130, 131, s * 2048) if s < 2 else (5, 6, slot1(s) * 2048)
            p(f"ds_read_b64_tr_b16 {vr(b,2)}, v{a0} offset:{o}\nds_read_b64_tr_b16 {vr(b+2,2)}, v{a0} offset:{o+512}")
            p(f"ds_read_b128 {vr(b+8,4)}, v3 offset:{s*32}\nds_read_b128 {vr(b+12,4)}, v4 offset:{s*32}")
            p(f"ds_read_b64_tr_b16 {vr(b+4,2)}, v{a1} offset:{o}\nds_read_b64_tr_b16 {vr(b+6,2)}, v{a1} offset:{o+512}")
            for _ in range(6):
                lq.issue(s)
        def nxt_dma(v):
            if v < 32:
                dma_w1(v)
            elif v < 40:
                dma_w2(v - 32, 63, slot1(v))
        p("s_barrier")
        dma_w1(0); dma_w1(1)
        p("ds_read_b32 v10, v128\nds_read_b32 v14, v129")
        self.cnt_wait(0, 4, 12, 8)
        self.stamp(5)
        for s in range(2, D1):
            dma_w1(s)
        vq.wait(("w1", 0))
        rd1(0)
        for s in range(32):
            if s + 1 < 32:
                vq.wait(("w1", s + 1))
                rd1(s + 1)
            lq.wait(s)
            nxt_dma(s + D1)
            if s == 16:
                p(f"buffer_load_dwordx2 v[134:135], v132, {srd(rWS)}, 0 offen sc1")
                vq.issue("x")
            b = 96 + 16 * (s & 1)
            c = lambda a: "0" if s == 0 else vr(a, 16)
            p(f"v_mfma_f32_32x32x16_bf16 v[48:63], {vr(b,4)}, {vr(b+8,4)}, {c(48)}")
            p(f"v_mfma_f32_32x32x16_bf16 v[64:79], {vr(b,4)}, {vr(b+12,4)}, {c(64)}")
            p(f"v_mfma_f32_32x32x16_bf16 v[80:95], {vr(b+4,4)}, {vr(b+8,4)}, {c(80)}")
        for v in range(32 + D1, 40):
            nxt_dma(v)
        assert "x" not in vq.q
        self.stamp(6)
        c2 = 2 * math.sqrt(2 / math.pi) * LOG2E
        p(f"""
s_setprio {self.o.get('prioGv', 3)}
v_and_b32 v135, 15, v135
v_cmp_ne_u32 vcc, s{sN}, v134
v_cmp_ne_u32 s[48:49], s{sXCC}, v135
v_mov_b32 v128, {hx(-c2)}
v_mov_b32 v129, {hx(-c2)}
s_or_b64 s[48:49], s[48:49], vcc
s_cselect_b32 s{sSAME}, 0, {0 if self.o.get('nosame') or self.o.get('hsc1') else 1}
s_mov_b32 s48, {hx(-c2*0.044715)}
s_mov_b32 s49, {hx(-c2*0.044715)}
s_mul_i32 s54, s{sTG}, {HTG}
s_add_u32 s54, s54, {HF}
s_add_u32 s67, s67, s54
s_lshl_b32 s3, s61, 12
s_add_u32 s50, s54, s3
s_lshl_b32 s3, s56, 10
s_add_u32 s55, s50, s3
s_lshl_b32 s58, s62, 12
s_add_u32 s58, s58, s54
s_add_u32 s58, s58, s3
s_lshl_b32 s3, s57, 10
s_add_u32 s50, s50, s3
""")
        def gelu_pair(acc, bias, rr, t, out):
            return [
                f"v_pk_fma_f32 {vr(acc,2)}, {vr(acc,2)}, {vr(rr,2)}, {vr(bias,2)} op_sel_hi:[1,0,1]",
                f"v_pk_mul_f32 {vr(t,2)}, {vr(acc,2)}, {vr(acc,2)}",
                f"v_pk_fma_f32 {vr(t,2)}, {vr(t,2)}, s[48:49], v[128:129]",
                f"v_pk_mul_f32 {vr(t,2)}, {vr(t,2)}, {vr(acc,2)}",
                f"v_exp_f32 v{t}, v{t}", f"v_exp_f32 v{t+1}, v{t+1}",
                f"v_pk_add_f32 {vr(t,2)}, {vr(t,2)}, 1.0 op_sel_hi:[1,0]",
                f"v_rcp_f32 v{t}, v{t}", f"v_rcp_f32 v{t+1}, v{t+1}",
                f"v_pk_mul_f32 {vr(acc,2)}, {vr(acc,2)}, {vr(t,2)}",
                f"v_cvt_pk_bf16_f32 v{out}, v{acc}, v{acc+1}"]
        for ti, (acc, bias, rr, so) in enumerate(((48, 16, 10, 55), (64, 16, 14, 50), (80, 32, 10, 58))):
            if ti == 2:
                p("s_cmp_eq_u32 s60, 0\ns_cbranch_scc1 L_nohalf")
            for e in range(2):
                ls = [gelu_pair(acc + 8 * e + 2 * k, bias + 8 * e + 2 * k, rr, 136 + 2 * k, 160 + 8 * ti + 4 * e + k) for k in range(4)]
                for l in self.merge(*ls):
                    p(l)
                self.dual_store([f"buffer_store_dwordx4 {vr(160+8*ti+4*e,4)}, v2, {srd(rWS)}, s{so} offen offset:{2048*e}"])
        p(f"""
L_nohalf:
s_setprio 0
s_lshl_b32 s56, s{sTG}, 7
s_add_u32 s56, s56, {FH}
s_lshl_b32 s3, s{sCG}, 2
s_add_u32 s3, s3, s{sJ}
s_lshl_b32 s3, s3, 2
s_add_u32 s57, s56, s3
v_mov_b32 v16, s{sN}
v_mov_b32 v17, 0
v_and_b32 v18, 31, v1
v_lshlrev_b32 v18, 2, v18
s_mul_i32 s62, s{sJ}, {XSL}
""")
        self.tr_addr32(5, 6, 8, "s63", None, True)
        p(f"""
v_xor_b32 v6, 64, v5
s_sub_u32 s3, s62, s63
v_add_u32 v3, s3, v5
v_add_u32 v4, s3, v6
v_and_b32 v7, 6, v15
v_and_b32 v8, 7, v1
v_xor_b32 v7, v7, v8
v_lshlrev_b32 v7, 4, v7
v_lshl_add_u32 v7, v15, 10, v7
s_lshl_b32 s3, s{sCG}, 7
v_add_u32 v7, s3, v7
s_lshl_b32 s61, s{sJ}, 17
s_waitcnt vmcnt(0)
s_mov_b64 exec, 1
""")
        self.dual_store([f"buffer_store_dword v16, v17, {srd(rWS)}, s57 offen"])
        p("s_mov_b64 exec, -1")
        vq.q = []
        self.stamp(7)
        p(f"s_add_u32 s58, s54, {85*2048}")
        self.flag_wait(18, 56, 19, sleep=2)
        self.stamp(8)
        def ld_h(i):
            if i == 21:
                p("s_min_u32 s67, s67, s58")
            b = 128 + 8 * (i % HD)
            p(f"buffer_load_dwordx4 {vr(b,4)}, v2, {srd(rWS)}, s67 offen sc1\nbuffer_load_dwordx4 {vr(b+4,4)}, v2, {srd(rWS)}, s67 offen offset:1024 sc1\ns_add_u32 s67, s67, 2048")
            vq.issue(("h", i)); vq.issue(("h", i))
        def dma_wo(i):
            p(f"s_add_u32 m0, s63, {i * 1024}\ns_nop 0\nbuffer_load_dwordx4 v7, {srd(rWO)}, s61 offen lds\ns_add_u32 s61, s61, 8192")
            vq.issue(("wo", i))
        def rd2(i):
            b = 112 + 8 * (i & 1)
            a0, a1 = (5, 6) if i < 8 else (3, 4)
            o = (slot1(32 + i) if i < 8 else i % 8) * 2048
            p(f"ds_read_b64_tr_b16 {vr(b,2)}, v{a0} offset:{o}\nds_read_b64_tr_b16 {vr(b+2,2)}, v{a0} offset:{o+1024}")
            p(f"ds_read_b64_tr_b16 {vr(b+4,2)}, v{a1} offset:{o}\nds_read_b64_tr_b16 {vr(b+6,2)}, v{a1} offset:{o+1024}")
            for _ in range(4):
                lq.issue(i)
        for i in range(HD):
            ld_h(i)
        rd2(0)
        for i in range(22):
            if i + 1 < 22:
                vq.wait(("w2", i + 1))
                rd2(i + 1)
            vq.wait(("h", i))
            lq.wait(i)
            if i == 21:
                p(f"s_cmp_ge_u32 s{sJ}, 2\ns_cbranch_scc1 L_skip21")
            b = 112 + 8 * (i & 1)
            h = 128 + 8 * (i % HD)
            for mh in range(2):
                for nb in range(2):
                    a = 48 + 16 * (2 * mh + nb)
                    p(f"v_mfma_f32_32x32x16_bf16 {vr(a,16)}, {vr(b+4*nb,4)}, {vr(h+4*mh,4)}, {'0' if i == 0 else vr(a,16)}")
            if i + HD < 22:
                ld_h(i + HD)
            if 8 <= i + WD < 22:
                dma_w2(i + WD, 62, (i + WD) % 8)
            if 13 <= i < 21:
                dma_wo(2 * (i - 13)); dma_wo(2 * (i - 13) + 1)
        p("L_skip21:")
        self.stamp(9)
        p(f"""
s_setprio {self.o.get('prioGv', 3)}
v_lshrrev_b32 v8, 4, v1
v_lshlrev_b32 v16, 3, v8
s_lshl_b32 s3, s{sCG}, 7
""")
        for nt in range(4):
            p(f"buffer_load_dwordx2 {vr(192+2*nt,2)}, v16, {srd(rB2)}, s3 offen offset:{32*nt}")
        p(f"""
v_and_b32 v3, 31, v1
v_and_b32 v4, 15, v1
v_lshrrev_b32 v5, 5, v1
v_xor_b32 v5, v5, v4
v_lshlrev_b32 v5, 4, v5
v_lshl_add_u32 v5, v3, 8, v5
v_add_u32 v5, s62, v5
""")
        for nb in range(2):
            for a in range(4):
                p(f"v_xor_b32 v{6 + (a & 1)}, {(8*nb+2*a) << 4}, v5")
                for mh in range(2):
                    p(f"ds_write_b128 v{6 + (a & 1)}, {vr(48+16*(2*mh+nb)+4*a,4)} offset:{8192*mh}")
        p(f"""
s_lshl_b32 s3, s{sJ}, 12
v_xor_b32 v5, v8, v4
v_lshlrev_b32 v5, 4, v5
v_lshl_add_u32 v5, v4, 8, v5
v_add_u32 v5, s3, v5
s_waitcnt vmcnt(0) lgkmcnt(0)
""")
        self.cnt_signal(2, 12, 13)
        for i in range(8):
            p(f"v_lshlrev_b32 v{16+2*i}, 16, v{192+i}\nv_and_b32 v{17+2*i}, 0xffff0000, v{192+i}")
        p(f"s_setprio 0")
        self.cnt_wait(2, 4, 12, 8)
        p(f"s_setprio {self.o.get('prioGv', 3)}")
        lq.q = []
        for nt in range(4):
            if nt:
                p(f"v_xor_b32 v6, {nt << 6}, v5")
            for kq in range(4):
                p(f"ds_read_b128 {vr(48+16*nt+4*kq,4)}, v{6 if nt else 5} offset:{kq*XSL}")
                lq.issue(nt)
        p(f"s_lshl_b32 s3, s{sJ}, 11\ns_add_u32 s3, s3, {GA}\nv_add_u32 v7, s3, v2\ns_mov_b32 s48, {hx(-LOG2E)}\ns_mov_b32 s49, {hx(-LOG2E)}")
        for nt in range(4):
            lq.wait(nt)
            z = 16 + 4 * nt
            def silu_pair(r, t):
                o = [f"v_pk_add_f32 {vr(r,2)}, {vr(r,2)}, {vr(48+16*nt+4*kq+(r-z),2)}" for kq in range(4)]
                return o + [f"v_pk_mul_f32 {vr(t,2)}, {vr(r,2)}, s[48:49]",
                            f"v_exp_f32 v{t}, v{t}", f"v_exp_f32 v{t+1}, v{t+1}",
                            f"v_pk_add_f32 {vr(t,2)}, {vr(t,2)}, 1.0 op_sel_hi:[1,0]",
                            f"v_rcp_f32 v{t}, v{t}", f"v_rcp_f32 v{t+1}, v{t+1}",
                            f"v_pk_mul_f32 {vr(r,2)}, {vr(r,2)}, {vr(t,2)}"]
            for l in self.merge(silu_pair(z, 32), silu_pair(z + 2, 34)):
                p(l)
            p(f"ds_write_b128 v7, {vr(z,4)} offset:{(nt >> 1) * 8192 + (nt & 1) * 1024}")
            lq.issue("w")
        p("s_waitcnt lgkmcnt(0)")
        self.cnt_signal(3, 12, 13)
        p("s_setprio 0")
        self.stamp(10)
        p("s_barrier")

    def final(self):
        p = self.p
        p("L_final:")
        p(f"""
s_lshr_b32 s56, s{sW}, 2
v_lshrrev_b32 v3, 4, v1
v_and_b32 v4, 15, v1
s_lshl_b32 s3, s{sJ}, 4
v_add_u32 v5, s3, v4
v_lshlrev_b32 v5, 10, v5
v_lshl_add_u32 v5, v3, 3, v5
s_lshl_b32 s57, s{sTG}, 16
s_lshl_b32 s3, s{sCG}, 7
s_add_u32 s57, s57, s3
s_lshl_b32 s3, s56, 6
s_add_u32 s57, s57, s3
buffer_load_dwordx2 v[16:17], v5, {srd(rX)}, s57 offen
buffer_load_dwordx2 v[18:19], v5, {srd(rX)}, s57 offen offset:32
s_lshl_b32 s3, s{sW}, 11
s_add_u32 s3, s3, {GA}
v_add_u32 v6, s3, v2
ds_read_b128 v[20:23], v6
ds_read_b128 v[24:27], v6 offset:1024
v_bfe_u32 v8, v1, 2, 3
v_lshlrev_b32 v9, 7, v8
v_lshrrev_b32 v8, 1, v8
s_lshl_b32 s3, s56, 1
v_xor_b32 v8, s3, v8
v_lshl_or_b32 v9, v8, 5, v9
v_and_b32 v8, 3, v1
v_lshl_or_b32 v9, v8, 3, v9
v_lshrrev_b32 v8, 5, v1
v_lshl_or_b32 v9, v8, 11, v9
s_lshl_b32 s3, s56, 15
s_add_u32 s3, s3, {WQ}
v_add_u32 v8, s3, v9
v_xor_b32 v9, 32, v8
v_xor_b32 v10, 64, v8
v_xor_b32 v11, 96, v8
""")
        for s in range(8):
            for nt in range(4):
                for t in range(2):
                    p(f"ds_read_b64_tr_b16 {vr(128+16*s+4*nt+2*t,2)}, v{8+nt} offset:{s*4096+t*1024}")
        p(f"""
v_and_b32 v14, 31, v1
v_lshlrev_b32 v14, 2, v14
s_lshl_b32 s58, s{sTG}, 7
s_add_u32 s58, s58, {FO}
v_and_b32 v7, 1, v3
v_lshlrev_b32 v7, 9, v7
v_lshrrev_b32 v15, 1, v3
v_lshl_add_u32 v7, v15, 11, v7
v_lshl_add_u32 v7, v4, 4, v7
s_lshl_b32 s59, s{sTG}, 16
s_lshl_b32 s3, s56, 15
s_add_u32 s59, s59, s3
s_lshr_b32 s3, s{sJ}, 1
s_lshl_b32 s3, s3, 10
s_add_u32 s59, s59, s3
s_and_b32 s3, s{sJ}, 1
s_lshl_b32 s3, s3, 8
s_add_u32 s59, s59, s3
s_add_u32 s59, s59, {OF}
""")
        p(f"s_cmp_lg_u32 s{sW}, 7\ns_cbranch_scc1 L_nopoll")
        self.flag_wait(14, 58, 15, sleep=0)
        p("L_nopoll:\ns_barrier")
        self.stamp(11)
        vq = Queue(p, "vmcnt", 63)
        for s in range(8):
            p(f"buffer_load_dwordx4 {vr(64+4*s,4)}, v7, {srd(rWS)}, s59 offen sc1\ns_add_u32 s59, s59, 4096")
            vq.issue(s)
        p("s_waitcnt vmcnt(8)")
        for i in range(4):
            p(f"v_lshlrev_b32 v{28+2*i}, 16, v{16+i}\nv_and_b32 v{29+2*i}, 0xffff0000, v{16+i}")
        p("s_waitcnt lgkmcnt(0)")
        for s in range(8):
            vq.wait(s)
            for nt in (2, 3, 0, 1):
                p(f"v_mfma_f32_16x16x32_bf16 {vr(48+4*nt,4)}, {vr(128+16*s+4*nt,4)}, {vr(64+4*s,4)}, {'0' if s == 0 else vr(48+4*nt,4)}")
        p(f"""
s_xor_b32 s3, s{sW}, 4
s_lshl_b32 s3, s3, 11
s_add_u32 s3, s3, {GA}
v_add_u32 v7, s3, v2
ds_write_b128 v6, v[56:59]
ds_write_b128 v6, v[60:63] offset:1024
s_waitcnt lgkmcnt(0)
s_barrier
ds_read_b128 v[56:59], v7
ds_read_b128 v[60:63], v7 offset:1024
""")
        for e in range(2):
            p(f"s_waitcnt lgkmcnt({1-e})")
            for i in range(0, 4, 2):
                r = 48 + 4 * e + i
                p(f"v_pk_add_f32 {vr(r,2)}, {vr(r,2)}, {vr(r+8,2)}")
            for i in range(0, 4, 2):
                r = 48 + 4 * e + i
                p(f"v_pk_fma_f32 {vr(r,2)}, {vr(r,2)}, {vr(20+4*e+i,2)}, {vr(28+4*e+i,2)}")
            for i in range(2):
                p(f"v_cvt_pk_bf16_f32 v{16+2*e+i}, v{48+4*e+2*i}, v{49+4*e+2*i}")
            p(f"buffer_store_dwordx2 {vr(16+2*e,2)}, v5, {srd(rOUT)}, s57 offen offset:{32*e} {('', 'sc1', 'nt', 'sc0 sc1')[self.o.get('outf', 0)]}")
        if self.stamps:
            p("s_waitcnt vmcnt(0)")
            self.stamp(12)
            p(f"s_lshl_b32 s3, s2, 3\ns_add_u32 s3, s3, s{sW}\ns_lshl_b32 s3, s3, 7\ns_add_u32 s3, s3, {STAMP}\nv_mov_b32 v7, 0")
            for i in range(0, 24, 4):
                for k in range(4):
                    p(f"v_mov_b32 v{16+k}, s{72+i+k}")
                p(f"buffer_store_dwordx4 v[16:19], v7, {srd(rWS)}, s3 offen offset:{4*i}")
        if self.o.get("fix") or self.o.get("xcc"):
            p(f"s_waitcnt vmcnt(0)\nL_fix:\ns_memrealtime s[94:95]\ns_waitcnt lgkmcnt(0)\ns_sub_u32 s94, s94, s92\ns_cmp_lt_u32 s94, 10000\ns_cbranch_scc1 L_fix")
        p("L_exit:\ns_endpgm\nL_code_end:")

    def build(self, verbose=False):
        if self.stamps:
            for i in range(16):
                pass
        self.entry()
        self.a_wave()
        self.g_wave()
        self.final()
        ins = self.p.fix_hazards(verbose)
        head = open(f"cdna_kernels/{NAME}.s.ref").read().split("; Override launch")[0]
        return (head + f"; @launch grid=(256,1,1) block=(512,1,1) lds={LDS_BYTES}\n"
                + f""".amdgcn_target "amdgcn-amd-amdhsa--gfx950"
.text
.globl {NAME}_kernel
.p2align 8
.type {NAME}_kernel,@function
{NAME}_kernel:
""" + self.p.text() + f""".section .rodata,"a"
.p2align 6
.amdhsa_kernel {NAME}_kernel
  .amdhsa_next_free_vgpr 256
  .amdhsa_next_free_sgpr 102
  .amdhsa_accum_offset 256
  .amdhsa_group_segment_fixed_size 0
  .amdhsa_kernarg_size 104
  .amdhsa_user_sgpr_count 2
  .amdhsa_user_sgpr_kernarg_segment_ptr 1
  .amdhsa_system_sgpr_workgroup_id_x 1
  .amdhsa_float_denorm_mode_32 3
.end_amdhsa_kernel
""")


if __name__ == "__main__":
    out = sys.argv[1]
    opts = {}
    stamps = False
    for a in sys.argv[2:]:
        if a == "stamps":
            stamps = True
        elif a == "-v":
            opts["v"] = 1
        else:
            k, v = a.split("=")
            opts[k] = int(v)
    open(out, "w").write(Gen(stamps, opts).build(bool(opts.get("v"))))
```

```python
import sys, struct, math
from asmlib import Prog, Queue

NAME = "recurrent_scan__grouped_kv_mqa__mixer_channel_mlp__prompt"

def f2u(x):
    return struct.unpack("<I", struct.pack("<f", x))[0]
def hx(x):
    return f"0x{f2u(x):08x}"

X = 0; XS = 1040; XSL = 16640
WQ = 66560
WKV = 132096; GA = WKV
QX = 148480
ST = 156672
CNT = 157184
LDS_BYTES = 157696
OP = X; GP = X
FKV = 0x1000; FH = 0x2000; FO = 0x3000
KV = 0x10000; OF = 0x40000; HF = 0x240000; HTG = 86 * 2048
STAMP = 0x800000
WS_RANGE = 0x1000000
rX, rWS, rWQ, rWKV, rW1, rW2, rWO, rB1, rB2, rOUT = 4, 8, 12, 16, 20, 24, 28, 32, 36, 40
sW, sTG, sCG, sN, sTB, sJ = 44, 45, 46, 47, 52, 53
sONE, sLO, sHI = 64, 65, 66
sXCC, sSAME = 100, 101
srd = lambda r: f"s[{r}:{r+3}]"
vr = lambda a, n: f"v[{a}:{a+n-1}]"
LOG2E = 1.4426950408889634
SPIN = 1 << 20


class Gen:
    def __init__(self, stamps=False, opts=None):
        self.p = Prog()
        self.stamps = stamps
        self.o = opts or {}
        self.uid = 0
        self.role = 0

    def lab(self, s):
        self.uid += 1
        return f"L_{s}_{self.uid}"

    def stamp(self, i):
        if self.o.get("fix", -1) == i + 100 * self.role:
            self.p("s_waitcnt lgkmcnt(0)\ns_memrealtime s[92:93]\ns_waitcnt lgkmcnt(0)")
        if self.stamps:
            self.p(f"s_waitcnt lgkmcnt(0)\ns_memrealtime s[70:71]\ns_waitcnt lgkmcnt(0)\ns_mov_b32 s{72+i}, s70")
            k = {1: 17, 2: 18, 4: 19, 7: 20, 8: 21, 9: 22, 12: 23}.get(i)
            if k:
                self.p(f"s_memtime s[70:71]\ns_waitcnt lgkmcnt(0)\ns_mov_b32 s{72+k}, s70")

    def cnt_signal(self, k, vaddr, vone):
        self.p(f"s_mov_b64 exec, 1\nds_add_u32 v{vaddr}, v{vone} offset:{4*k}\ns_mov_b64 exec, -1")

    def cnt_wait(self, k, target, vaddr, vt, sleep=1):
        p = self.p
        l, d = self.lab("cw"), self.lab("cd")
        p(f"s_mov_b32 s54, {SPIN}\n{l}:\nds_read_b32 v{vt}, v{vaddr} offset:{4*k}\ns_waitcnt lgkmcnt(0)")
        p(f"v_readfirstlane_b32 s55, v{vt}\ns_cmp_ge_u32 s55, {target}\ns_cbranch_scc1 {d}")
        if sleep:
            p(f"s_sleep {sleep}")
        p(f"s_sub_u32 s54, s54, 1\ns_cmp_lg_u32 s54, 0\ns_cbranch_scc1 {l}\n{d}:")

    def flag_wait(self, vaddr, soff, vt, sleep=1):
        p = self.p
        l, d = self.lab("fw"), self.lab("fd")
        p(f"s_mov_b32 s54, {SPIN}\n{l}:\nbuffer_load_dword v{vt}, v{vaddr}, {srd(rWS)}, s{soff} offen sc1\ns_waitcnt vmcnt(0)")
        p(f"v_cmp_ne_u32 vcc, s{sN}, v{vt}\ns_cbranch_vccz {d}")
        if sleep:
            p(f"s_sleep {sleep}")
        p(f"s_sub_u32 s54, s54, 1\ns_cmp_lg_u32 s54, 0\ns_cbranch_scc1 {l}\n{d}:")

    @staticmethod
    def merge(*lists):
        out = []
        n = max(len(l) for l in lists)
        for i in range(n):
            for l in lists:
                if i < len(l):
                    out.append(l[i])
        return out

    def entry(self):
        p = self.p
        if self.stamps:
            p("s_memrealtime s[70:71]\ns_memtime s[88:89]")
        if "fix" in self.o:
            p("s_memrealtime s[92:93]")
        p(f"""
s_load_dwordx2 s[{rX}:{rX+1}], s[0:1], 0
s_load_dwordx4 s[48:51], s[0:1], 16
s_load_dwordx2 s[{rWS}:{rWS+1}], s[0:1], 96
s_load_dwordx2 s[{rWQ}:{rWQ+1}], s[0:1], 8
s_cmp_ge_u32 s2, 256
s_cbranch_scc1 L_exit
s_getpc_b64 s[54:55]
L_pc:
v_lshlrev_b32 v3, 6, v0
v_min_u32 v3, L_code_end-L_pc-4, v3
v_mov_b32 v5, s55
v_add_co_u32 v4, vcc, s54, v3
v_lshrrev_b32 v7, 6, v0
v_and_b32 v1, 63, v0
v_addc_co_u32 v5, vcc, 0, v5, vcc
v_readfirstlane_b32 s{sW}, v7
global_load_dword v6, v[4:5], off
s_load_dwordx2 s[{rW1}:{rW1+1}], s[0:1], 48
s_load_dwordx2 s[{rB1}:{rB1+1}], s[0:1], 56
s_load_dwordx2 s[{rW2}:{rW2+1}], s[0:1], 64
s_load_dwordx2 s[{rB2}:{rB2+1}], s[0:1], 72
s_load_dwordx2 s[{rOUT}:{rOUT+1}], s[0:1], 80
s_load_dwordx2 s[{rWO}:{rWO+1}], s[0:1], 32
s_and_b32 s3, s2, 7
s_lshr_b32 s54, s2, 3
s_and_b32 s{sCG}, s54, 7
s_lshr_b32 s54, s54, 3
s_lshl_b32 s3, s3, 2
s_add_u32 s{sTG}, s3, s54
s_lshr_b32 s{sTB}, s{sCG}, 1
s_and_b32 s{sJ}, s{sW}, 3
v_lshlrev_b32 v2, 4, v1
v_and_b32 v8, 32, v1
s_lshl_b32 s54, s{sW}, 11
v_lshl_add_u32 v8, v8, 4, v2
v_add_u32 v8, s54, v8
s_mov_b32 s{rX+2}, 2097152
s_mov_b32 s{rX+3}, 0x20000
s_mov_b32 s{rWKV+2}, 16384
s_mov_b32 s{rWKV+3}, 0x20000
s_lshl_b32 s56, s{sTG}, 16
s_lshl_b32 s57, s{sTB}, 14
s_add_u32 m0, s54, {WKV}
s_add_u32 s58, s56, s57
s_and_b32 s3, s{sCG}, 1
s_cmp_eq_u32 s3, 0
s_waitcnt lgkmcnt(0)
s_cselect_b32 s{rWKV}, s48, s50
s_cselect_b32 s{rWKV+1}, s49, s51
""")
        if self.stamps:
            p("s_mov_b32 s72, s70")
        p(f"""
buffer_load_dwordx4 v[16:19], v8, {srd(rX)}, s58 offen
buffer_load_dwordx4 v[20:23], v8, {srd(rX)}, s58 offen offset:512
buffer_load_dwordx4 v2, {srd(rWKV)}, s54 offen lds
buffer_load_dwordx4 v2, {srd(rWKV)}, s54 offen offset:1024 lds
s_load_dword s{sN}, s[{rWS}:{rWS+1}], 0
s_getreg_b32 s{sXCC}, hwreg(HW_REG_XCC_ID, 0, 4)
""")
        for r, n in ((rWS, WS_RANGE), (rWQ, 524288), (rW1, 512 * 2752), (rW2, 1376 * 1024), (rWO, 524288),
                     (rB1, 2752), (rB2, 1024), (rOUT, 2097152)):
            p(f"s_mov_b32 s{r+2}, {n}\ns_mov_b32 s{r+3}, 0x20000")
        p(f"s_mov_b32 s{sONE}, 0x3f803f80\ns_mov_b32 s{sLO}, 0x00003f80\ns_mov_b32 s{sHI}, 0x3f800000")
        p(f"""
v_lshrrev_b32 v3, 2, v1
v_and_b32 v3, 4, v3
v_and_b32 v4, 7, v1
v_xor_b32 v14, v3, v4
v_lshrrev_b32 v15, 3, v1
v_lshlrev_b32 v9, 10, v15
v_lshl_add_u32 v9, v14, 4, v9
s_lshl_b32 s3, s{sCG}, 7
v_add_u32 v9, s3, v9
v_lshrrev_b32 v3, 5, v1
s_lshl_b32 s3, s{sW}, 1
v_add_u32 v3, s3, v3
v_mul_u32_u24 v10, {XS}, v3
v_and_b32 v4, 31, v1
v_lshl_add_u32 v10, v4, 4, v10
v_lshlrev_b32 v11, 2, v3
v_add_u32 v11, {ST}, v11
v_mov_b32 v12, {CNT}
v_mov_b32 v13, 1
v_mov_b32 v4, 0
v_mov_b32 v5, 0
s_mov_b64 exec, 1
ds_write_b64 v12, v[4:5]
ds_write_b64 v12, v[4:5] offset:8
s_mov_b64 exec, -1
""")
        for i in (1, 2, 3):
            p(f"""
s_add_u32 s57, s57, 16384
s_and_b32 s57, s57, 0xffff
s_add_u32 s58, s56, s57
buffer_load_dwordx4 {vr(16+8*i,4)}, v8, {srd(rX)}, s58 offen
buffer_load_dwordx4 {vr(20+8*i,4)}, v8, {srd(rX)}, s58 offen offset:512
""")
        p(f"s_cmp_ge_u32 s{sW}, 4\ns_cbranch_scc1 L_G")

    def center_ops(self, i, tA, tB, tmp, tadr):
        a = 16 + 8 * i
        o = []
        for k in range(8):
            o.append(f"v_dot2_f32_bf16 v{tA}, v{a+k}, s{sONE}, {'0' if k == 0 else f'v{tA}'}")
            o.append(f"v_dot2_f32_bf16 v{tB}, v{a+k}, v{a+k}, {'0' if k == 0 else f'v{tB}'}")
        o.append(f"s_add_u32 s{48+i}, s{sTB}, {i}")
        o.append(f"s_and_b32 s{48+i}, s{48+i}, 3")
        o.append(f"s_mul_i32 s{96+i}, s{48+i}, {XSL}")
        o.append(f"v_permlane16_swap_b32 v{tA}, v{tB}")
        o.append(f"v_add_f32 v{tA}, v{tA}, v{tB}")
        o.append(f"v_add_u32 v{tadr}, s{96+i}, v10")
        o.append(f"s_lshl_b32 s{48+i}, s{48+i}, 6")
        for c in ("quad_perm:[1,0,3,2]", "quad_perm:[2,3,0,1]", "row_half_mirror", "row_mirror"):
            o.append(f"v_add_f32_dpp v{tA}, v{tA}, v{tA} {c} row_mask:0xf bank_mask:0xf")
        o.append(f"v_mov_b32 v{tB}, v{tA}")
        o.append(f"v_add_u32 v{tadr+1}, s{48+i}, v11")
        o.append(f"v_permlane16_swap_b32 v{tA}, v{tB}")
        o.append(f"v_mul_f32 v{tA}, {hx(-1.0/512)}, v{tA}")
        o.append(f"v_mul_f32 v{tB}, {hx(1.0/512)}, v{tB}")
        for k in range(8):
            o.append(f"v_dot2_f32_bf16 v{tmp+2*k}, v{a+k}, s{sLO}, v{tA}")
            o.append(f"v_dot2_f32_bf16 v{tmp+2*k+1}, v{a+k}, s{sHI}, v{tA}")
        o.append(f"v_fma_f32 v{tB}, -v{tA}, v{tA}, v{tB}")
        o.append(f"v_max_f32 v{tB}, 0, v{tB}")
        o.append(f"v_add_f32 v{tA}, {hx(1e-5)}, v{tB}")
        for k in range(4):
            o.append(f"v_cvt_pk_bf16_f32 v{a+k}, v{tmp+2*k}, v{tmp+2*k+1}")
        o.append(f"v_rsq_f32 v{tA}, v{tA}")
        o.append(f"ds_write_b128 v{tadr}, {vr(a,4)}")
        for k in range(4, 8):
            o.append(f"v_cvt_pk_bf16_f32 v{a+k}, v{tmp+2*k}, v{tmp+2*k+1}")
        o.append(f"v_mul_f32 v{tB}, v{tA}, v{tB}")
        o.append(f"ds_write_b128 v{tadr}, {vr(a+4,4)} offset:512")
        o.append(f"v_mul_f32 v{tB}, v{tA}, v{tB}")
        o.append(f"v_add_f32 v{tB}, {hx(1e-5)}, v{tB}")
        o.append(f"v_rsq_f32 v{tB}, v{tB}")
        o.append(f"v_mul_f32 v{tB}, v{tA}, v{tB}")
        return o

    def stats_write(self, items):
        p = self.p
        p("s_mov_b32 exec_lo, 1\ns_mov_b32 exec_hi, 1")
        for tA, tB, tadr in items:
            p(f"ds_write2st64_b32 v{tadr+1}, v{tA}, v{tB} offset1:1")
        p("s_mov_b64 exec, -1")

    def batch0(self):
        p = self.p
        for l in self.center_ops(0, 48, 49, 64, 50):
            p(l)
        self.stats_write([(48, 49, 50)])
        p("s_waitcnt lgkmcnt(0)\ns_barrier")
        self.stamp(2)
        p(f"s_add_u32 s{sN}, s{sN}, 0x9e3779b9")

    def batch123_ops(self):
        ls = [self.center_ops(i, 48 + 4 * (i - 1), 49 + 4 * (i - 1), 64 + 16 * (i - 1), 50 + 4 * (i - 1)) for i in (1, 2, 3)]
        return self.merge(*ls)

    def dual_store(self, text):
        a, b = self.lab("ds"), self.lab("de")
        self.p(f"s_cmp_lg_u32 s{sSAME}, 0\ns_cbranch_scc1 {a}\n" + "\n".join(l + " sc1" for l in text) + f"\ns_branch {b}\n{a}:\n" + "\n".join(text) + f"\n{b}:")

    def kv_job(self):
        p = self.p
        WF, XF = 128, 192
        p(f"""
v_and_b32 v4, 15, v1
v_lshrrev_b32 v5, 4, v1
s_mul_i32 s3, s{sTB}, {XSL}
v_mul_u32_u24 v3, {XS}, v4
v_lshl_add_u32 v3, v5, 4, v3
v_add_u32 v3, s3, v3
""")
        lq = Queue(p, "lgkmcnt", 15)
        for s in range(16):
            p(f"ds_read_b128 {vr(XF+4*s,4)}, v3 offset:{s*64}")
            lq.issue(s)
        p(f"""
s_lshl_b32 s54, s{sTG}, 12
s_lshr_b32 s3, s{sTB}, 1
s_lshl_b32 s3, s3, 11
s_add_u32 s54, s54, s3
s_add_u32 s54, s54, {KV}
s_and_b32 s55, s{sTB}, 1
s_lshl_b32 s56, s{sTB}, 6
s_add_u32 s56, s56, {ST}
s_and_b32 s3, s{sCG}, 1
s_cmp_eq_u32 s3, 1
s_cbranch_scc1 L_vjob
v_lshl_add_u32 v7, v4, 2, s56
ds_read_b32 v52, v7
""")
        save = list(lq.q)
        lq.issue("r")
        for s in range(16):
            lq.wait(s)
            p(f"v_mfma_f32_16x16x32_bf16 v[48:51], {vr(WF+4*s,4)}, {vr(XF+4*s,4)}, {'0' if s == 0 else 'v[48:51]'}")
        p(f"""
v_and_b32 v7, 1, v5
v_lshlrev_b32 v7, 9, v7
v_lshl_add_u32 v7, v4, 4, v7
v_lshrrev_b32 v6, 1, v5
v_lshl_add_u32 v7, v6, 3, v7
s_lshl_b32 s55, s55, 8
s_add_u32 s54, s54, s55
s_waitcnt lgkmcnt(0)
v_mul_f32 v48, v52, v48
v_mul_f32 v49, v52, v49
v_mul_f32 v50, v52, v50
v_mul_f32 v51, v52, v51
v_cvt_pk_bf16_f32 v54, v48, v49
v_cvt_pk_bf16_f32 v55, v50, v51
buffer_store_dwordx2 v[54:55], v7, {srd(rWS)}, s54 offen sc1
v_dot2_f32_bf16 v57, v54, v54, 0
v_dot2_f32_bf16 v57, v55, v55, v57
v_mov_b32 v58, v57
v_permlane16_swap_b32 v57, v58
v_add_f32 v57, v57, v58
v_mov_b32 v58, v57
v_permlane32_swap_b32 v57, v58
v_add_f32 v57, v57, v58
s_branch L_kvpub
L_vjob:
v_lshl_add_u32 v7, v5, 4, s56
ds_read_b128 v[52:55], v7
""")
        lq.q = save + ["r"]
        for s in range(16):
            lq.wait(s)
            p(f"v_mfma_f32_16x16x32_bf16 v[48:51], {vr(XF+4*s,4)}, {vr(WF+4*s,4)}, {'0' if s == 0 else 'v[48:51]'}")
        p(f"""
v_lshrrev_b32 v7, 1, v5
v_lshlrev_b32 v7, 8, v7
v_lshl_add_u32 v7, v4, 4, v7
v_and_b32 v6, 1, v5
v_lshl_add_u32 v7, v6, 3, v7
s_lshl_b32 s55, s55, 9
s_add_u32 s54, s54, s55
s_add_u32 s54, s54, 1024
s_waitcnt lgkmcnt(0)
v_mul_f32 v48, v52, v48
v_mul_f32 v49, v53, v49
v_mul_f32 v50, v54, v50
v_mul_f32 v51, v55, v51
v_cvt_pk_bf16_f32 v54, v48, v49
v_cvt_pk_bf16_f32 v55, v50, v51
buffer_store_dwordx2 v[54:55], v7, {srd(rWS)}, s54 offen sc1
v_max3_f32 v57, |v48|, |v49|, |v50|
v_max_f32 v57, v57, |v51|
v_mov_b32 v58, v57
v_permlane16_swap_b32 v57, v58
v_max_f32 v57, v57, v58
v_mov_b32 v58, v57
v_permlane32_swap_b32 v57, v58
v_max_f32 v57, v57, v58
L_kvpub:
""")
        for c in ("quad_perm:[1,0,3,2]", "quad_perm:[2,3,0,1]", "row_half_mirror", "row_mirror"):
            p(f"v_max_u32_dpp v57, v57, v57 {c} row_mask:0xf bank_mask:0xf")
        p(f"""
v_add_u32 v57, 16, v57
v_and_b32 v57, -16, v57
v_or_b32 v61, s{sXCC}, v57
v_mov_b32 v60, s{sN}
s_lshl_b32 s58, s{sTG}, 3
s_add_u32 s58, s58, s{sCG}
s_lshl_b32 s58, s58, 3
s_add_u32 s58, s58, {FKV}
""")

    def kv_flag(self):
        self.p(f"""
s_waitcnt vmcnt(0)
s_mov_b64 exec, 1
buffer_store_dwordx2 v[60:61], v62, {srd(rWS)}, s58 offen sc1
s_mov_b64 exec, -1
s_setprio 0
""")
        self.stamp(3)

    def tr_addr32(self, dst, t0, t1, base_expr, nh_sgpr, perm):
        p = self.p
        p(f"""
v_lshrrev_b32 v{t0}, 1, v1
v_and_b32 v{t0}, 1, v{t0}
v_lshrrev_b32 v{t1}, 3, v1
v_and_b32 v{dst}, 2, v{t1}
v_or_b32 v{t0}, v{t0}, v{dst}
v_and_b32 v{t1}, 1, v{t1}
v_lshl_or_b32 v{t0}, v{t1}, 2, v{t0}
v_lshlrev_b32 v{t0}, 4, v{t0}
v_and_b32 v{t1}, 1, v1
v_lshl_or_b32 v{t0}, v{t1}, 3, v{t0}
v_bfe_u32 v{t1}, v1, 2, 2
v_lshl_or_b32 v{t0}, v{t1}, 7, v{t0}
v_lshrrev_b32 v{t1}, 5, v1
v_lshl_or_b32 v{t0}, v{t1}, {9 if perm else 10}, v{t0}
v_add_u32 v{dst}, {base_expr}, v{t0}
""")
        if nh_sgpr is not None:
            p(f"s_lshl_b32 s3, s{nh_sgpr}, 6\nv_xor_b32 v{dst}, s3, v{dst}")

    def a_wave(self):
        p = self.p
        q0, SA, SB, K0, V0, vI, vK, vV, o0 = 16, 48, 64, 80, 92, 116, 2, 117, 128
        for i in range(128):
            p(f"v_mov_b32 v{o0+i}, 0")
        p(f"""
s_and_b32 s56, s{sW}, 1
s_lshr_b32 s57, s{sW}, 1
v_and_b32 v5, 31, v1
s_lshl_b32 s3, s56, 5
v_add_u32 v5, s3, v5
v_mul_u32_u24 v3, {XS}, v5
v_lshrrev_b32 v7, 5, v1
v_lshl_add_u32 v3, v7, 4, v3
v_lshlrev_b32 v5, 2, v5
v_add_u32 v5, {ST}, v5
v_mov_b32 v{vI}, 0xdddddddd
v_and_b32 v8, 15, v1
v_lshl_add_u32 v8, v7, 4, v8
v_lshlrev_b32 v8, 4, v8
v_add_u32 v{vV}, 1024, v8
s_lshl_b32 s3, s57, 12
s_lshl_b32 s54, s56, 10
s_add_u32 s3, s3, s54
s_add_u32 s3, s3, {QX}
v_add_u32 v124, s3, v2
v_lshlrev_b32 v125, 5, v1
v_and_b32 v126, 7, v1
v_lshlrev_b32 v126, 3, v126
s_lshl_b32 s3, s{sTG}, 6
v_add_u32 v126, s3, v126
s_mov_b32 s68, 0x0000ffff
s_mov_b32 s69, 0x0000ffff
s_lshl_b32 s60, s{sW}, 16
s_lshl_b32 s61, s{sW}, 13
s_add_u32 s61, s61, {WQ}
""")
        self.tr_addr32(4, 7, 8, str(WQ), 57, False)
        for k in range(3):
            p(f"""
s_add_u32 s3, s{sJ}, {1+k}
s_and_b32 s3, s3, 3
s_mul_i32 s3, s3, 13824
s_add_u32 s3, s3, {OP + (2-k)*4608}
v_add_u32 v{118+k}, s3, v2
s_add_u32 s3, s3, 4096
v_lshl_add_u32 v{121+k}, v1, 2, s3
""")
        p("s_waitcnt vmcnt(6)\ns_barrier")
        self.stamp(1)
        self.batch0()
        def dma_wq(i):
            r = [f"s_mov_b32 m0, s61", f"s_add_u32 s61, s61, {1024 if i != 7 else 32768 - 7 * 1024}",
                 f"buffer_load_dwordx4 v9, {srd(rWQ)}, s60 offen lds", f"s_add_u32 s60, s60, {8192 if i != 7 else 262144 - 7 * 8192}"]
            return "\n".join(r)
        for i in range(4):
            p(dma_wq(i))
        p("s_waitcnt vmcnt(4)")
        ops = self.batch123_ops()
        nxt = 4
        for n, l in enumerate(ops):
            p(l)
            if n % 12 == 11 and nxt < 16:
                p(dma_wq(nxt)); nxt += 1
        assert nxt == 16
        self.stats_write([(48, 49, 50), (52, 53, 54), (56, 57, 58)])
        p(f"""
v_and_b32 v7, 27, v1
v_cmp_eq_u32 vcc, 16, v7
v_mov_b32 v7, s{sONE}
s_mov_b32 s56, {FKV}
v_cndmask_b32 v{V0}, 0, v7, vcc
""")
        for i in range(1, 24):
            p(f"v_mov_b32 v{V0+i}, v{V0}")
        p("s_waitcnt vmcnt(8) lgkmcnt(0)\ns_barrier")
        self.stamp(4)
        lq = Queue(p, "lgkmcnt", 15)
        p("ds_read_b32 v8, v5")
        lq.issue("r")
        def rd(s):
            b = 16 + 8 * (s % 4)
            p(f"ds_read_b64_tr_b16 {vr(b,2)}, v4 offset:{s*2048}\nds_read_b64_tr_b16 {vr(b+2,2)}, v4 offset:{s*2048+512}\nds_read_b128 {vr(b+4,4)}, v3 offset:{s*32}")
            for _ in range(3):
                lq.issue(s)
        poll = f"""
buffer_load_dwordx4 v[64:67], v125, {srd(rWS)}, s56 offen sc1
buffer_load_dwordx4 v[68:71], v125, {srd(rWS)}, s56 offen offset:16 sc1
buffer_load_dwordx2 v[72:73], v126, {srd(rWS)}, s56 offen sc1
"""
        for s in range(3):
            rd(s)
        for s in range(32):
            if s + 3 == 16:
                p("s_waitcnt vmcnt(0)\ns_barrier")
            if s == self.o.get("pollat", 20):
                p(poll)
            if s + 3 < 32:
                rd(s + 3)
            lq.wait(s)
            b = 16 + 8 * (s % 4)
            p(f"v_mfma_f32_32x32x16_bf16 v[48:63], {vr(b,4)}, {vr(b+4,4)}, {'0' if s == 0 else 'v[48:63]'}")
        p(f"""
v_mul_f32 v8, {hx(0.25*LOG2E)}, v8
s_lshl_b32 s57, s{sJ}, 15
s_add_u32 s57, s57, {KV}
s_add_u32 s58, s57, 2048
""")
        for k in range(4):
            p(f"s_add_u32 s3, s{sJ}, {1+k}\ns_and_b32 s3, s3, 3\ns_lshl_b32 s3, s3, 11\ns_add_u32 s3, s3, {QX}\nv_add_u32 v{(3,4,5,7)[k]}, s3, v2")
        for i in range(0, 16, 2):
            p(f"v_pk_mul_f32 {vr(48+i,2)}, {vr(48+i,2)}, v[8:9] op_sel_hi:[1,0]")
        for i in range(8):
            p(f"v_cvt_pk_bf16_f32 v{16+i}, v{48+2*i}, v{49+2*i}")
        p("ds_write_b128 v124, v[16:19]\nds_write_b128 v124, v[20:23] offset:2048")
        for r in range(4):
            for e in range(2):
                p(f"v_dot2_f32_bf16 v{48+e}, v{16+4*e+r}, v{16+4*e+r}, {'0' if r == 0 else f'v{48+e}'}")
        p("v_permlane32_swap_b32 v48, v49\nv_add_f32 v48, v48, v49\nds_max_u32 v12, v48 offset:4")
        self.cnt_signal(0, 12, 13)
        self.stamp(5)
        l, d = self.lab("kw"), self.lab("kd")
        p(f"""
s_mov_b32 s54, {SPIN}
{l}:
s_waitcnt vmcnt(0)
v_xor_b32 v64, s{sN}, v64
v_xor_b32 v66, s{sN}, v66
v_xor_b32 v68, s{sN}, v68
v_xor_b32 v70, s{sN}, v70
v_xor_b32 v72, s{sN}, v72
v_or3_b32 v64, v64, v66, v68
v_or3_b32 v64, v64, v70, v72
v_cmp_ne_u32 vcc, 0, v64
s_cbranch_vccz {d}
{poll}
s_sub_u32 s54, s54, 1
s_cmp_lg_u32 s54, 0
s_cbranch_scc1 {l}
s_waitcnt vmcnt(0)
{d}:
buffer_load_dwordx4 {vr(K0,4)}, v{vK}, {srd(rWS)}, s57 offen sc1
s_mov_b64 exec, s[68:69]
buffer_load_dwordx4 {vr(V0,4)}, v{vV}, {srd(rWS)}, s57 offen sc1
buffer_load_dwordx4 {vr(V0+4,4)}, v{vV}, {srd(rWS)}, s57 offen offset:512 sc1
buffer_load_dwordx4 {vr(V0+8,4)}, v{vV}, {srd(rWS)}, s58 offen sc1
buffer_load_dwordx4 {vr(V0+12,4)}, v{vV}, {srd(rWS)}, s58 offen offset:512 sc1
s_mov_b64 exec, -1
buffer_load_dwordx4 {vr(K0+4,4)}, v{vK}, {srd(rWS)}, s58 offen sc1
""")
        self.stamp(6)
        p(f"""
s_or_b32 s3, s2, s{sW}
s_cmp_lg_u32 s3, 0
s_cbranch_scc1 L_noE
v_mov_b32 v6, s{sN}
v_mov_b32 v8, 0
s_mov_b64 exec, 1
buffer_store_dword v6, v8, {srd(rWS)}, 0 offen sc1
s_mov_b64 exec, -1
s_waitcnt vmcnt(0)
L_noE:
v_max_u32 v65, v65, v69
v_max_u32 v67, v67, v71
v_and_b32 v73, 15, v73
v_cmp_ne_u32 vcc, s{sXCC}, v73
v_mov_b32 v6, {hx(2.0**40)}
v_cmp_nge_f32 s[60:61], v6, v67
s_cmp_eq_u64 vcc, 0
s_cselect_b32 s{sSAME}, {0 if self.o.get('nosame') else 1}, 0
v_mov_b32 v6, {hx(2.0**-40)}
v_cmp_le_f32 s[62:63], v6, v67
""")
        for i in range(8):
            p(f"v_mov_b32 v{SB+8+i}, 0")
        l, d = self.lab("qw"), self.lab("qd")
        p(f"""
s_mov_b32 s54, {SPIN}
{l}:
ds_read_b64 v[8:9], v12
s_waitcnt lgkmcnt(0)
v_readfirstlane_b32 s55, v8
s_cmp_ge_u32 s55, 4
s_cbranch_scc1 {d}
s_sub_u32 s54, s54, 1
s_cmp_lg_u32 s54, 0
s_cbranch_scc1 {l}
{d}:
""")
        for k in range(4):
            p(f"ds_read_b128 {vr(q0+8*k,4)}, v{(3,4,5,7)[k]}\nds_read_b128 {vr(q0+8*k+4,4)}, v{(3,4,5,7)[k]} offset:1024")
        p(f"""
v_mul_f32 v65, v65, v9
v_cmp_nge_f32 vcc, {hx(4096.0)}, v65
s_cmp_eq_u64 s[62:63], 0
s_cselect_b64 s[62:63], 1, 0
s_or_b64 s[60:61], s[60:61], s[62:63]
s_or_b64 s[60:61], s[60:61], vcc
s_waitcnt lgkmcnt(0)
""")
        if self.o.get("force_slow"):
            p("s_branch L_slow")
        else:
            p("s_cbranch_scc1 L_slow")
        self.stamp(7)
        S = [SA, SB]
        def qk(dst, kb, t):
            return f"v_mfma_f32_32x32x16_bf16 {vr(dst,16)}, {vr(kb,4)}, {vr(q0+4*t,4)}, 0"
        def pv(t, vb, sb):
            return f"v_smfmac_f32_32x32x32_bf16 {vr(o0+16*t,16)}, {vr(vb,4)}, {vr(sb,8)}, v{vI}"
        def opw(t):
            k, e = t >> 1, t & 1
            w = [f"ds_write_b128 v{118+k}, {vr(o0+16*t,4)} offset:{2048*e}",
                 f"ds_write_b128 v{118+k}, {vr(o0+16*t+4,4)} offset:{2048*e+1024}"]
            if e:
                w.append(f"ds_write2st64_b32 v{121+k}, v{o0+16*(t-1)+8}, v{o0+16*t+8} offset1:1")
            return w
        def tile(pb, last=False):
            Kc, Kn, Kp = K0 + 4 * pb, K0 + 4 * ((pb + 1) % 3), K0 + 4 * ((pb + 2) % 3)
            Vc, Vp = V0 + 8 * pb, V0 + 8 * ((pb + 2) % 3)
            for t in range(8):
                Xb, Yb = S[t & 1], S[(t + 1) & 1]
                wr = opw(t - 2) if (last and t >= 2) else []
                for i in range(16):
                    p(f"v_exp_f32 v{Xb+i}, v{Xb+i}")
                    if i == 1:
                        p(pv((t - 1) & 7, (Vp if t == 0 else Vc) + 4, Yb + 8))
                    if t == 0 and not last:
                        if i == 2:
                            p(f"s_add_u32 s58, s58, 2048\nbuffer_load_dwordx4 {vr(Kp,4)}, v{vK}, {srd(rWS)}, s58 offen sc1")
                        if i == 6:
                            p(f"s_mov_b64 exec, s[68:69]\nbuffer_load_dwordx4 {vr(Vp,4)}, v{vV}, {srd(rWS)}, s58 offen sc1")
                            p(f"buffer_load_dwordx4 {vr(Vp+4,4)}, v{vV}, {srd(rWS)}, s58 offen offset:512 sc1\ns_mov_b64 exec, -1")
                    if i == 4:
                        if t < 7:
                            p(qk(Yb, Kc, t + 1))
                        elif not last:
                            p("s_waitcnt vmcnt(3)")
                            p(qk(Yb, Kn, 0))
                    if i == 9:
                        p(pv(t, Vc, Xb))
                    if wr and i in (3, 7, 11):
                        p(wr.pop(0))
        p("s_waitcnt vmcnt(5)")
        p(qk(SA, K0, 0))
        p(f"s_add_u32 s59, s57, {16*2048}")
        p(f"s_setprio {self.o.get('prioA', 0)}")
        p("s_waitcnt vmcnt(3)")
        p("s_nop 8")
        p(".p2align 6\nL_att:")
        tile(0)
        tile(1)
        tile(2)
        p("s_cmp_lg_u32 s58, s59\ns_cbranch_scc1 L_att")
        self.stamp(8)
        self.cnt_wait(3, 4, 12, 6)
        tile(0, last=True)
        p("s_nop 1")
        p(pv(7, V0 + 4, SB + 8))
        p("L_att_done:")
        p(f"""
s_mul_i32 s3, s{sJ}, 13824
s_add_u32 s3, s3, {OP}
v_add_u32 v3, s3, v2
s_add_u32 s3, s3, 4096
v_lshl_add_u32 v4, v1, 2, s3
s_lshl_b32 s56, s{sTG}, 16
s_lshl_b32 s3, s{sCG}, 2
s_add_u32 s57, s3, s{sJ}
s_lshl_b32 s3, s57, 11
s_add_u32 s56, s56, s3
s_add_u32 s56, s56, {OF}
s_waitcnt vmcnt(0) lgkmcnt(0)
s_barrier
""")
        self.stamp(9)
        lq = Queue(p, "lgkmcnt", 15)
        for k in range(3):
            b = 16 + 18 * k
            for e in range(4):
                p(f"ds_read_b128 {vr(b+4*e,4)}, v3 offset:{k*4608+e*1024}")
                lq.issue(k)
            p(f"ds_read2st64_b32 {vr(b+16,2)}, v4 offset0:{k*18} offset1:{k*18+1}")
            lq.issue(k)
        for k in range(3):
            b = 16 + 18 * k
            lq.wait(k)
            for e in range(2):
                p(f"v_add_f32 v{o0+16*(6+e)+8}, v{o0+16*(6+e)+8}, v{b+16+e}")
            if k == 2:
                for e in range(2):
                    p(f"v_rcp_f32 v{8+2*e}, v{o0+16*(6+e)+8}")
            for e in range(2):
                for i in range(0, 8, 2):
                    r = o0 + 16 * (6 + e) + i
                    p(f"v_pk_add_f32 {vr(r,2)}, {vr(r,2)}, {vr(b+8*e+i,2)}")
        for e in range(2):
            for i in range(0, 8, 2):
                r = o0 + 16 * (6 + e) + i
                p(f"v_pk_mul_f32 {vr(r,2)}, {vr(r,2)}, {vr(8+2*e,2)} op_sel_hi:[1,0]")
            for i in range(4):
                r = o0 + 16 * (6 + e) + 2 * i
                p(f"v_cvt_pk_bf16_f32 v{96+4*e+i}, v{r}, v{r+1}")
            self.dual_store([f"buffer_store_dwordx4 {vr(96+4*e,4)}, v2, {srd(rWS)}, s56 offen offset:{1024*e}"])
        p(f"""
s_lshl_b32 s56, s{sTG}, 7
s_lshl_b32 s57, s57, 2
s_add_u32 s56, s56, s57
s_add_u32 s56, s56, {FO}
v_mov_b32 v6, s{sN}
v_mov_b32 v7, 0
s_waitcnt vmcnt(0)
s_mov_b64 exec, 1
""")
        self.dual_store([f"buffer_store_dword v6, v7, {srd(rWS)}, s56 offen"])
        p("s_mov_b64 exec, -1")
        self.stamp(10)
        p("s_branch L_final")
        m0 = V0 + 16
        p(f"L_slow:\ns_waitcnt vmcnt(0)")
        for t in range(8):
            p(f"v_mov_b32 v{m0+t}, 0xff800000")
        p(f"s_mov_b32 s58, {KV}\nL_slow_max:\nbuffer_load_dwordx4 {vr(K0+4,4)}, v{vK}, {srd(rWS)}, s58 offen sc1\ns_waitcnt vmcnt(0)")
        for t in range(8):
            p(qk(SA, K0 + 4, t))
            for i in range(0, 16, 2):
                p(f"v_max3_f32 v{m0+t}, v{SA+i}, v{SA+i+1}, v{m0+t}")
        p(f"s_add_u32 s58, s58, 2048\ns_cmp_lt_u32 s58, {KV + 64*2048}\ns_cbranch_scc1 L_slow_max")
        for t in range(8):
            p(f"v_mov_b32 v6, v{m0+t}\nv_permlane32_swap_b32 v6, v{m0+t}\nv_max_f32 v{m0+t}, v6, v{m0+t}")
        p(f"s_add_u32 s58, s57, {16*2048}\nL_slow_pv:")
        p(f"""
buffer_load_dwordx4 {vr(K0,4)}, v{vK}, {srd(rWS)}, s57 offen sc1
s_mov_b64 exec, s[68:69]
buffer_load_dwordx4 {vr(V0,4)}, v{vV}, {srd(rWS)}, s57 offen sc1
buffer_load_dwordx4 {vr(V0+4,4)}, v{vV}, {srd(rWS)}, s57 offen offset:512 sc1
s_mov_b64 exec, -1
s_waitcnt vmcnt(0)
""")
        for t in range(8):
            p(qk(SA, K0, t))
            for i in range(16):
                p(f"v_sub_f32 v{SA+i}, v{SA+i}, v{m0+t}")
            for i in range(16):
                p(f"v_exp_f32 v{SA+i}, v{SA+i}")
            p(pv(t, V0, SA))
            p(pv(t, V0 + 4, SA + 8))
        p("s_add_u32 s57, s57, 2048\ns_cmp_lt_u32 s57, s58\ns_cbranch_scc1 L_slow_pv")
        self.cnt_wait(3, 4, 12, 6)
        for t in range(6):
            for w in opw(t):
                p(w)
        p("s_branch L_att_done")

    def g_wave(self):
        p = self.p
        D1 = self.o.get("d1", 6); HD = self.o.get("hd", 4); WD = self.o.get("wd", 4)
        p(f"""
L_G:
s_min_u32 s3, s{sCG}, 3
s_mul_i32 s59, s{sCG}, 5
s_add_u32 s59, s59, s3
s_lshr_b32 s3, s{sJ}, 1
s_mul_i32 s3, s3, 3
s_add_u32 s59, s59, s3
s_and_b32 s3, s{sJ}, 1
s_cmp_lt_u32 s{sCG}, 3
s_cselect_b32 s60, 1, 0
s_cmp_lt_u32 s{sJ}, 2
s_cselect_b32 s60, 1, s60
s_and_b32 s61, s60, s3
s_add_u32 s59, s59, s61
s_add_u32 s61, s59, s3
s_xor_b32 s3, s3, 1
s_add_u32 s62, s59, s3
v_lshrrev_b32 v3, 2, v1
v_and_b32 v3, 8, v3
s_lshl_b32 s54, s61, 6
s_lshl_b32 s55, s62, 6
""")
        for a in range(4):
            p(f"buffer_load_dwordx2 {vr(112+2*a,2)}, v3, {srd(rB1)}, s54 offen offset:{16*a}")
        for a in range(4):
            p(f"buffer_load_dwordx2 {vr(120+2*a,2)}, v3, {srd(rB1)}, s55 offen offset:{16*a}")
        p(f"""
v_lshrrev_b32 v3, 4, v1
v_lshlrev_b32 v3, 8, v3
v_and_b32 v4, 15, v1
v_lshl_add_u32 v3, v4, 3, v3
v_add_u32 v3, {WKV}, v3
v_mov_b32 v62, 0
s_waitcnt vmcnt(14)
s_barrier
""")
        self.stamp(1)
        p(f"s_cmp_lg_u32 s{sW}, 7\ns_cbranch_scc1 L_nokvw\ns_setprio 3")
        for s in range(16):
            for t in range(2):
                p(f"ds_read_b64_tr_b16 {vr(128+4*s+2*t,2)}, v3 offset:{s*1024+t*128}")
        p("L_nokvw:")
        self.batch0()
        p(f"s_cmp_lg_u32 s{sW}, 7\ns_cbranch_scc1 L_nokv")
        self.kv_job()
        p("L_nokv:\ns_waitcnt vmcnt(8)")
        ops = self.batch123_ops()
        cut = self.o.get("kvcut", 60)
        for l in ops[:cut]:
            p(l)
        p(f"s_cmp_lg_u32 s{sW}, 7\ns_cbranch_scc1 L_nokvf")
        self.kv_flag()
        p("L_nokvf:")
        for l in ops[cut:]:
            p(l)
        self.stats_write([(48, 49, 50), (52, 53, 54), (56, 57, 58)])
        p(f"""
s_and_b32 s56, s{sJ}, 1
s_xor_b32 s57, s56, 1
v_and_b32 v5, 31, v1
v_lshrrev_b32 v6, 5, v1
s_lshl_b32 s3, s56, 5
v_add_u32 v7, s3, v5
v_mul_u32_u24 v3, {XS}, v7
v_lshl_add_u32 v3, v6, 4, v3
v_lshlrev_b32 v128, 2, v7
s_lshl_b32 s3, s57, 5
v_add_u32 v7, s3, v5
v_mul_u32_u24 v4, {XS}, v7
v_lshl_add_u32 v4, v6, 4, v4
v_lshlrev_b32 v129, 2, v7
v_add_u32 v128, {ST+256}, v128
v_add_u32 v129, {ST+256}, v129
s_lshl_b32 s63, s{sJ}, 14
s_add_u32 s63, s63, {WQ}
v_mul_u32_u24 v7, 2752, v15
v_lshl_add_u32 v7, v14, 4, v7
s_lshl_b32 s3, s59, 6
v_add_u32 v7, s3, v7
v_and_b32 v132, 7, v1
v_lshlrev_b32 v132, 3, v132
s_lshl_b32 s3, s{sTG}, 6
s_add_u32 s3, s3, {FKV}
v_add_u32 v132, s3, v132
""")
        self.tr_addr32(5, 6, 8, "s63", 56, False)
        p(f"""
v_xor_b32 v6, 64, v5
s_lshl_b32 s58, s{sJ}, 12
s_add_u32 s58, s58, {WKV}
s_sub_u32 s3, s58, s63
v_add_u32 v130, s3, v5
v_add_u32 v131, s3, v6
s_waitcnt vmcnt(0)
""")
        for i in range(16):
            p(f"v_lshlrev_b32 v{16+2*i}, 16, v{112+i}\nv_and_b32 v{17+2*i}, 0xffff0000, v{112+i}")
        p("s_waitcnt lgkmcnt(0)\ns_barrier")
        self.stamp(4)
        vq = Queue(p, "vmcnt", 63)
        lq = Queue(p, "lgkmcnt", 15)
        p(f"""
s_mov_b32 s50, 0
s_mul_i32 s51, s{sJ}, 22
s_cmp_eq_u32 s{sJ}, 3
s_cselect_b32 s51, 65, s51
s_lshl_b32 s67, s51, 11
s_lshl_b32 s51, s51, 14
""")
        slot1 = lambda s: (s - 2) % 8
        def dma_w1(s):
            for i in range(2):
                base, off = ("s58", s * 2048) if s < 2 else ("s63", slot1(s) * 2048)
                p(f"s_add_u32 m0, {base}, {off + i * 1024}\ns_nop 0\nbuffer_load_dwordx4 v7, {srd(rW1)}, s50 offen lds\ns_add_u32 s50, s50, {8*2752}")
                vq.issue(("w1", s))
        def dma_w2(i, base, slot):
            if i == 21:
                p(f"s_min_u32 s51, s51, {85*16384}")
            for h in range(2):
                p(f"s_add_u32 m0, s{base}, {slot * 2048 + h * 1024}\ns_nop 0\nbuffer_load_dwordx4 v9, {srd(rW2)}, s51 offen lds\ns_add_u32 s51, s51, 8192")
                vq.issue(("w2", i))
        def rd1(s):
            b = 96 + 16 * (s & 1)
            a0, a1, o = (130, 131, s * 2048) if s < 2 else (5, 6, slot1(s) * 2048)
            p(f"ds_read_b64_tr_b16 {vr(b,2)}, v{a0} offset:{o}\nds_read_b64_tr_b16 {vr(b+2,2)}, v{a0} offset:{o+512}")
            p(f"ds_read_b128 {vr(b+8,4)}, v3 offset:{s*32}\nds_read_b128 {vr(b+12,4)}, v4 offset:{s*32}")
            p(f"ds_read_b64_tr_b16 {vr(b+4,2)}, v{a1} offset:{o}\nds_read_b64_tr_b16 {vr(b+6,2)}, v{a1} offset:{o+512}")
            for _ in range(6):
                lq.issue(s)
        def nxt_dma(v):
            if v < 32:
                dma_w1(v)
            elif v < 40:
                dma_w2(v - 32, 63, slot1(v))
        p("s_barrier")
        dma_w1(0); dma_w1(1)
        p("ds_read_b32 v10, v128\nds_read_b32 v14, v129")
        self.cnt_wait(0, 4, 12, 8)
        self.stamp(5)
        for s in range(2, D1):
            dma_w1(s)
        vq.wait(("w1", 0))
        rd1(0)
        for s in range(32):
            if s + 1 < 32:
                vq.wait(("w1", s + 1))
                rd1(s + 1)
            lq.wait(s)
            nxt_dma(s + D1)
            if s == 16:
                p(f"buffer_load_dwordx2 v[134:135], v132, {srd(rWS)}, 0 offen sc1")
                vq.issue("x")
            b = 96 + 16 * (s & 1)
            c = lambda a: "0" if s == 0 else vr(a, 16)
            p(f"v_mfma_f32_32x32x16_bf16 v[48:63], {vr(b,4)}, {vr(b+8,4)}, {c(48)}")
            p(f"v_mfma_f32_32x32x16_bf16 v[64:79], {vr(b,4)}, {vr(b+12,4)}, {c(64)}")
            p(f"v_mfma_f32_32x32x16_bf16 v[80:95], {vr(b+4,4)}, {vr(b+8,4)}, {c(80)}")
        for v in range(32 + D1, 40):
            nxt_dma(v)
        assert "x" not in vq.q
        self.stamp(6)
        c2 = 2 * math.sqrt(2 / math.pi) * LOG2E
        p(f"""
s_setprio {self.o.get('prioGv', 3)}
v_and_b32 v135, 15, v135
v_cmp_ne_u32 vcc, s{sN}, v134
v_cmp_ne_u32 s[48:49], s{sXCC}, v135
v_mov_b32 v128, {hx(-c2)}
v_mov_b32 v129, {hx(-c2)}
s_or_b64 s[48:49], s[48:49], vcc
s_cselect_b32 s{sSAME}, 0, {0 if self.o.get('nosame') or self.o.get('hsc1') else 1}
s_mov_b32 s48, {hx(-c2*0.044715)}
s_mov_b32 s49, {hx(-c2*0.044715)}
s_mul_i32 s54, s{sTG}, {HTG}
s_add_u32 s54, s54, {HF}
s_add_u32 s67, s67, s54
s_lshl_b32 s3, s61, 12
s_add_u32 s50, s54, s3
s_lshl_b32 s3, s56, 10
s_add_u32 s55, s50, s3
s_lshl_b32 s58, s62, 12
s_add_u32 s58, s58, s54
s_add_u32 s58, s58, s3
s_lshl_b32 s3, s57, 10
s_add_u32 s50, s50, s3
""")
        def gelu_pair(acc, bias, rr, t, out):
            return [
                f"v_pk_fma_f32 {vr(acc,2)}, {vr(acc,2)}, {vr(rr,2)}, {vr(bias,2)} op_sel_hi:[1,0,1]",
                f"v_pk_mul_f32 {vr(t,2)}, {vr(acc,2)}, {vr(acc,2)}",
                f"v_pk_fma_f32 {vr(t,2)}, {vr(t,2)}, s[48:49], v[128:129]",
                f"v_pk_mul_f32 {vr(t,2)}, {vr(t,2)}, {vr(acc,2)}",
                f"v_exp_f32 v{t}, v{t}", f"v_exp_f32 v{t+1}, v{t+1}",
                f"v_pk_add_f32 {vr(t,2)}, {vr(t,2)}, 1.0 op_sel_hi:[1,0]",
                f"v_rcp_f32 v{t}, v{t}", f"v_rcp_f32 v{t+1}, v{t+1}",
                f"v_pk_mul_f32 {vr(acc,2)}, {vr(acc,2)}, {vr(t,2)}",
                f"v_cvt_pk_bf16_f32 v{out}, v{acc}, v{acc+1}"]
        for ti, (acc, bias, rr, so) in enumerate(((48, 16, 10, 55), (64, 16, 14, 50), (80, 32, 10, 58))):
            if ti == 2:
                p("s_cmp_eq_u32 s60, 0\ns_cbranch_scc1 L_nohalf")
            for e in range(2):
                ls = [gelu_pair(acc + 8 * e + 2 * k, bias + 8 * e + 2 * k, rr, 136 + 2 * k, 160 + 8 * ti + 4 * e + k) for k in range(4)]
                for l in self.merge(*ls):
                    p(l)
                self.dual_store([f"buffer_store_dwordx4 {vr(160+8*ti+4*e,4)}, v2, {srd(rWS)}, s{so} offen offset:{2048*e}"])
        p(f"""
L_nohalf:
s_setprio 0
s_lshl_b32 s56, s{sTG}, 7
s_add_u32 s56, s56, {FH}
s_lshl_b32 s3, s{sCG}, 2
s_add_u32 s3, s3, s{sJ}
s_lshl_b32 s3, s3, 2
s_add_u32 s57, s56, s3
v_mov_b32 v16, s{sN}
v_mov_b32 v17, 0
v_and_b32 v18, 31, v1
v_lshlrev_b32 v18, 2, v18
s_mul_i32 s62, s{sJ}, {XSL}
""")
        self.tr_addr32(5, 6, 8, "s63", None, True)
        p(f"""
v_xor_b32 v6, 64, v5
s_sub_u32 s3, s62, s63
v_add_u32 v3, s3, v5
v_add_u32 v4, s3, v6
v_and_b32 v7, 6, v15
v_and_b32 v8, 7, v1
v_xor_b32 v7, v7, v8
v_lshlrev_b32 v7, 4, v7
v_lshl_add_u32 v7, v15, 10, v7
s_lshl_b32 s3, s{sCG}, 7
v_add_u32 v7, s3, v7
s_lshl_b32 s61, s{sJ}, 17
s_waitcnt vmcnt(0)
s_mov_b64 exec, 1
""")
        self.dual_store([f"buffer_store_dword v16, v17, {srd(rWS)}, s57 offen"])
        p("s_mov_b64 exec, -1")
        vq.q = []
        self.stamp(7)
        p(f"s_add_u32 s58, s54, {85*2048}")
        self.flag_wait(18, 56, 19, sleep=2)
        self.stamp(8)
        def ld_h(i):
            if i == 21:
                p("s_min_u32 s67, s67, s58")
            b = 128 + 8 * (i % HD)
            p(f"buffer_load_dwordx4 {vr(b,4)}, v2, {srd(rWS)}, s67 offen sc1\nbuffer_load_dwordx4 {vr(b+4,4)}, v2, {srd(rWS)}, s67 offen offset:1024 sc1\ns_add_u32 s67, s67, 2048")
            vq.issue(("h", i)); vq.issue(("h", i))
        def dma_wo(i):
            p(f"s_add_u32 m0, s63, {i * 1024}\ns_nop 0\nbuffer_load_dwordx4 v7, {srd(rWO)}, s61 offen lds\ns_add_u32 s61, s61, 8192")
            vq.issue(("wo", i))
        def rd2(i):
            b = 112 + 8 * (i & 1)
            a0, a1 = (5, 6) if i < 8 else (3, 4)
            o = (slot1(32 + i) if i < 8 else i % 8) * 2048
            p(f"ds_read_b64_tr_b16 {vr(b,2)}, v{a0} offset:{o}\nds_read_b64_tr_b16 {vr(b+2,2)}, v{a0} offset:{o+1024}")
            p(f"ds_read_b64_tr_b16 {vr(b+4,2)}, v{a1} offset:{o}\nds_read_b64_tr_b16 {vr(b+6,2)}, v{a1} offset:{o+1024}")
            for _ in range(4):
                lq.issue(i)
        for i in range(HD):
            ld_h(i)
        rd2(0)
        for i in range(22):
            if i + 1 < 22:
                vq.wait(("w2", i + 1))
                rd2(i + 1)
            vq.wait(("h", i))
            lq.wait(i)
            if i == 21:
                p(f"s_cmp_ge_u32 s{sJ}, 2\ns_cbranch_scc1 L_skip21")
            b = 112 + 8 * (i & 1)
            h = 128 + 8 * (i % HD)
            for mh in range(2):
                for nb in range(2):
                    a = 48 + 16 * (2 * mh + nb)
                    p(f"v_mfma_f32_32x32x16_bf16 {vr(a,16)}, {vr(b+4*nb,4)}, {vr(h+4*mh,4)}, {'0' if i == 0 else vr(a,16)}")
            if i + HD < 22:
                ld_h(i + HD)
            if 8 <= i + WD < 22:
                dma_w2(i + WD, 62, (i + WD) % 8)
            if 13 <= i < 21:
                dma_wo(2 * (i - 13)); dma_wo(2 * (i - 13) + 1)
        p("L_skip21:")
        self.stamp(9)
        p(f"""
s_setprio {self.o.get('prioGv', 3)}
v_lshrrev_b32 v8, 4, v1
v_lshlrev_b32 v16, 3, v8
s_lshl_b32 s3, s{sCG}, 7
""")
        for nt in range(4):
            p(f"buffer_load_dwordx2 {vr(192+2*nt,2)}, v16, {srd(rB2)}, s3 offen offset:{32*nt}")
        p(f"""
v_and_b32 v3, 31, v1
v_and_b32 v4, 15, v1
v_lshrrev_b32 v5, 5, v1
v_xor_b32 v5, v5, v4
v_lshlrev_b32 v5, 4, v5
v_lshl_add_u32 v5, v3, 8, v5
v_add_u32 v5, s62, v5
""")
        for nb in range(2):
            for a in range(4):
                p(f"v_xor_b32 v{6 + (a & 1)}, {(8*nb+2*a) << 4}, v5")
                for mh in range(2):
                    p(f"ds_write_b128 v{6 + (a & 1)}, {vr(48+16*(2*mh+nb)+4*a,4)} offset:{8192*mh}")
        p(f"""
s_lshl_b32 s3, s{sJ}, 12
v_xor_b32 v5, v8, v4
v_lshlrev_b32 v5, 4, v5
v_lshl_add_u32 v5, v4, 8, v5
v_add_u32 v5, s3, v5
s_waitcnt vmcnt(0) lgkmcnt(0)
""")
        self.cnt_signal(2, 12, 13)
        for i in range(8):
            p(f"v_lshlrev_b32 v{16+2*i}, 16, v{192+i}\nv_and_b32 v{17+2*i}, 0xffff0000, v{192+i}")
        p(f"s_setprio 0")
        self.cnt_wait(2, 4, 12, 8)
        p(f"s_setprio {self.o.get('prioGv', 3)}")
        lq.q = []
        for nt in range(4):
            if nt:
                p(f"v_xor_b32 v6, {nt << 6}, v5")
            for kq in range(4):
                p(f"ds_read_b128 {vr(48+16*nt+4*kq,4)}, v{6 if nt else 5} offset:{kq*XSL}")
                lq.issue(nt)
        p(f"s_lshl_b32 s3, s{sJ}, 11\ns_add_u32 s3, s3, {GA}\nv_add_u32 v7, s3, v2\ns_mov_b32 s48, {hx(-LOG2E)}\ns_mov_b32 s49, {hx(-LOG2E)}")
        for nt in range(4):
            lq.wait(nt)
            z = 16 + 4 * nt
            def silu_pair(r, t):
                o = [f"v_pk_add_f32 {vr(r,2)}, {vr(r,2)}, {vr(48+16*nt+4*kq+(r-z),2)}" for kq in range(4)]
                return o + [f"v_pk_mul_f32 {vr(t,2)}, {vr(r,2)}, s[48:49]",
                            f"v_exp_f32 v{t}, v{t}", f"v_exp_f32 v{t+1}, v{t+1}",
                            f"v_pk_add_f32 {vr(t,2)}, {vr(t,2)}, 1.0 op_sel_hi:[1,0]",
                            f"v_rcp_f32 v{t}, v{t}", f"v_rcp_f32 v{t+1}, v{t+1}",
                            f"v_pk_mul_f32 {vr(r,2)}, {vr(r,2)}, {vr(t,2)}"]
            for l in self.merge(silu_pair(z, 32), silu_pair(z + 2, 34)):
                p(l)
            p(f"ds_write_b128 v7, {vr(z,4)} offset:{(nt >> 1) * 8192 + (nt & 1) * 1024}")
            lq.issue("w")
        p("s_waitcnt lgkmcnt(0)")
        self.cnt_signal(3, 12, 13)
        p("s_setprio 0")
        self.stamp(10)
        p("s_barrier")

    def final(self):
        p = self.p
        p("L_final:")
        p(f"""
s_lshr_b32 s56, s{sW}, 2
v_lshrrev_b32 v3, 4, v1
v_and_b32 v4, 15, v1
s_lshl_b32 s3, s{sJ}, 4
v_add_u32 v5, s3, v4
v_lshlrev_b32 v5, 10, v5
v_lshl_add_u32 v5, v3, 3, v5
s_lshl_b32 s57, s{sTG}, 16
s_lshl_b32 s3, s{sCG}, 7
s_add_u32 s57, s57, s3
s_lshl_b32 s3, s56, 6
s_add_u32 s57, s57, s3
buffer_load_dwordx2 v[16:17], v5, {srd(rX)}, s57 offen
buffer_load_dwordx2 v[18:19], v5, {srd(rX)}, s57 offen offset:32
s_lshl_b32 s3, s{sW}, 11
s_add_u32 s3, s3, {GA}
v_add_u32 v6, s3, v2
ds_read_b128 v[20:23], v6
ds_read_b128 v[24:27], v6 offset:1024
v_bfe_u32 v8, v1, 2, 3
v_lshlrev_b32 v9, 7, v8
v_lshrrev_b32 v8, 1, v8
s_lshl_b32 s3, s56, 1
v_xor_b32 v8, s3, v8
v_lshl_or_b32 v9, v8, 5, v9
v_and_b32 v8, 3, v1
v_lshl_or_b32 v9, v8, 3, v9
v_lshrrev_b32 v8, 5, v1
v_lshl_or_b32 v9, v8, 11, v9
s_lshl_b32 s3, s56, 15
s_add_u32 s3, s3, {WQ}
v_add_u32 v8, s3, v9
v_xor_b32 v9, 32, v8
v_xor_b32 v10, 64, v8
v_xor_b32 v11, 96, v8
""")
        for s in range(8):
            for nt in range(4):
                for t in range(2):
                    p(f"ds_read_b64_tr_b16 {vr(128+16*s+4*nt+2*t,2)}, v{8+nt} offset:{s*4096+t*1024}")
        p(f"""
v_and_b32 v14, 31, v1
v_lshlrev_b32 v14, 2, v14
s_lshl_b32 s58, s{sTG}, 7
s_add_u32 s58, s58, {FO}
v_and_b32 v7, 1, v3
v_lshlrev_b32 v7, 9, v7
v_lshrrev_b32 v15, 1, v3
v_lshl_add_u32 v7, v15, 11, v7
v_lshl_add_u32 v7, v4, 4, v7
s_lshl_b32 s59, s{sTG}, 16
s_lshl_b32 s3, s56, 15
s_add_u32 s59, s59, s3
s_lshr_b32 s3, s{sJ}, 1
s_lshl_b32 s3, s3, 10
s_add_u32 s59, s59, s3
s_and_b32 s3, s{sJ}, 1
s_lshl_b32 s3, s3, 8
s_add_u32 s59, s59, s3
s_add_u32 s59, s59, {OF}
""")
        p(f"s_cmp_lg_u32 s{sW}, 7\ns_cbranch_scc1 L_nopoll")
        self.flag_wait(14, 58, 15, sleep=0)
        p("L_nopoll:\ns_barrier")
        self.stamp(11)
        vq = Queue(p, "vmcnt", 63)
        for s in range(8):
            p(f"buffer_load_dwordx4 {vr(64+4*s,4)}, v7, {srd(rWS)}, s59 offen sc1\ns_add_u32 s59, s59, 4096")
            vq.issue(s)
        p("s_waitcnt vmcnt(8)")
        for i in range(4):
            p(f"v_lshlrev_b32 v{28+2*i}, 16, v{16+i}\nv_and_b32 v{29+2*i}, 0xffff0000, v{16+i}")
        p("s_waitcnt lgkmcnt(0)")
        for s in range(8):
            vq.wait(s)
            for nt in (2, 3, 0, 1):
                p(f"v_mfma_f32_16x16x32_bf16 {vr(48+4*nt,4)}, {vr(128+16*s+4*nt,4)}, {vr(64+4*s,4)}, {'0' if s == 0 else vr(48+4*nt,4)}")
        p(f"""
s_xor_b32 s3, s{sW}, 4
s_lshl_b32 s3, s3, 11
s_add_u32 s3, s3, {GA}
v_add_u32 v7, s3, v2
ds_write_b128 v6, v[56:59]
ds_write_b128 v6, v[60:63] offset:1024
s_waitcnt lgkmcnt(0)
s_barrier
ds_read_b128 v[56:59], v7
ds_read_b128 v[60:63], v7 offset:1024
""")
        for e in range(2):
            p(f"s_waitcnt lgkmcnt({1-e})")
            for i in range(0, 4, 2):
                r = 48 + 4 * e + i
                p(f"v_pk_add_f32 {vr(r,2)}, {vr(r,2)}, {vr(r+8,2)}")
            for i in range(0, 4, 2):
                r = 48 + 4 * e + i
                p(f"v_pk_fma_f32 {vr(r,2)}, {vr(r,2)}, {vr(20+4*e+i,2)}, {vr(28+4*e+i,2)}")
            for i in range(2):
                p(f"v_cvt_pk_bf16_f32 v{16+2*e+i}, v{48+4*e+2*i}, v{49+4*e+2*i}")
            p(f"buffer_store_dwordx2 {vr(16+2*e,2)}, v5, {srd(rOUT)}, s57 offen offset:{32*e} {('', 'sc1', 'nt', 'sc0 sc1')[self.o.get('outf', 0)]}")
        if self.stamps:
            p("s_waitcnt vmcnt(0)")
            self.stamp(12)
            p(f"s_lshl_b32 s3, s2, 3\ns_add_u32 s3, s3, s{sW}\ns_lshl_b32 s3, s3, 7\ns_add_u32 s3, s3, {STAMP}\nv_mov_b32 v7, 0")
            for i in range(0, 24, 4):
                for k in range(4):
                    p(f"v_mov_b32 v{16+k}, s{72+i+k}")
                p(f"buffer_store_dwordx4 v[16:19], v7, {srd(rWS)}, s3 offen offset:{4*i}")
        if "fix" in self.o:
            p(f"s_waitcnt vmcnt(0)\nL_fix:\ns_memrealtime s[94:95]\ns_waitcnt lgkmcnt(0)\ns_sub_u32 s94, s94, s92\ns_cmp_lt_u32 s94, 10000\ns_cbranch_scc1 L_fix")
        p("L_exit:\ns_endpgm\nL_code_end:")

    def build(self, verbose=False):
        if self.stamps:
            for i in range(16):
                pass
        self.entry()
        self.role = 1
        self.a_wave()
        self.role = 2
        self.g_wave()
        self.role = 3
        self.final()
        ins = self.p.fix_hazards(verbose)
        head = open(f"cdna_kernels/{NAME}.s.ref").read().split("; Override launch")[0]
        return (head + f"; @launch grid=(256,1,1) block=(512,1,1) lds={LDS_BYTES}\n"
                + f""".amdgcn_target "amdgcn-amd-amdhsa--gfx950"
.text
.globl {NAME}_kernel
.p2align 8
.type {NAME}_kernel,@function
{NAME}_kernel:
""" + self.p.text() + f""".section .rodata,"a"
.p2align 6
.amdhsa_kernel {NAME}_kernel
  .amdhsa_next_free_vgpr 256
  .amdhsa_next_free_sgpr 102
  .amdhsa_accum_offset 256
  .amdhsa_group_segment_fixed_size 0
  .amdhsa_kernarg_size 104
  .amdhsa_user_sgpr_count 2
  .amdhsa_user_sgpr_kernarg_segment_ptr 1
  .amdhsa_system_sgpr_workgroup_id_x 1
  .amdhsa_float_denorm_mode_32 3
.end_amdhsa_kernel
""")


if __name__ == "__main__":
    out = sys.argv[1]
    opts = {}
    stamps = False
    for a in sys.argv[2:]:
        if a == "stamps":
            stamps = True
        elif a == "-v":
            opts["v"] = 1
        else:
            k, v = a.split("=")
            opts[k] = int(v)
    open(out, "w").write(Gen(stamps, opts).build(bool(opts.get("v"))))
```

```python
import sys, struct, math
from asmlib import Prog, Queue

NAME = "recurrent_scan__grouped_kv_mqa__mixer_channel_mlp__prompt"

def f2u(x):
    return struct.unpack("<I", struct.pack("<f", x))[0]
def hx(x):
    return f"0x{f2u(x):08x}"

X = 0; XS = 1040; XSL = 16640
WQ = 66560
WKV = 132096; GA = WKV
QX = 148480
ST = 156672
CNT = 157184
LDS_BYTES = 157696
OP = X; GP = X
FKV = 0x4000; FH = 0x2000; FO = 0x3000
KV = 0x10000; OF = 0x40000; HF = 0x240000; HTG = 86 * 2048
STAMP = 0x800000
WS_RANGE = 0x1000000
rX, rWS, rWQ, rWKV, rW1, rW2, rWO, rB1, rB2, rOUT = 4, 8, 12, 16, 20, 24, 28, 32, 36, 40
sW, sTG, sCG, sN, sTB, sJ = 44, 45, 46, 47, 52, 53
sONE, sLO, sHI = 64, 65, 66
sXCC, sSAME, sPOS = 100, 101, 1
srd = lambda r: f"s[{r}:{r+3}]"
vr = lambda a, n: f"v[{a}:{a+n-1}]"
LOG2E = 1.4426950408889634
SPIN = 1 << 20


class Gen:
    def __init__(self, stamps=False, opts=None):
        self.p = Prog()
        self.stamps = stamps
        self.o = opts or {}
        self.uid = 0
        self.role = 0

    def lab(self, s):
        self.uid += 1
        return f"L_{s}_{self.uid}"

    def xstamp(self, sset, i):
        if self.o.get("sset", 0) == sset:
            self.stamp(i)

    def stamp(self, i):
        if self.o.get("fix", -1) == i + 100 * self.role:
            self.p("s_waitcnt lgkmcnt(0)\ns_memrealtime s[92:93]\ns_waitcnt lgkmcnt(0)")
        if self.stamps:
            k = self.slot(i)
            if k is not None:
                self.p(f"s_memrealtime s[{70+2*k}:{71+2*k}]")

    def slot(self, i):
        drop = {0: (), 1: (9, 10, 11), 2: (1, 2, 3), 3: (9, 10, 11)}[self.o.get("sset", 0)]
        if i in drop:
            return None
        return drop[i - 13] if i >= 13 else i

    def cnt_signal(self, k, vaddr, vone):
        self.p(f"s_mov_b64 exec, 1\nds_add_u32 v{vaddr}, v{vone} offset:{4*k}\ns_mov_b64 exec, -1")

    def cnt_wait(self, k, target, vaddr, vt, sleep=1):
        p = self.p
        l, d = self.lab("cw"), self.lab("cd")
        p(f"s_mov_b32 s54, {SPIN}\n{l}:\nds_read_b32 v{vt}, v{vaddr} offset:{4*k}\ns_waitcnt lgkmcnt(0)")
        p(f"v_readfirstlane_b32 s55, v{vt}\ns_cmp_ge_u32 s55, {target}\ns_cbranch_scc1 {d}")
        if sleep:
            p(f"s_sleep {sleep}")
        p(f"s_sub_u32 s54, s54, 1\ns_cmp_lg_u32 s54, 0\ns_cbranch_scc1 {l}\n{d}:")

    def flag_wait(self, vaddr, soff, vt, sleep=1):
        p = self.p
        l, d = self.lab("fw"), self.lab("fd")
        p(f"s_mov_b32 s54, {SPIN}\n{l}:\nbuffer_load_dword v{vt}, v{vaddr}, {srd(rWS)}, s{soff} offen sc1\ns_waitcnt vmcnt(0)")
        p(f"v_cmp_ne_u32 vcc, s{sN}, v{vt}\ns_cbranch_vccz {d}")
        if sleep:
            p(f"s_sleep {sleep}")
        p(f"s_sub_u32 s54, s54, 1\ns_cmp_lg_u32 s54, 0\ns_cbranch_scc1 {l}\n{d}:")

    @staticmethod
    def merge(*lists):
        out = []
        n = max(len(l) for l in lists)
        for i in range(n):
            for l in lists:
                if i < len(l):
                    out.append(l[i])
        return out

    def entry(self):
        p = self.p
        if self.stamps:
            p("s_memrealtime s[70:71]")
        if "fix" in self.o:
            p("s_memrealtime s[92:93]")
        p(f"""
s_load_dwordx2 s[{rX}:{rX+1}], s[0:1], 0
s_load_dwordx4 s[48:51], s[0:1], 16
s_load_dwordx2 s[{rWS}:{rWS+1}], s[0:1], 96
s_load_dwordx2 s[{rWQ}:{rWQ+1}], s[0:1], 8
s_cmp_ge_u32 s2, 256
s_cbranch_scc1 L_exit
s_getpc_b64 s[54:55]
L_pc:
v_lshlrev_b32 v3, 6, v0
v_min_u32 v3, L_code_end-L_pc-4, v3
v_mov_b32 v5, s55
v_add_co_u32 v4, vcc, s54, v3
v_lshrrev_b32 v7, 6, v0
v_and_b32 v1, 63, v0
v_addc_co_u32 v5, vcc, 0, v5, vcc
v_readfirstlane_b32 s{sW}, v7
global_load_dword v6, v[4:5], off
s_load_dwordx2 s[{rW1}:{rW1+1}], s[0:1], 48
s_load_dwordx2 s[{rB1}:{rB1+1}], s[0:1], 56
s_load_dwordx2 s[{rW2}:{rW2+1}], s[0:1], 64
s_load_dwordx2 s[{rB2}:{rB2+1}], s[0:1], 72
s_load_dwordx2 s[{rOUT}:{rOUT+1}], s[0:1], 80
s_load_dwordx2 s[{rWO}:{rWO+1}], s[0:1], 32
s_and_b32 s3, s2, 7
s_lshr_b32 s54, s2, 3
s_and_b32 s{sCG}, s54, 7
s_lshr_b32 s54, s54, 3
s_lshl_b32 s3, s3, 2
s_add_u32 s{sTG}, s3, s54
s_and_b32 s55, s2, 6
s_lshl_b32 s55, s55, 1
s_add_u32 s55, s55, s54
s_lshl_b32 s55, s55, 1
s_and_b32 s3, s2, 1
s_add_u32 s55, s55, s3
s_lshr_b32 s{sTB}, s{sCG}, 1
s_and_b32 s{sJ}, s{sW}, 3
v_lshlrev_b32 v2, 4, v1
v_lshrrev_b32 v3, 4, v1
v_and_b32 v4, 15, v1
v_lshlrev_b32 v8, 10, v3
v_lshl_add_u32 v8, v4, 4, v8
s_mov_b32 s{rX+2}, 2097152
s_mov_b32 s{rX+3}, 0x20000
s_lshr_b32 s3, s{sW}, 2
s_add_u32 s3, s3, s{sTB}
s_and_b32 s3, s3, 3
s_lshl_b32 s3, s3, 2
s_add_u32 s57, s3, s{sJ}
s_lshl_b32 s57, s57, 2
s_lshl_b32 s56, s{sTG}, 16
s_lshl_b32 s58, s57, 10
s_add_u32 s58, s58, s56
v_mov_b32 v12, {CNT}
v_mov_b32 v10, 0
v_mov_b32 v11, 0
s_mov_b64 exec, 15
v_lshl_add_u32 v13, v1, 3, v12
ds_write_b64 v13, v[10:11]
s_mov_b64 exec, -1
s_and_b32 s3, s{sCG}, 1
s_cmp_eq_u32 s3, 0
s_waitcnt lgkmcnt(0)
s_cselect_b32 s{rWKV}, s48, s50
s_cselect_b32 s{rWKV+1}, s49, s51
s_mov_b32 s{sPOS}, s55
""")
        self.xstamp(3, 13)
        p(f"""
s_mov_b32 s{rWKV+2}, 16384
s_mov_b32 s{rWKV+3}, 0x20000
s_cmp_lg_u32 s{sW}, 7
s_cbranch_scc1 L_nowkv
""")
        for i in range(4):
            p(f"s_mov_b32 m0, {WKV + 4096 * i}\ns_mov_b32 s3, {4096 * i}")
            for k in range(4):
                p(f"buffer_load_dwordx4 v2, {srd(rWKV)}, s3 offen offset:{1024 * k} lds")
        p("L_nowkv:")
        for i in range(4):
            p(f"buffer_load_dwordx4 {vr(16+4*i,4)}, v8, {srd(rX)}, s58 offen offset:{256*i}")
        p(f"""
s_load_dword s{sN}, s[{rWS}:{rWS+1}], 0
s_getreg_b32 s{sXCC}, hwreg(HW_REG_XCC_ID, 0, 4)
v_lshrrev_b32 v15, 3, v1
v_and_b32 v5, 7, v1
""")
        for r, n in ((rWS, WS_RANGE), (rWQ, 524288), (rW1, 512 * 2752), (rW2, 1376 * 1024), (rWO, 524288),
                     (rB1, 2752), (rB2, 1024), (rOUT, 2097152)):
            p(f"s_mov_b32 s{r+2}, {n}\ns_mov_b32 s{r+3}, 0x20000")
        p(f"s_mov_b32 s{sONE}, 0x3f803f80\ns_mov_b32 s{sLO}, 0x00003f80\ns_mov_b32 s{sHI}, 0x3f800000")
        p(f"""
v_add_u32 v3, s57, v3
v_mul_u32_u24 v10, {XS}, v3
v_lshl_add_u32 v10, v4, 4, v10
v_lshlrev_b32 v11, 2, v3
v_add_u32 v11, {ST}, v11
v_mov_b32 v13, 1
""")
        p(f"s_cmp_ge_u32 s{sW}, 4\ns_cbranch_scc1 L_G")

    def unit(self, a, n, dpps, step, vadr, vst, mask, tmp):
        p = self.p
        tA, tB = tmp, tmp + 1
        T = tmp + 2
        for k in range(n):
            p(f"v_dot2_f32_bf16 v{tA}, v{a+k}, s{sONE}, {'0' if k == 0 else f'v{tA}'}")
            p(f"v_dot2_f32_bf16 v{tB}, v{a+k}, v{a+k}, {'0' if k == 0 else f'v{tB}'}")
        for c in dpps:
            p(f"v_add_f32_dpp v{tA}, v{tA}, v{tA} {c} row_mask:0xf bank_mask:0xf")
            p(f"v_add_f32_dpp v{tB}, v{tB}, v{tB} {c} row_mask:0xf bank_mask:0xf")
        p(f"v_mul_f32 v{tA}, {hx(-1.0/512)}, v{tA}")
        p(f"v_mul_f32 v{tB}, {hx(1.0/512)}, v{tB}")
        tail = [f"v_fma_f32 v{tB}, -v{tA}, v{tA}, v{tB}", f"v_max_f32 v{tB}, 0, v{tB}", f"v_add_f32 v{T+16}, {hx(1e-5)}, v{tB}",
                f"v_rsq_f32 v{T+16}, v{T+16}", None, f"v_mul_f32 v{tB}, v{T+16}, v{tB}", f"v_mul_f32 v{tB}, v{T+16}, v{tB}",
                f"v_add_f32 v{tB}, {hx(1e-5)}, v{tB}", f"v_rsq_f32 v{tB}, v{tB}", None, f"v_mul_f32 v{tB}, v{T+16}, v{tB}"]
        def dots(g):
            for k in range(4):
                r, t = a + 4 * g + k, T + 8 * (g & 1) + 2 * k
                p(f"v_dot2_f32_bf16 v{t}, v{r}, s{sLO}, v{tA}\nv_dot2_f32_bf16 v{t+1}, v{r}, s{sHI}, v{tA}")
        dots(0)
        for g in range(n // 4):
            if g + 1 < n // 4:
                dots(g + 1)
            for _ in range(3):
                if tail:
                    x = tail.pop(0)
                    if x:
                        p(x)
            for k in range(4):
                r, t = a + 4 * g + k, T + 8 * (g & 1) + 2 * k
                p(f"v_cvt_pk_bf16_f32 v{r}, v{t}, v{t+1}")
            p(f"ds_write_b128 v{vadr}, {vr(a+4*g,4)} offset:{step*g}")
        for x in tail:
            if x:
                p(x)
        p(f"s_mov_b32 exec_lo, {mask}\ns_mov_b32 exec_hi, {mask}")
        p(f"ds_write2st64_b32 v{vst}, v{T+16}, v{tB} offset1:1")
        p("s_mov_b64 exec, -1")

    def unit4(self):
        self.unit(16, 16, ("quad_perm:[1,0,3,2]", "quad_perm:[2,3,0,1]", "row_half_mirror", "row_mirror"), 256, 10, 11, "0x00010001", 64)

    def unit8(self, vadr, vst):
        self.unit(32, 32, ("quad_perm:[1,0,3,2]", "quad_perm:[2,3,0,1]", "row_half_mirror"), 128, vadr, vst, "0x01010101", 64)

    def dual_store(self, text):
        a, b = self.lab("ds"), self.lab("de")
        self.p(f"s_cmp_lg_u32 s{sSAME}, 0\ns_cbranch_scc1 {a}\n" + "\n".join(l + " sc1" for l in text) + f"\ns_branch {b}\n{a}:\n" + "\n".join(text) + f"\n{b}:")

    def kv_job(self):
        p = self.p
        WF, XF = 128, 192
        p(f"""
v_and_b32 v4, 15, v1
v_lshrrev_b32 v5, 4, v1
s_mul_i32 s3, s{sTB}, {XSL}
v_mul_u32_u24 v3, {XS}, v4
v_lshl_add_u32 v3, v5, 4, v3
v_add_u32 v3, s3, v3
""")
        lq = Queue(p, "lgkmcnt", 15)
        for s in range(16):
            p(f"ds_read_b128 {vr(XF+4*s,4)}, v3 offset:{s*64}")
            lq.issue(s)
        p(f"""
s_lshl_b32 s54, s{sPOS}, 12
s_lshr_b32 s3, s{sTB}, 1
s_lshl_b32 s3, s3, 11
s_add_u32 s54, s54, s3
s_add_u32 s54, s54, {KV}
s_and_b32 s55, s{sTB}, 1
s_lshl_b32 s56, s{sTB}, 6
s_add_u32 s56, s56, {ST}
s_and_b32 s3, s{sCG}, 1
s_cmp_eq_u32 s3, 1
s_cbranch_scc1 L_vjob
v_lshl_add_u32 v7, v4, 2, s56
ds_read_b32 v52, v7
""")
        save = list(lq.q)
        lq.issue("r")
        for s in range(16):
            lq.wait(s)
            p(f"v_mfma_f32_16x16x32_bf16 v[48:51], {vr(WF+4*s,4)}, {vr(XF+4*s,4)}, {'0' if s == 0 else 'v[48:51]'}")
        p(f"""
v_and_b32 v7, 1, v5
v_lshlrev_b32 v7, 9, v7
v_lshl_add_u32 v7, v4, 4, v7
v_lshrrev_b32 v6, 1, v5
v_lshl_add_u32 v7, v6, 3, v7
s_lshl_b32 s55, s55, 8
s_add_u32 s54, s54, s55
s_waitcnt lgkmcnt(0)
v_mul_f32 v48, v52, v48
v_mul_f32 v49, v52, v49
v_mul_f32 v50, v52, v50
v_mul_f32 v51, v52, v51
v_cvt_pk_bf16_f32 v54, v48, v49
v_cvt_pk_bf16_f32 v55, v50, v51
buffer_store_dwordx2 v[54:55], v7, {srd(rWS)}, s54 offen sc1
v_dot2_f32_bf16 v57, v54, v54, 0
v_dot2_f32_bf16 v57, v55, v55, v57
v_mov_b32 v58, v57
v_permlane16_swap_b32 v57, v58
v_add_f32 v57, v57, v58
v_mov_b32 v58, v57
v_permlane32_swap_b32 v57, v58
v_add_f32 v57, v57, v58
s_branch L_kvpub
L_vjob:
v_lshl_add_u32 v7, v5, 4, s56
ds_read_b128 v[52:55], v7
""")
        lq.q = save + ["r"]
        for s in range(16):
            lq.wait(s)
            p(f"v_mfma_f32_16x16x32_bf16 v[48:51], {vr(XF+4*s,4)}, {vr(WF+4*s,4)}, {'0' if s == 0 else 'v[48:51]'}")
        p(f"""
v_lshrrev_b32 v7, 1, v5
v_lshlrev_b32 v7, 8, v7
v_lshl_add_u32 v7, v4, 4, v7
v_and_b32 v6, 1, v5
v_lshl_add_u32 v7, v6, 3, v7
s_lshl_b32 s55, s55, 9
s_add_u32 s54, s54, s55
s_add_u32 s54, s54, 1024
s_waitcnt lgkmcnt(0)
v_mul_f32 v48, v52, v48
v_mul_f32 v49, v53, v49
v_mul_f32 v50, v54, v50
v_mul_f32 v51, v55, v51
v_cvt_pk_bf16_f32 v54, v48, v49
v_cvt_pk_bf16_f32 v55, v50, v51
buffer_store_dwordx2 v[54:55], v7, {srd(rWS)}, s54 offen sc1
v_max3_f32 v57, |v48|, |v49|, |v50|
v_max_f32 v57, v57, |v51|
v_mov_b32 v58, v57
v_permlane16_swap_b32 v57, v58
v_max_f32 v57, v57, v58
v_mov_b32 v58, v57
v_permlane32_swap_b32 v57, v58
v_max_f32 v57, v57, v58
L_kvpub:
""")
        for c in ("quad_perm:[1,0,3,2]", "quad_perm:[2,3,0,1]", "row_half_mirror", "row_mirror"):
            p(f"v_max_u32_dpp v57, v57, v57 {c} row_mask:0xf bank_mask:0xf")
        p(f"""
v_add_u32 v57, 16, v57
v_and_b32 v57, -16, v57
v_or_b32 v61, s{sXCC}, v57
v_mov_b32 v60, s{sN}
s_lshl_b32 s58, s{sPOS}, 3
s_add_u32 s58, s58, s{sCG}
s_lshl_b32 s58, s58, 3
s_add_u32 s58, s58, {FKV}
""")

    def kv_flag(self):
        self.p(f"""
s_waitcnt vmcnt(0)
s_mov_b64 exec, 0xff
buffer_store_dwordx2 v[60:61], v62, {srd(rWS)}, s58 offen sc1
s_mov_b64 exec, -1
s_setprio 0
""")
        self.stamp(3)

    def tr_addr32(self, dst, t0, t1, base_expr, nh_sgpr, perm):
        p = self.p
        p(f"""
v_lshrrev_b32 v{t0}, 1, v1
v_and_b32 v{t0}, 1, v{t0}
v_lshrrev_b32 v{t1}, 3, v1
v_and_b32 v{dst}, 2, v{t1}
v_or_b32 v{t0}, v{t0}, v{dst}
v_and_b32 v{t1}, 1, v{t1}
v_lshl_or_b32 v{t0}, v{t1}, 2, v{t0}
v_lshlrev_b32 v{t0}, 4, v{t0}
v_and_b32 v{t1}, 1, v1
v_lshl_or_b32 v{t0}, v{t1}, 3, v{t0}
v_bfe_u32 v{t1}, v1, 2, 2
v_lshl_or_b32 v{t0}, v{t1}, 7, v{t0}
v_lshrrev_b32 v{t1}, 5, v1
v_lshl_or_b32 v{t0}, v{t1}, {9 if perm else 10}, v{t0}
v_add_u32 v{dst}, {base_expr}, v{t0}
""")
        if nh_sgpr is not None:
            p(f"s_lshl_b32 s3, s{nh_sgpr}, 6\nv_xor_b32 v{dst}, s3, v{dst}")

    def a_wave(self):
        p = self.p
        q0, SA, SB, K0, V0, vI, vK, vV, o0 = 16, 48, 64, 80, 92, 116, 2, 117, 128
        p(f"""
s_setprio 2
""")
        p(f"""
v_mov_b32 v{V0}, 0
v_mov_b32 v{V0+1}, 0
v_mov_b32 v{V0+2}, 0
v_mov_b32 v{V0+3}, 0
v_lshlrev_b32 v125, 3, v1
v_mov_b32 v{vI}, 0xdddddddd
""")
        for t in range(8):
            p(f"v_mfma_f32_32x32x16_bf16 {vr(o0+16*t,16)}, {vr(V0,4)}, {vr(V0,4)}, 0")
        p(f"""
v_and_b32 v9, 15, v1
v_lshrrev_b32 v7, 5, v1
v_lshl_add_u32 v9, v7, 4, v9
v_lshlrev_b32 v9, 4, v9
v_add_u32 v{vV}, 1024, v9
s_lshr_b32 s3, s{sW}, 1
s_lshl_b32 s3, s3, 12
s_and_b32 s54, s{sW}, 1
s_lshl_b32 s54, s54, 10
s_add_u32 s3, s3, s54
s_add_u32 s3, s3, {QX}
v_add_u32 v124, s3, v2
s_mov_b32 s68, 0x0000ffff
s_mov_b32 s69, 0x0000ffff
v_and_b32 v7, 27, v1
v_cmp_eq_u32 vcc, 16, v7
v_mov_b32 v7, s{sONE}
s_nop 0
v_cndmask_b32 v{V0}, 0, v7, vcc
""")
        for k in range(3):
            p(f"""
s_add_u32 s3, s{sJ}, {1+k}
s_and_b32 s3, s3, 3
s_mul_i32 s3, s3, 13824
s_add_u32 s3, s3, {OP + (2-k)*4608}
v_add_u32 v{118+k}, s3, v2
s_add_u32 s3, s3, 4096
v_lshl_add_u32 v{121+k}, v1, 2, s3
""")
        for i in range(1, 24):
            p(f"v_mov_b32 v{V0+i}, v{V0}")
        self.xstamp(3, 14)
        p(f"""
v_lshlrev_b32 v7, 10, v15
v_lshl_add_u32 v7, v5, 4, v7
s_lshr_b32 s3, s{sJ}, 1
s_add_u32 s3, s3, s{sTB}
s_add_u32 s3, s3, 2
s_and_b32 s3, s3, 3
s_lshl_b32 s3, s3, 1
s_and_b32 s59, s{sJ}, 1
s_add_u32 s59, s59, s3
s_lshl_b32 s59, s59, 3
s_lshl_b32 s58, s59, 10
s_add_u32 s58, s58, s56
""")
        for i in range(8):
            p(f"buffer_load_dwordx4 {vr(32+4*i,4)}, v7, {srd(rX)}, s58 offen offset:{128*i}")
        p(f"""
s_barrier
v_add_u32 v8, s59, v15
v_mul_u32_u24 v14, {XS}, v8
v_lshl_add_u32 v14, v5, 4, v14
v_lshlrev_b32 v15, 2, v8
v_add_u32 v15, {ST}, v15
""")
        self.xstamp(3, 15)
        p("s_waitcnt vmcnt(8)")
        self.stamp(1)
        self.unit4()
        self.cnt_signal(4, 12, 13)
        self.stamp(2)
        p("s_waitcnt vmcnt(0)")
        self.xstamp(1, 13)
        self.unit8(14, 15)
        p(f"""
s_and_b32 s56, s{sW}, 1
s_lshr_b32 s57, s{sW}, 1
v_and_b32 v5, 31, v1
s_lshl_b32 s3, s56, 5
v_add_u32 v5, s3, v5
v_mul_u32_u24 v3, {XS}, v5
v_lshrrev_b32 v7, 5, v1
v_lshl_add_u32 v3, v7, 4, v3
v_lshlrev_b32 v5, 2, v5
v_add_u32 v5, {ST}, v5
""")
        self.tr_addr32(4, 7, 8, str(WQ), 57, False)
        p(f"""
s_and_b32 s56, s2, 7
s_lshl_b32 s56, s56, 2
s_add_u32 s56, s56, s{sJ}
s_lshl_b32 s56, s56, 9
s_add_u32 s56, s56, {FKV}
s_waitcnt lgkmcnt(0)
s_add_u32 s{sN}, s{sN}, 0x9e3779b9
""")
        self.xstamp(1, 14)
        p("s_barrier")
        self.stamp(4)
        lq = Queue(p, "lgkmcnt", 15)
        p("ds_read_b32 v8, v5")
        lq.issue("r")
        QL = self.o.get("ql", 4)
        qb = lambda s: (16, 24, 32, 40, 64, 72)[s % (QL + 1)]
        def rd(s):
            b = qb(s)
            p(f"ds_read_b64_tr_b16 {vr(b,2)}, v4 offset:{s*2048}\nds_read_b64_tr_b16 {vr(b+2,2)}, v4 offset:{s*2048+512}\nds_read_b128 {vr(b+4,4)}, v3 offset:{s*32}")
            for _ in range(3):
                lq.issue(s)
        poll = lambda m: f"s_mov_b64 exec, {m}\nbuffer_load_dwordx2 v[126:127], v125, {srd(rWS)}, s56 offen sc1\ns_mov_b64 exec, -1"
        for s in range(QL):
            rd(s)
        for s in range(32):
            if s == self.o.get("pollat", 22):
                p(poll("0xffff"))
            if s + QL < 32:
                rd(s + QL)
            lq.wait(s)
            b = qb(s)
            p(f"v_mfma_f32_32x32x16_bf16 v[48:63], {vr(b,4)}, {vr(b+4,4)}, {'0' if s == 0 else 'v[48:63]'}")
        p(f"""
v_mul_f32 v8, {hx(0.25*LOG2E)}, v8
s_lshl_b32 s57, s{sJ}, 15
s_add_u32 s57, s57, {KV}
s_add_u32 s58, s57, 2048
""")
        for k in range(4):
            p(f"s_add_u32 s3, s{sJ}, {1+k}\ns_and_b32 s3, s3, 3\ns_lshl_b32 s3, s3, 11\ns_add_u32 s3, s3, {QX}\nv_add_u32 v{(3,4,5,7)[k]}, s3, v2")
        for i in range(0, 16, 2):
            p(f"v_pk_mul_f32 {vr(48+i,2)}, {vr(48+i,2)}, v[8:9] op_sel_hi:[1,0]")
        for i in range(8):
            p(f"v_cvt_pk_bf16_f32 v{16+i}, v{48+2*i}, v{49+2*i}")
        p("ds_write_b128 v124, v[16:19]\nds_write_b128 v124, v[20:23] offset:2048")
        for r in range(4):
            for e in range(2):
                p(f"v_dot2_f32_bf16 v{48+e}, v{16+4*e+r}, v{16+4*e+r}, {'0' if r == 0 else f'v{48+e}'}")
        p("v_permlane32_swap_b32 v48, v49\nv_add_f32 v48, v48, v49\nds_max_u32 v12, v48 offset:4")
        self.cnt_signal(0, 12, 13)
        self.stamp(5)
        def flags_wait(mask, outstanding):
            l, d = self.lab("kw"), self.lab("kd")
            p(f"""
s_waitcnt vmcnt({outstanding})
v_cmp_ne_u32 vcc, s{sN}, v126
s_mov_b32 s54, {SPIN}
s_and_b64 vcc, vcc, {mask}
s_cbranch_scc0 {d}
{l}:
s_sleep {self.o.get('ksleep', 4)}
{poll(mask)}
s_waitcnt vmcnt(0)
v_cmp_ne_u32 vcc, s{sN}, v126
s_sub_u32 s54, s54, 1
s_cselect_b64 vcc, 0, vcc
s_and_b64 vcc, vcc, {mask}
s_cbranch_scc1 {l}
{d}:
""")
        flags_wait("0xffff", 0)
        p(f"""
buffer_load_dwordx4 {vr(K0,4)}, v{vK}, {srd(rWS)}, s57 offen sc1
s_mov_b64 exec, s[68:69]
buffer_load_dwordx4 {vr(V0,4)}, v{vV}, {srd(rWS)}, s57 offen sc1
buffer_load_dwordx4 {vr(V0+4,4)}, v{vV}, {srd(rWS)}, s57 offen offset:512 sc1
buffer_load_dwordx4 {vr(V0+8,4)}, v{vV}, {srd(rWS)}, s58 offen sc1
buffer_load_dwordx4 {vr(V0+12,4)}, v{vV}, {srd(rWS)}, s58 offen offset:512 sc1
s_mov_b64 exec, -1
buffer_load_dwordx4 {vr(K0+4,4)}, v{vK}, {srd(rWS)}, s58 offen sc1
""")
        self.stamp(6)
        for i in range(8):
            p(f"v_mov_b32 v{SB+8+i}, 0")
        l, d = self.lab("qw"), self.lab("qd")
        p(f"""
s_mov_b32 s54, {SPIN}
{l}:
ds_read_b64 v[8:9], v12
s_waitcnt lgkmcnt(0)
v_readfirstlane_b32 s55, v8
s_cmp_ge_u32 s55, 4
s_cbranch_scc1 {d}
s_sub_u32 s54, s54, 1
s_cmp_lg_u32 s54, 0
s_cbranch_scc1 {l}
{d}:
""")
        for k in range(4):
            p(f"ds_read_b128 {vr(q0+8*k,4)}, v{(3,4,5,7)[k]}\nds_read_b128 {vr(q0+8*k+4,4)}, v{(3,4,5,7)[k]} offset:1024")
        self.stamp(7)
        S = [SA, SB]
        def qk(dst, kb, t):
            return f"v_mfma_f32_32x32x16_bf16 {vr(dst,16)}, {vr(kb,4)}, {vr(q0+4*t,4)}, 0"
        def pv(t, vb, sb):
            return f"v_smfmac_f32_32x32x32_bf16 {vr(o0+16*t,16)}, {vr(vb,4)}, {vr(sb,8)}, v{vI}"
        def opw(t):
            k, e = t >> 1, t & 1
            w = [f"ds_write_b128 v{118+k}, {vr(o0+16*t,4)} offset:{2048*e}",
                 f"ds_write_b128 v{118+k}, {vr(o0+16*t+4,4)} offset:{2048*e+1024}"]
            if e:
                w.append(f"ds_write2st64_b32 v{121+k}, v{o0+16*(t-1)+8}, v{o0+16*t+8} offset1:1")
            return w
        def tile(pb, last=False):
            Kc, Kn, Kp = K0 + 4 * pb, K0 + 4 * ((pb + 1) % 3), K0 + 4 * ((pb + 2) % 3)
            Vc, Vp = V0 + 8 * pb, V0 + 8 * ((pb + 2) % 3)
            for t in range(8):
                Xb, Yb = S[t & 1], S[(t + 1) & 1]
                wr = opw(t - 2) if (last and t >= 2) else []
                for i in range(16):
                    p(f"v_exp_f32 v{Xb+i}, v{Xb+i}")
                    if i == 1:
                        p(pv((t - 1) & 7, (Vp if t == 0 else Vc) + 4, Yb + 8))
                    if t == 0 and not last:
                        if i == 2:
                            p(f"s_add_u32 s58, s58, 2048\nbuffer_load_dwordx4 {vr(Kp,4)}, v{vK}, {srd(rWS)}, s58 offen sc1")
                        if i == 6:
                            p(f"s_mov_b64 exec, s[68:69]\nbuffer_load_dwordx4 {vr(Vp,4)}, v{vV}, {srd(rWS)}, s58 offen sc1")
                            p(f"buffer_load_dwordx4 {vr(Vp+4,4)}, v{vV}, {srd(rWS)}, s58 offen offset:512 sc1\ns_mov_b64 exec, -1")
                    if i == 4:
                        if t < 7:
                            p(qk(Yb, Kc, t + 1))
                        elif not last:
                            p("s_waitcnt vmcnt(3)")
                            p(qk(Yb, Kn, 0))
                    if i == 9:
                        p(pv(t, Vc, Xb))
                    if wr and i in (3, 7, 11):
                        p(wr.pop(0))
        p("s_waitcnt vmcnt(5) lgkmcnt(0)")
        p(qk(SA, K0, 0))
        p(f"s_add_u32 s59, s57, {16*2048}")
        p(f"s_setprio {self.o.get('prioA', 0)}")
        p(f"""
s_lshl_b32 s3, s{sCG}, 2
s_add_u32 s3, s3, s{sJ}
s_lshl_b32 s3, s3, 11
s_lshl_b32 s60, s{sTG}, 16
s_add_u32 s60, s60, s3
s_add_u32 s60, s60, {OF}
s_add_u32 s61, s60, 1024
s_add_u32 s62, s57, {7*2048}
s_add_u32 s67, s57, {3*2048}
v_and_b32 v3, 1, v1
v_cmp_eq_u32 s[96:97], 0, v3
v_mov_b32 v3, {hx(4096.0)}
v_mov_b32 v4, {hx(2.0**40)}
v_mov_b32 v5, 1.0
v_cndmask_b32 v3, v4, v3, s[96:97]
v_cndmask_b32 v9, v5, v9, s[96:97]
s_waitcnt vmcnt(3)
""")
        if self.o.get("skipA"):
            p("s_branch L_att_x")
        p(".p2align 6\nL_att:")
        tile(0)
        p("s_cmp_lt_u32 s58, s62\ns_cbranch_scc1 L_nopt")
        if not self.o.get("nopt"):
            for i in range(6):
                p(f"s_buffer_load_dwordx2 s[98:99], {srd(rWS)}, s60 offset:{128*i+60}")
        p(f"s_add_u32 s60, s60, 640\ns_branch L_t1\nL_nopt:\nbuffer_load_dwordx2 v[126:127], v125, {srd(rWS)}, s56 offen sc1\nL_t1:")
        tile(1)
        p("s_cmp_lg_u32 s58, s67\ns_cbranch_scc1 L_t2")
        flags_wait("-1", 3)
        p(f"""
v_mul_f32 v4, v127, v9
v_cmp_nge_f32 vcc, v3, v4
v_mov_b32 v4, {hx(2.0**-40)}
v_cmp_le_f32 s[98:99], v4, v127
s_andn2_b64 s[98:99], s[98:99], s[96:97]
s_cselect_b64 s[98:99], 0, 1
s_or_b64 vcc, vcc, s[98:99]
{"s_cmp_eq_u32 s3, s3" if self.o.get("force_slow") else ""}
s_cbranch_scc0 L_t2
s_mov_b64 exec, 1
ds_add_u32 v12, v13 offset:24
s_mov_b64 exec, -1
L_t2:
""")
        tile(2)
        p("s_cmp_lg_u32 s58, s59\ns_cbranch_scc1 L_att\nL_att_x:")
        self.stamp(8)
        l, d = self.lab("gw"), self.lab("gd")
        p(f"""
s_mov_b32 s54, {SPIN}
{l}:
ds_read_b64 v[6:7], v12 offset:8
s_waitcnt lgkmcnt(0)
v_readfirstlane_b32 s55, v6
v_readfirstlane_b32 s{sSAME}, v7
s_cmp_ge_u32 s55, 4
s_cbranch_scc1 {d}
s_sleep 1
s_sub_u32 s54, s54, 1
s_cmp_lg_u32 s54, 0
s_cbranch_scc1 {l}
{d}:
""")
        tile(0, last=True)
        p("s_nop 1")
        p(pv(7, V0 + 4, SB + 8))
        p(f"""
s_waitcnt vmcnt(0) lgkmcnt(0)
s_barrier
ds_read_b32 v6, v12 offset:24
s_mul_i32 s3, s{sJ}, 13824
s_add_u32 s3, s3, {OP}
v_add_u32 v3, s3, v2
s_add_u32 s3, s3, 4096
v_lshl_add_u32 v4, v1, 2, s3
s_lshl_b32 s56, s{sTG}, 16
s_lshl_b32 s3, s{sCG}, 2
s_add_u32 s59, s3, s{sJ}
s_lshl_b32 s3, s59, 11
s_add_u32 s56, s56, s3
s_add_u32 s56, s56, {OF}
s_waitcnt lgkmcnt(0)
v_readfirstlane_b32 s3, v6
s_cmp_lg_u32 s3, 0
s_cbranch_scc1 L_slow
L_att_done:
""")
        self.stamp(9)
        lq = Queue(p, "lgkmcnt", 15)
        for k in range(3):
            b = 16 + 18 * k
            for e in range(4):
                p(f"ds_read_b128 {vr(b+4*e,4)}, v3 offset:{k*4608+e*1024}")
                lq.issue(k)
            p(f"ds_read2st64_b32 {vr(b+16,2)}, v4 offset0:{k*18} offset1:{k*18+1}")
            lq.issue(k)
        for k in range(3):
            b = 16 + 18 * k
            lq.wait(k)
            for e in range(2):
                p(f"v_add_f32 v{o0+16*(6+e)+8}, v{o0+16*(6+e)+8}, v{b+16+e}")
            if k == 2:
                for e in range(2):
                    p(f"v_rcp_f32 v{8+2*e}, v{o0+16*(6+e)+8}")
            for e in range(2):
                for i in range(0, 8, 2):
                    r = o0 + 16 * (6 + e) + i
                    p(f"v_pk_add_f32 {vr(r,2)}, {vr(r,2)}, {vr(b+8*e+i,2)}")
        for e in range(2):
            for i in range(0, 8, 2):
                r = o0 + 16 * (6 + e) + i
                p(f"v_pk_mul_f32 {vr(r,2)}, {vr(r,2)}, {vr(8+2*e,2)} op_sel_hi:[1,0]")
            for i in range(4):
                r = o0 + 16 * (6 + e) + 2 * i
                p(f"v_cvt_pk_bf16_f32 v{96+4*e+i}, v{r}, v{r+1}")
            self.dual_store([f"buffer_store_dwordx4 {vr(96+4*e,4)}, v2, {srd(rWS)}, s56 offen offset:{1024*e}"])
        p(f"""
s_lshl_b32 s56, s{sTG}, 7
s_lshl_b32 s59, s59, 2
s_add_u32 s56, s56, s59
s_add_u32 s56, s56, {FO}
v_mov_b32 v6, s{sN}
v_mov_b32 v7, 0
s_waitcnt vmcnt(0)
s_mov_b64 exec, 1
""")
        self.dual_store([f"buffer_store_dword v6, v7, {srd(rWS)}, s56 offen"])
        p(f"""
s_or_b32 s3, s2, s{sW}
s_cmp_lg_u32 s3, 0
s_cbranch_scc1 L_noE
buffer_store_dword v6, v7, {srd(rWS)}, 0 offen sc1
L_noE:
s_mov_b64 exec, -1
""")
        self.stamp(10)
        p("s_branch L_final")
        m0 = V0 + 16
        p(f"L_slow:")
        for i in range(128):
            p(f"v_mov_b32 v{o0+i}, 0")
        for t in range(8):
            p(f"v_mov_b32 v{m0+t}, 0xff800000")
        p(f"s_mov_b32 s58, {KV}\nL_slow_max:\nbuffer_load_dwordx4 {vr(K0+4,4)}, v{vK}, {srd(rWS)}, s58 offen sc1\ns_waitcnt vmcnt(0)")
        for t in range(8):
            p(qk(SA, K0 + 4, t))
            for i in range(0, 16, 2):
                p(f"v_max3_f32 v{m0+t}, v{SA+i}, v{SA+i+1}, v{m0+t}")
        p(f"s_add_u32 s58, s58, 2048\ns_cmp_lt_u32 s58, {KV + 64*2048}\ns_cbranch_scc1 L_slow_max")
        for t in range(8):
            p(f"v_mov_b32 v6, v{m0+t}\nv_permlane32_swap_b32 v6, v{m0+t}\nv_max_f32 v{m0+t}, v6, v{m0+t}")
        p(f"s_add_u32 s58, s57, {16*2048}\nL_slow_pv:")
        p(f"""
buffer_load_dwordx4 {vr(K0,4)}, v{vK}, {srd(rWS)}, s57 offen sc1
s_mov_b64 exec, s[68:69]
buffer_load_dwordx4 {vr(V0,4)}, v{vV}, {srd(rWS)}, s57 offen sc1
buffer_load_dwordx4 {vr(V0+4,4)}, v{vV}, {srd(rWS)}, s57 offen offset:512 sc1
s_mov_b64 exec, -1
s_waitcnt vmcnt(0)
""")
        for t in range(8):
            p(qk(SA, K0, t))
            for i in range(16):
                p(f"v_sub_f32 v{SA+i}, v{SA+i}, v{m0+t}")
            for i in range(16):
                p(f"v_exp_f32 v{SA+i}, v{SA+i}")
            p(pv(t, V0, SA))
            p(pv(t, V0 + 4, SA + 8))
        p("s_add_u32 s57, s57, 2048\ns_cmp_lt_u32 s57, s58\ns_cbranch_scc1 L_slow_pv")
        for t in range(6):
            for w in opw(t):
                p(w)
        p("s_waitcnt lgkmcnt(0)\ns_barrier\ns_branch L_att_done")

    def g_wave(self):
        p = self.p
        D1 = self.o.get("d1", 6); HD = self.o.get("hd", 4); WD = self.o.get("wd", 4)
        p(f"""
L_G:
v_lshrrev_b32 v3, 2, v1
v_and_b32 v3, 4, v3
v_xor_b32 v14, v3, v5
v_lshlrev_b32 v9, 10, v15
v_lshl_add_u32 v9, v14, 4, v9
s_lshl_b32 s3, s{sCG}, 7
v_add_u32 v9, s3, v9
v_lshlrev_b32 v62, 11, v1
s_barrier
s_cmp_eq_u32 s{sW}, 7
s_cbranch_scc1 L_kvwave
s_lshl_b32 s54, s{sJ}, 13
s_lshl_b32 s55, s{sJ}, 10
s_add_u32 s55, s55, {WQ}
""")
        for n in range(22):
            if n == 21:
                p(f"s_min_u32 s54, s54, {63*8192}\ns_min_u32 s55, s55, {WQ + 63*1024}")
            p(f"s_mov_b32 m0, s55\ns_add_u32 s55, s55, 3072\nbuffer_load_dwordx4 v9, {srd(rWQ)}, s54 offen lds\ns_add_u32 s54, s54, {3*8192}")
        npt = 0
        p(f"""
s_waitcnt vmcnt({22 + npt}) lgkmcnt(0)
s_add_u32 s{sN}, s{sN}, 0x9e3779b9
""")
        self.stamp(1)
        p(f"""
s_branch L_gunit
L_kvwave:
s_setprio 3
v_lshrrev_b32 v3, 4, v1
v_lshlrev_b32 v3, 8, v3
v_lshl_add_u32 v3, v4, 3, v3
v_add_u32 v3, {WKV}, v3
s_waitcnt vmcnt(4) lgkmcnt(0)
s_add_u32 s{sN}, s{sN}, 0x9e3779b9
""")
        self.stamp(1)
        for s in range(16):
            for t in range(2):
                p(f"ds_read_b64_tr_b16 {vr(128+4*s+2*t,2)}, v3 offset:{s*1024+t*128}")
        self.cnt_wait(4, 4, 12, 7, sleep=0)
        self.stamp(2)
        self.kv_job()
        p("s_waitcnt vmcnt(1)\nL_gunit:")
        self.xstamp(1, 13)
        self.unit4()
        if self.o.get("kvlate", 0):
            p(f"s_cmp_eq_u32 s{sW}, 7\ns_cbranch_scc1 L_gb1\ns_waitcnt vmcnt(0)\nL_gb1:\ns_waitcnt lgkmcnt(0)")
            self.xstamp(1, 15)
            p(f"s_barrier\ns_cmp_lg_u32 s{sW}, 7\ns_cbranch_scc1 L_nokvf")
            self.kv_flag()
            p("L_nokvf:")
        else:
            p(f"s_cmp_lg_u32 s{sW}, 7\ns_cbranch_scc1 L_nokvf")
            self.kv_flag()
            p("s_branch L_gb1\nL_nokvf:")
            self.xstamp(1, 14)
            p(f"s_waitcnt vmcnt({npt})\nL_gb1:\ns_waitcnt lgkmcnt(0)")
            self.xstamp(1, 15)
            p("s_barrier")
        self.stamp(4)
        p(f"""
s_min_u32 s3, s{sCG}, 3
s_mul_i32 s59, s{sCG}, 5
s_add_u32 s59, s59, s3
s_lshr_b32 s3, s{sJ}, 1
s_mul_i32 s3, s3, 3
s_add_u32 s59, s59, s3
s_and_b32 s3, s{sJ}, 1
s_cmp_lt_u32 s{sCG}, 3
s_cselect_b32 s60, 1, 0
s_cmp_lt_u32 s{sJ}, 2
s_cselect_b32 s60, 1, s60
s_and_b32 s61, s60, s3
s_add_u32 s59, s59, s61
s_add_u32 s61, s59, s3
s_xor_b32 s3, s3, 1
s_add_u32 s62, s59, s3
v_lshrrev_b32 v3, 2, v1
v_and_b32 v3, 8, v3
s_lshl_b32 s54, s61, 6
s_lshl_b32 s55, s62, 6
""")
        for a in range(4):
            p(f"buffer_load_dwordx2 {vr(112+2*a,2)}, v3, {srd(rB1)}, s54 offen offset:{16*a}")
        for a in range(4):
            p(f"buffer_load_dwordx2 {vr(120+2*a,2)}, v3, {srd(rB1)}, s55 offen offset:{16*a}")
        p(f"""
s_and_b32 s56, s{sJ}, 1
s_xor_b32 s57, s56, 1
v_and_b32 v5, 31, v1
v_lshrrev_b32 v6, 5, v1
s_lshl_b32 s3, s56, 5
v_add_u32 v7, s3, v5
v_mul_u32_u24 v3, {XS}, v7
v_lshl_add_u32 v3, v6, 4, v3
v_lshlrev_b32 v128, 2, v7
s_lshl_b32 s3, s57, 5
v_add_u32 v7, s3, v5
v_mul_u32_u24 v4, {XS}, v7
v_lshl_add_u32 v4, v6, 4, v4
v_lshlrev_b32 v129, 2, v7
v_add_u32 v128, {ST+256}, v128
v_add_u32 v129, {ST+256}, v129
s_lshl_b32 s63, s{sJ}, 14
s_add_u32 s63, s63, {WQ}
v_mul_u32_u24 v7, 2752, v15
v_lshl_add_u32 v7, v14, 4, v7
s_lshl_b32 s3, s59, 6
v_add_u32 v7, s3, v7
v_and_b32 v132, 7, v1
v_lshlrev_b32 v132, 3, v132
s_lshl_b32 s3, s{sPOS}, 6
s_and_b32 s54, s2, 7
s_lshl_b32 s54, s54, 11
s_add_u32 s3, s3, s54
s_add_u32 s3, s3, {FKV}
v_add_u32 v132, s3, v132
""")
        self.tr_addr32(5, 6, 8, "s63", 56, False)
        p(f"""
v_xor_b32 v6, 64, v5
s_lshl_b32 s58, s{sJ}, 12
s_add_u32 s58, s58, {WKV}
s_sub_u32 s3, s58, s63
v_add_u32 v130, s3, v5
v_add_u32 v131, s3, v6
""")
        vq = Queue(p, "vmcnt", 63)
        lq = Queue(p, "lgkmcnt", 15)
        p(f"""
s_mov_b32 s50, 0
s_mul_i32 s51, s{sJ}, 22
s_cmp_eq_u32 s{sJ}, 3
s_cselect_b32 s51, 65, s51
s_lshl_b32 s67, s51, 11
s_lshl_b32 s51, s51, 14
""")
        slot1 = lambda s: (s - 2) % 8
        def dma_w1(s):
            for i in range(2):
                base, off = ("s58", s * 2048) if s < 2 else ("s63", slot1(s) * 2048)
                p(f"s_add_u32 m0, {base}, {off + i * 1024}\ns_nop 0\nbuffer_load_dwordx4 v7, {srd(rW1)}, s50 offen lds\ns_add_u32 s50, s50, {8*2752}")
                vq.issue(("w1", s))
        def dma_w2(i, base, slot):
            if i == 21:
                p(f"s_min_u32 s51, s51, {85*16384}")
            for h in range(2):
                p(f"s_add_u32 m0, s{base}, {slot * 2048 + h * 1024}\ns_nop 0\nbuffer_load_dwordx4 v9, {srd(rW2)}, s51 offen lds\ns_add_u32 s51, s51, 8192")
                vq.issue(("w2", i))
        def rd1(s):
            b = 96 + 16 * (s & 1)
            a0, a1, o = (130, 131, s * 2048) if s < 2 else (5, 6, slot1(s) * 2048)
            p(f"ds_read_b64_tr_b16 {vr(b,2)}, v{a0} offset:{o}\nds_read_b64_tr_b16 {vr(b+2,2)}, v{a0} offset:{o+512}")
            p(f"ds_read_b128 {vr(b+8,4)}, v3 offset:{s*32}\nds_read_b128 {vr(b+12,4)}, v4 offset:{s*32}")
            p(f"ds_read_b64_tr_b16 {vr(b+4,2)}, v{a1} offset:{o}\nds_read_b64_tr_b16 {vr(b+6,2)}, v{a1} offset:{o+512}")
            for _ in range(6):
                lq.issue(s)
        def nxt_dma(v):
            if v < 32:
                dma_w1(v)
            elif v < 40:
                dma_w2(v - 32, 63, slot1(v))
        vq.issue("b")
        dma_w1(0); dma_w1(1)
        p(f"""
s_mul_i32 s99, s{sTG}, {HTG}
s_add_u32 s99, s99, {HF}
s_add_u32 s67, s67, s99
s_lshl_b32 s3, s61, 12
s_add_u32 s97, s99, s3
s_lshl_b32 s3, s56, 10
s_add_u32 s96, s97, s3
s_lshl_b32 s98, s62, 12
s_add_u32 s98, s98, s99
s_add_u32 s98, s98, s3
s_lshl_b32 s3, s57, 10
s_add_u32 s97, s97, s3
s_min_u32 s3, s{sCG}, 3
s_mul_i32 s48, s{sCG}, 5
s_add_u32 s48, s48, s3
s_lshl_b32 s48, s48, 12
s_add_u32 s48, s48, s99
s_cmp_lt_u32 s{sCG}, 3
s_cselect_b32 s49, 48, 40
s_mul_i32 s3, s49, s{sJ}
s_lshl_b32 s3, s3, 7
s_add_u32 s48, s48, s3
s_sub_u32 s49, s49, 1
v_min_u32 v133, s49, v1
v_lshlrev_b32 v133, 7, v133
""")
        p("ds_read_b32 v10, v128\nds_read_b32 v14, v129")
        vq.wait("b")
        for i in range(16):
            p(f"v_lshlrev_b32 v{16+2*i}, 16, v{112+i}\nv_and_b32 v{17+2*i}, 0xffff0000, v{112+i}")
        self.cnt_wait(0, 4, 12, 8)
        self.stamp(5)
        if self.o.get("skipG"):
            p("s_waitcnt vmcnt(0)\ns_branch L_g_x")
        p(f"s_setprio {self.o.get('prioGm', 0)}")
        for s in range(2, D1):
            dma_w1(s)
        vq.wait(("w1", 0))
        rd1(0)
        for s in range(32):
            if s + 1 < 32:
                vq.wait(("w1", s + 1))
                rd1(s + 1)
            lq.wait(s)
            if s + D1 == self.o.get("hpt", 32):
                p(f"buffer_load_dword v200, v133, {srd(rWS)}, s48 offen")
                vq.issue("pt")
            nxt_dma(s + D1)
            if s == 16:
                p(f"buffer_load_dwordx2 v[134:135], v132, {srd(rWS)}, 0 offen sc1")
                vq.issue("x")
            b = 96 + 16 * (s & 1)
            c = lambda a: "0" if s == 0 else vr(a, 16)
            p(f"v_mfma_f32_32x32x16_bf16 v[48:63], {vr(b,4)}, {vr(b+8,4)}, {c(48)}")
            p(f"v_mfma_f32_32x32x16_bf16 v[64:79], {vr(b,4)}, {vr(b+12,4)}, {c(64)}")
            p(f"v_mfma_f32_32x32x16_bf16 v[80:95], {vr(b+4,4)}, {vr(b+8,4)}, {c(80)}")
        for v in range(32 + D1, 40):
            nxt_dma(v)
        assert "x" not in vq.q
        self.stamp(6)
        c2 = 2 * math.sqrt(2 / math.pi) * LOG2E
        p(f"""
s_setprio {self.o.get('prioGv', 3)}
v_and_b32 v135, 15, v135
v_cmp_ne_u32 vcc, s{sN}, v134
v_cmp_ne_u32 s[48:49], s{sXCC}, v135
v_mov_b32 v128, {hx(-c2)}
v_mov_b32 v129, {hx(-c2)}
s_or_b64 s[48:49], s[48:49], vcc
s_cselect_b32 s{sSAME}, 0, {0 if self.o.get('nosame') or self.o.get('hsc1') else 1}
s_mov_b32 s48, {hx(-c2*0.044715)}
s_mov_b32 s49, {hx(-c2*0.044715)}
""")
        def gelu_pair(acc, bias, rr, t, out):
            return [
                f"v_pk_fma_f32 {vr(acc,2)}, {vr(acc,2)}, {vr(rr,2)}, {vr(bias,2)} op_sel_hi:[1,0,1]",
                f"v_pk_mul_f32 {vr(t,2)}, {vr(acc,2)}, {vr(acc,2)}",
                f"v_pk_fma_f32 {vr(t,2)}, {vr(t,2)}, s[48:49], v[128:129]",
                f"v_pk_mul_f32 {vr(t,2)}, {vr(t,2)}, {vr(acc,2)}",
                f"v_exp_f32 v{t}, v{t}", f"v_exp_f32 v{t+1}, v{t+1}",
                f"v_pk_add_f32 {vr(t,2)}, {vr(t,2)}, 1.0 op_sel_hi:[1,0]",
                f"v_rcp_f32 v{t}, v{t}", f"v_rcp_f32 v{t+1}, v{t+1}",
                f"v_pk_mul_f32 {vr(acc,2)}, {vr(acc,2)}, {vr(t,2)}",
                f"v_cvt_pk_bf16_f32 v{out}, v{acc}, v{acc+1}"]
        for ti, (acc, bias, rr, so) in enumerate(((48, 16, 10, 96), (64, 16, 14, 97), (80, 32, 10, 98))):
            if ti == 2:
                p("s_cmp_eq_u32 s60, 0\ns_cbranch_scc1 L_nohalf")
            for e in range(2):
                ls = [gelu_pair(acc + 8 * e + 2 * k, bias + 8 * e + 2 * k, rr, 136 + 2 * k, 160 + 8 * ti + 4 * e + k) for k in range(4)]
                for l in self.merge(*ls):
                    p(l)
                self.dual_store([f"buffer_store_dwordx4 {vr(160+8*ti+4*e,4)}, v2, {srd(rWS)}, s{so} offen offset:{2048*e}"])
        p(f"""
L_nohalf:
s_setprio 0
s_lshl_b32 s56, s{sTG}, 7
s_add_u32 s56, s56, {FH}
s_lshl_b32 s3, s{sCG}, 2
s_add_u32 s3, s3, s{sJ}
s_lshl_b32 s3, s3, 2
s_add_u32 s57, s56, s3
v_mov_b32 v16, s{sN}
v_mov_b32 v17, 0
v_and_b32 v18, 31, v1
v_lshlrev_b32 v18, 2, v18
s_mul_i32 s62, s{sJ}, {XSL}
""")
        self.tr_addr32(5, 6, 8, "s63", None, True)
        p(f"""
v_xor_b32 v6, 64, v5
s_sub_u32 s3, s62, s63
v_add_u32 v3, s3, v5
v_add_u32 v4, s3, v6
v_and_b32 v7, 6, v15
v_and_b32 v8, 7, v1
v_xor_b32 v7, v7, v8
v_lshlrev_b32 v7, 4, v7
v_lshl_add_u32 v7, v15, 10, v7
s_lshl_b32 s3, s{sCG}, 7
v_add_u32 v7, s3, v7
s_lshl_b32 s61, s{sJ}, 17
s_waitcnt vmcnt(0)
s_mov_b64 exec, 1
""")
        self.dual_store([f"buffer_store_dword v16, v17, {srd(rWS)}, s57 offen"])
        p("s_mov_b64 exec, -1")
        vq.q = []
        self.stamp(7)
        p(f"s_add_u32 s58, s99, {85*2048}")
        self.flag_wait(18, 56, 19, sleep=self.o.get("hsleep", 2))
        self.stamp(8)
        p(f"s_setprio {self.o.get('prioGm', 0)}")
        def ld_h(i):
            if i == 21:
                p("s_min_u32 s67, s67, s58")
            b = 128 + 8 * (i % HD)
            p(f"buffer_load_dwordx4 {vr(b,4)}, v2, {srd(rWS)}, s67 offen sc1\nbuffer_load_dwordx4 {vr(b+4,4)}, v2, {srd(rWS)}, s67 offen offset:1024 sc1\ns_add_u32 s67, s67, 2048")
            vq.issue(("h", i)); vq.issue(("h", i))
        def dma_wo(i):
            p(f"s_add_u32 m0, s63, {i * 1024}\ns_nop 0\nbuffer_load_dwordx4 v7, {srd(rWO)}, s61 offen lds\ns_add_u32 s61, s61, 8192")
            vq.issue(("wo", i))
        def rd2(i):
            b = 112 + 8 * (i & 1)
            a0, a1 = (5, 6) if i < 8 else (3, 4)
            o = (slot1(32 + i) if i < 8 else i % 8) * 2048
            p(f"ds_read_b64_tr_b16 {vr(b,2)}, v{a0} offset:{o}\nds_read_b64_tr_b16 {vr(b+2,2)}, v{a0} offset:{o+1024}")
            p(f"ds_read_b64_tr_b16 {vr(b+4,2)}, v{a1} offset:{o}\nds_read_b64_tr_b16 {vr(b+6,2)}, v{a1} offset:{o+1024}")
            for _ in range(4):
                lq.issue(i)
        for i in range(HD):
            ld_h(i)
        rd2(0)
        for i in range(22):
            if i + 1 < 22:
                vq.wait(("w2", i + 1))
                rd2(i + 1)
            vq.wait(("h", i))
            lq.wait(i)
            if i == 21:
                p(f"s_cmp_ge_u32 s{sJ}, 2\ns_cbranch_scc1 L_skip21")
            b = 112 + 8 * (i & 1)
            h = 128 + 8 * (i % HD)
            for mh in range(2):
                for nb in range(2):
                    a = 48 + 16 * (2 * mh + nb)
                    p(f"v_mfma_f32_32x32x16_bf16 {vr(a,16)}, {vr(b+4*nb,4)}, {vr(h+4*mh,4)}, {'0' if i == 0 else vr(a,16)}")
            if i + HD < 22:
                ld_h(i + HD)
            if 8 <= i + WD < 22:
                dma_w2(i + WD, 62, (i + WD) % 8)
            if 13 <= i < 21:
                dma_wo(2 * (i - 13)); dma_wo(2 * (i - 13) + 1)
        p("L_skip21:")
        self.stamp(9)
        p(f"""
s_setprio {self.o.get('prioGv', 3)}
v_lshrrev_b32 v8, 4, v1
v_lshlrev_b32 v16, 3, v8
s_lshl_b32 s3, s{sCG}, 7
""")
        for nt in range(4):
            p(f"buffer_load_dwordx2 {vr(192+2*nt,2)}, v16, {srd(rB2)}, s3 offen offset:{32*nt}")
        p(f"""
v_and_b32 v3, 31, v1
v_and_b32 v4, 15, v1
v_lshrrev_b32 v5, 5, v1
v_xor_b32 v5, v5, v4
v_lshlrev_b32 v5, 4, v5
v_lshl_add_u32 v5, v3, 8, v5
v_add_u32 v5, s62, v5
""")
        for nb in range(2):
            for a in range(4):
                p(f"v_xor_b32 v{6 + (a & 1)}, {(8*nb+2*a) << 4}, v5")
                for mh in range(2):
                    p(f"ds_write_b128 v{6 + (a & 1)}, {vr(48+16*(2*mh+nb)+4*a,4)} offset:{8192*mh}")
        p(f"""
s_lshl_b32 s3, s{sJ}, 12
v_xor_b32 v5, v8, v4
v_lshlrev_b32 v5, 4, v5
v_lshl_add_u32 v5, v4, 8, v5
v_add_u32 v5, s3, v5
s_waitcnt vmcnt(0) lgkmcnt(0)
""")
        self.cnt_signal(5, 12, 13)
        for i in range(8):
            p(f"v_lshlrev_b32 v{16+2*i}, 16, v{192+i}\nv_and_b32 v{17+2*i}, 0xffff0000, v{192+i}")
        p(f"s_setprio 0")
        self.cnt_wait(5, 4, 12, 8)
        p(f"s_setprio {self.o.get('prioGv', 3)}")
        lq.q = []
        for nt in range(4):
            if nt:
                p(f"v_xor_b32 v6, {nt << 6}, v5")
            for kq in range(4):
                p(f"ds_read_b128 {vr(48+16*nt+4*kq,4)}, v{6 if nt else 5} offset:{kq*XSL}")
                lq.issue(nt)
        p(f"s_lshl_b32 s3, s{sJ}, 11\ns_add_u32 s3, s3, {GA}\nv_add_u32 v7, s3, v2\ns_mov_b32 s48, {hx(-LOG2E)}\ns_mov_b32 s49, {hx(-LOG2E)}")
        for nt in range(4):
            lq.wait(nt)
            z = 16 + 4 * nt
            def silu_pair(r, t):
                o = [f"v_pk_add_f32 {vr(r,2)}, {vr(r,2)}, {vr(48+16*nt+4*kq+(r-z),2)}" for kq in range(4)]
                return o + [f"v_pk_mul_f32 {vr(t,2)}, {vr(r,2)}, s[48:49]",
                            f"v_exp_f32 v{t}, v{t}", f"v_exp_f32 v{t+1}, v{t+1}",
                            f"v_pk_add_f32 {vr(t,2)}, {vr(t,2)}, 1.0 op_sel_hi:[1,0]",
                            f"v_rcp_f32 v{t}, v{t}", f"v_rcp_f32 v{t+1}, v{t+1}",
                            f"v_pk_mul_f32 {vr(r,2)}, {vr(r,2)}, {vr(t,2)}"]
            for l in self.merge(silu_pair(z, 32), silu_pair(z + 2, 34)):
                p(l)
            p(f"ds_write_b128 v7, {vr(z,4)} offset:{(nt >> 1) * 8192 + (nt & 1) * 1024}")
            lq.issue("w")
        p(f"L_g_x:\nv_mov_b32 v8, s{sSAME}\ns_waitcnt lgkmcnt(0)\ns_mov_b64 exec, 1\nds_max_u32 v12, v8 offset:12\nds_add_u32 v12, v13 offset:8\ns_mov_b64 exec, -1")
        p("s_setprio 0")
        self.stamp(10)
        p("""
s_barrier
ds_read_b32 v6, v12 offset:24
s_waitcnt lgkmcnt(0)
v_readfirstlane_b32 s3, v6
s_cmp_eq_u32 s3, 0
s_cbranch_scc1 L_final
s_barrier
""")

    def final(self):
        p = self.p
        p("L_final:")
        p(f"""
s_lshr_b32 s56, s{sW}, 2
v_lshrrev_b32 v3, 4, v1
v_and_b32 v4, 15, v1
s_lshl_b32 s3, s{sJ}, 4
v_add_u32 v5, s3, v4
v_lshlrev_b32 v5, 10, v5
v_lshl_add_u32 v5, v3, 3, v5
s_lshl_b32 s57, s{sTG}, 16
s_lshl_b32 s3, s{sCG}, 7
s_add_u32 s57, s57, s3
s_lshl_b32 s3, s56, 6
s_add_u32 s57, s57, s3
buffer_load_dwordx2 v[16:17], v5, {srd(rX)}, s57 offen
buffer_load_dwordx2 v[18:19], v5, {srd(rX)}, s57 offen offset:32
s_lshl_b32 s3, s{sW}, 11
s_add_u32 s3, s3, {GA}
v_add_u32 v6, s3, v2
ds_read_b128 v[20:23], v6
ds_read_b128 v[24:27], v6 offset:1024
v_bfe_u32 v8, v1, 2, 3
v_lshlrev_b32 v9, 7, v8
v_lshrrev_b32 v8, 1, v8
s_lshl_b32 s3, s56, 1
v_xor_b32 v8, s3, v8
v_lshl_or_b32 v9, v8, 5, v9
v_and_b32 v8, 3, v1
v_lshl_or_b32 v9, v8, 3, v9
v_lshrrev_b32 v8, 5, v1
v_lshl_or_b32 v9, v8, 11, v9
s_lshl_b32 s3, s56, 15
s_add_u32 s3, s3, {WQ}
v_add_u32 v8, s3, v9
v_xor_b32 v9, 32, v8
v_xor_b32 v10, 64, v8
v_xor_b32 v11, 96, v8
""")
        for s in range(8):
            for nt in range(4):
                for t in range(2):
                    p(f"ds_read_b64_tr_b16 {vr(128+16*s+4*nt+2*t,2)}, v{8+nt} offset:{s*4096+t*1024}")
        p(f"""
v_and_b32 v14, 31, v1
v_lshlrev_b32 v14, 2, v14
s_lshl_b32 s58, s{sTG}, 7
s_add_u32 s58, s58, {FO}
v_and_b32 v7, 1, v3
v_lshlrev_b32 v7, 9, v7
v_lshrrev_b32 v15, 1, v3
v_lshl_add_u32 v7, v15, 11, v7
v_lshl_add_u32 v7, v4, 4, v7
s_lshl_b32 s59, s{sTG}, 16
s_lshl_b32 s3, s56, 15
s_add_u32 s59, s59, s3
s_lshr_b32 s3, s{sJ}, 1
s_lshl_b32 s3, s3, 10
s_add_u32 s59, s59, s3
s_and_b32 s3, s{sJ}, 1
s_lshl_b32 s3, s3, 8
s_add_u32 s59, s59, s3
s_add_u32 s59, s59, {OF}
""")
        p(f"s_cmp_lg_u32 s{sW}, 7\ns_cbranch_scc1 L_nopoll")
        self.flag_wait(14, 58, 15, sleep=0)
        p("L_nopoll:\ns_barrier")
        self.stamp(11)
        vq = Queue(p, "vmcnt", 63)
        for s in range(8):
            p(f"buffer_load_dwordx4 {vr(64+4*s,4)}, v7, {srd(rWS)}, s59 offen sc1\ns_add_u32 s59, s59, 4096")
            vq.issue(s)
        p("s_waitcnt vmcnt(8)")
        for i in range(4):
            p(f"v_lshlrev_b32 v{28+2*i}, 16, v{16+i}\nv_and_b32 v{29+2*i}, 0xffff0000, v{16+i}")
        p("s_waitcnt lgkmcnt(0)")
        self.xstamp(2, 13)
        for s in range(8):
            vq.wait(s)
            for nt in (2, 3, 0, 1):
                p(f"v_mfma_f32_16x16x32_bf16 {vr(48+4*nt,4)}, {vr(128+16*s+4*nt,4)}, {vr(64+4*s,4)}, {'0' if s == 0 else vr(48+4*nt,4)}")
        p(f"""
s_xor_b32 s3, s{sW}, 4
s_lshl_b32 s3, s3, 11
s_add_u32 s3, s3, {GA}
v_add_u32 v7, s3, v2
ds_write_b128 v6, v[56:59]
ds_write_b128 v6, v[60:63] offset:1024
s_waitcnt lgkmcnt(0)
""")
        self.xstamp(2, 14)
        p("""
s_barrier
ds_read_b128 v[56:59], v7
ds_read_b128 v[60:63], v7 offset:1024
""")
        for e in range(2):
            p(f"s_waitcnt lgkmcnt({1-e})")
            for i in range(0, 4, 2):
                r = 48 + 4 * e + i
                p(f"v_pk_add_f32 {vr(r,2)}, {vr(r,2)}, {vr(r+8,2)}")
            for i in range(0, 4, 2):
                r = 48 + 4 * e + i
                p(f"v_pk_fma_f32 {vr(r,2)}, {vr(r,2)}, {vr(20+4*e+i,2)}, {vr(28+4*e+i,2)}")
            for i in range(2):
                p(f"v_cvt_pk_bf16_f32 v{16+2*e+i}, v{48+4*e+2*i}, v{49+4*e+2*i}")
            p(f"buffer_store_dwordx2 {vr(16+2*e,2)}, v5, {srd(rOUT)}, s57 offen offset:{32*e} {('', 'sc1', 'nt', 'sc0 sc1')[self.o.get('outf', 0)]}")
        if self.stamps:
            self.xstamp(2, 15)
            p("s_waitcnt vmcnt(0)")
            self.stamp(12)
            p(f"s_lshl_b32 s3, s2, 3\ns_add_u32 s3, s3, s{sW}\ns_lshl_b32 s3, s3, 7\ns_add_u32 s3, s3, {STAMP}\nv_mov_b32 v7, 0")
            p("s_waitcnt lgkmcnt(0)")
            for i in range(0, 16, 4):
                for k in range(4):
                    sl = self.slot(i + k) if (i + k < 13 or self.o.get("sset", 0)) else None
                    p(f"v_mov_b32 v{16+k}, s{70+2*(sl or 0)}")
                p(f"buffer_store_dwordx4 v[16:19], v7, {srd(rWS)}, s3 offen offset:{4*i}")
        if "fix" in self.o:
            p(f"s_waitcnt vmcnt(0)\nL_fix:\ns_memrealtime s[94:95]\ns_waitcnt lgkmcnt(0)\ns_sub_u32 s94, s94, s92\ns_cmp_lt_u32 s94, 10000\ns_cbranch_scc1 L_fix")
        p("L_exit:\ns_endpgm\nL_code_end:")

    def build(self, verbose=False):
        if self.stamps:
            for i in range(16):
                pass
        self.entry()
        self.role = 1
        self.a_wave()
        self.role = 2
        self.g_wave()
        self.role = 3
        self.final()
        ins = self.p.fix_hazards(verbose)
        head = open(f"cdna_kernels/{NAME}.s.ref").read().split("; Override launch")[0]
        return (head + f"; @launch grid=(256,1,1) block=(512,1,1) lds={LDS_BYTES}\n"
                + f""".amdgcn_target "amdgcn-amd-amdhsa--gfx950"
.text
.globl {NAME}_kernel
.p2align 8
.type {NAME}_kernel,@function
{NAME}_kernel:
""" + self.p.text() + f""".section .rodata,"a"
.p2align 6
.amdhsa_kernel {NAME}_kernel
  .amdhsa_next_free_vgpr 256
  .amdhsa_next_free_sgpr 102
  .amdhsa_accum_offset 256
  .amdhsa_group_segment_fixed_size 0
  .amdhsa_kernarg_size 104
  .amdhsa_user_sgpr_count 2
  .amdhsa_user_sgpr_kernarg_segment_ptr 1
  .amdhsa_system_sgpr_workgroup_id_x 1
  .amdhsa_float_denorm_mode_32 3
.end_amdhsa_kernel
""")


if __name__ == "__main__":
    out = sys.argv[1]
    opts = {}
    stamps = False
    for a in sys.argv[2:]:
        if a == "stamps":
            stamps = True
        elif a == "-v":
            opts["v"] = 1
        else:
            k, v = a.split("=")
            opts[k] = int(v)
    open(out, "w").write(Gen(stamps, opts).build(bool(opts.get("v"))))
```

```python
import sys, struct, math
from asmlib import Prog, Queue

NAME = "recurrent_scan__grouped_kv_mqa__mixer_channel_mlp__prompt"

def f2u(x):
    return struct.unpack("<I", struct.pack("<f", x))[0]
def hx(x):
    return f"0x{f2u(x):08x}"

X = 0; XS = 1040; XSL = 16640
WQ = 66560
WKV = 132096; GA = WKV
QX = 148480
ST = 156672
CNT = 157184
LDS_BYTES = 157696
OP = X; GP = X
FKV = 0x4000; FH = 0x2000; FO = 0x3000
KV = 0x10000; OF = 0x40000; HF = 0x240000; HTG = 86 * 2048
STAMP = 0x800000
WS_RANGE = 0x1000000
rX, rWS, rWQ, rWKV, rW1, rW2, rWO, rB1, rB2, rOUT = 4, 8, 12, 16, 20, 24, 28, 32, 36, 40
sW, sTG, sCG, sN, sTB, sJ = 44, 45, 46, 47, 52, 53
sONE, sLO, sHI = 64, 65, 66
sXCC, sSAME, sPOS = 100, 101, 1
srd = lambda r: f"s[{r}:{r+3}]"
vr = lambda a, n: f"v[{a}:{a+n-1}]"
LOG2E = 1.4426950408889634
SPIN = 1 << 20


class Gen:
    def __init__(self, stamps=False, opts=None):
        self.p = Prog()
        self.stamps = stamps
        self.o = opts or {}
        self.uid = 0
        self.role = 0

    def lab(self, s):
        self.uid += 1
        return f"L_{s}_{self.uid}"

    def xstamp(self, sset, i):
        if self.o.get("sset", 0) == sset:
            self.stamp(i)

    def stamp(self, i):
        if self.o.get("fix", -1) == i + 100 * self.role:
            self.p("s_waitcnt lgkmcnt(0)\ns_memrealtime s[92:93]\ns_waitcnt lgkmcnt(0)")
        if self.stamps:
            k = self.slot(i)
            if k is not None:
                self.p(f"s_memrealtime s[{70+2*k}:{71+2*k}]")
            if self.o.get("sset", 0) == 4 and i in (7, 8, 9):
                k = self.slot(i + 6)
                self.p(f"s_memtime s[{70+2*k}:{71+2*k}]")

    def slot(self, i):
        drop = {0: (), 1: (9, 10, 11), 2: (1, 2, 3), 3: (9, 10, 11), 4: (1, 2, 3), 5: (1, 2, 3)}[self.o.get("sset", 0)]
        if i in drop:
            return None
        return drop[i - 13] if i >= 13 else i

    def cnt_signal(self, k, vaddr, vone):
        self.p(f"s_mov_b64 exec, 1\nds_add_u32 v{vaddr}, v{vone} offset:{4*k}\ns_mov_b64 exec, -1")

    def cnt_wait(self, k, target, vaddr, vt, sleep=1):
        p = self.p
        l, d = self.lab("cw"), self.lab("cd")
        p(f"s_mov_b32 s54, {SPIN}\n{l}:\nds_read_b32 v{vt}, v{vaddr} offset:{4*k}\ns_waitcnt lgkmcnt(0)")
        p(f"v_readfirstlane_b32 s55, v{vt}\ns_cmp_ge_u32 s55, {target}\ns_cbranch_scc1 {d}")
        if sleep:
            p(f"s_sleep {sleep}")
        p(f"s_sub_u32 s54, s54, 1\ns_cmp_lg_u32 s54, 0\ns_cbranch_scc1 {l}\n{d}:")

    def flag_wait(self, vaddr, soff, vt, sleep=1):
        p = self.p
        l, d = self.lab("fw"), self.lab("fd")
        p(f"s_mov_b32 s54, {SPIN}\n{l}:\nbuffer_load_dword v{vt}, v{vaddr}, {srd(rWS)}, s{soff} offen sc1\ns_waitcnt vmcnt(0)")
        p(f"v_cmp_ne_u32 vcc, s{sN}, v{vt}\ns_cbranch_vccz {d}")
        if sleep:
            p(f"s_sleep {sleep}")
        p(f"s_sub_u32 s54, s54, 1\ns_cmp_lg_u32 s54, 0\ns_cbranch_scc1 {l}\n{d}:")

    @staticmethod
    def merge(*lists):
        out = []
        n = max(len(l) for l in lists)
        for i in range(n):
            for l in lists:
                if i < len(l):
                    out.append(l[i])
        return out

    def entry(self):
        p = self.p
        if self.stamps:
            p("s_memrealtime s[70:71]")
        if "fix" in self.o:
            p("s_memrealtime s[92:93]")
        p(f"""
s_load_dwordx2 s[{rX}:{rX+1}], s[0:1], 0
s_load_dwordx4 s[48:51], s[0:1], 16
s_load_dwordx2 s[{rWS}:{rWS+1}], s[0:1], 96
s_load_dwordx2 s[{rWQ}:{rWQ+1}], s[0:1], 8
s_cmp_ge_u32 s2, 256
s_cbranch_scc1 L_exit
s_getpc_b64 s[54:55]
L_pc:
v_lshlrev_b32 v3, 6, v0
v_min_u32 v3, L_code_end-L_pc-4, v3
v_mov_b32 v5, s55
v_add_co_u32 v4, vcc, s54, v3
v_lshrrev_b32 v7, 6, v0
v_and_b32 v1, 63, v0
v_addc_co_u32 v5, vcc, 0, v5, vcc
v_readfirstlane_b32 s{sW}, v7
global_load_dword v6, v[4:5], off
s_load_dwordx2 s[{rW1}:{rW1+1}], s[0:1], 48
s_load_dwordx2 s[{rB1}:{rB1+1}], s[0:1], 56
s_load_dwordx2 s[{rW2}:{rW2+1}], s[0:1], 64
s_load_dwordx2 s[{rB2}:{rB2+1}], s[0:1], 72
s_load_dwordx2 s[{rOUT}:{rOUT+1}], s[0:1], 80
s_load_dwordx2 s[{rWO}:{rWO+1}], s[0:1], 32
s_and_b32 s3, s2, 7
s_lshr_b32 s54, s2, 3
s_and_b32 s{sCG}, s54, 7
s_lshr_b32 s54, s54, 3
s_lshl_b32 s3, s3, 2
s_add_u32 s{sTG}, s3, s54
s_and_b32 s55, s2, 6
s_lshl_b32 s55, s55, 1
s_add_u32 s55, s55, s54
s_lshl_b32 s55, s55, 1
s_and_b32 s3, s2, 1
s_add_u32 s55, s55, s3
s_lshr_b32 s{sTB}, s{sCG}, 1
s_and_b32 s{sJ}, s{sW}, 3
v_lshlrev_b32 v2, 4, v1
v_lshrrev_b32 v3, 4, v1
v_and_b32 v4, 15, v1
v_lshlrev_b32 v8, 10, v3
v_lshl_add_u32 v8, v4, 4, v8
s_mov_b32 s{rX+2}, 2097152
s_mov_b32 s{rX+3}, 0x20000
s_lshr_b32 s3, s{sW}, 2
s_add_u32 s3, s3, s{sTB}
s_and_b32 s3, s3, 3
s_lshl_b32 s3, s3, 2
s_add_u32 s57, s3, s{sJ}
s_lshl_b32 s57, s57, 2
s_lshl_b32 s56, s{sTG}, 16
s_lshl_b32 s58, s57, 10
s_add_u32 s58, s58, s56
v_mov_b32 v12, {CNT}
v_mov_b32 v10, 0
v_mov_b32 v11, 0
s_mov_b64 exec, 15
v_lshl_add_u32 v13, v1, 3, v12
ds_write_b64 v13, v[10:11]
s_mov_b64 exec, -1
s_and_b32 s3, s{sCG}, 1
s_cmp_eq_u32 s3, 0
s_waitcnt lgkmcnt(0)
s_cselect_b32 s{rWKV}, s48, s50
s_cselect_b32 s{rWKV+1}, s49, s51
s_mov_b32 s{sPOS}, s55
""")
        self.xstamp(3, 13)
        p(f"""
s_mov_b32 s{rWKV+2}, 16384
s_mov_b32 s{rWKV+3}, 0x20000
s_cmp_lg_u32 s{sW}, 7
s_cbranch_scc1 L_nowkv
""")
        for i in range(4):
            p(f"s_mov_b32 m0, {WKV + 4096 * i}\ns_mov_b32 s3, {4096 * i}")
            for k in range(4):
                p(f"buffer_load_dwordx4 v2, {srd(rWKV)}, s3 offen offset:{1024 * k} lds")
        p("L_nowkv:")
        for i in range(4):
            p(f"buffer_load_dwordx4 {vr(16+4*i,4)}, v8, {srd(rX)}, s58 offen offset:{256*i}")
        p(f"""
s_load_dword s{sN}, s[{rWS}:{rWS+1}], 0
s_getreg_b32 s{sXCC}, hwreg(HW_REG_XCC_ID, 0, 4)
v_lshrrev_b32 v15, 3, v1
v_and_b32 v5, 7, v1
""")
        for r, n in ((rWS, WS_RANGE), (rWQ, 524288), (rW1, 512 * 2752), (rW2, 1376 * 1024), (rWO, 524288),
                     (rB1, 2752), (rB2, 1024), (rOUT, 2097152)):
            p(f"s_mov_b32 s{r+2}, {n}\ns_mov_b32 s{r+3}, 0x20000")
        p(f"s_mov_b32 s{sONE}, 0x3f803f80\ns_mov_b32 s{sLO}, 0x00003f80\ns_mov_b32 s{sHI}, 0x3f800000")
        p(f"""
v_add_u32 v3, s57, v3
v_mul_u32_u24 v10, {XS}, v3
v_lshl_add_u32 v10, v4, 4, v10
v_lshlrev_b32 v11, 2, v3
v_add_u32 v11, {ST}, v11
v_mov_b32 v13, 1
""")
        p(f"s_cmp_ge_u32 s{sW}, 4\ns_cbranch_scc1 L_G")

    def unit(self, a, n, dpps, step, vadr, vst, mask, tmp):
        p = self.p
        tA, tB = tmp, tmp + 1
        T = tmp + 2
        for k in range(n):
            p(f"v_dot2_f32_bf16 v{tA}, v{a+k}, s{sONE}, {'0' if k == 0 else f'v{tA}'}")
            p(f"v_dot2_f32_bf16 v{tB}, v{a+k}, v{a+k}, {'0' if k == 0 else f'v{tB}'}")
        for c in dpps:
            p(f"v_add_f32_dpp v{tA}, v{tA}, v{tA} {c} row_mask:0xf bank_mask:0xf")
            p(f"v_add_f32_dpp v{tB}, v{tB}, v{tB} {c} row_mask:0xf bank_mask:0xf")
        p(f"v_mul_f32 v{tA}, {hx(-1.0/512)}, v{tA}")
        p(f"v_mul_f32 v{tB}, {hx(1.0/512)}, v{tB}")
        tail = [f"v_fma_f32 v{tB}, -v{tA}, v{tA}, v{tB}", f"v_max_f32 v{tB}, 0, v{tB}", f"v_add_f32 v{T+16}, {hx(1e-5)}, v{tB}",
                f"v_rsq_f32 v{T+16}, v{T+16}", None, f"v_mul_f32 v{tB}, v{T+16}, v{tB}", f"v_mul_f32 v{tB}, v{T+16}, v{tB}",
                f"v_add_f32 v{tB}, {hx(1e-5)}, v{tB}", f"v_rsq_f32 v{tB}, v{tB}", None, f"v_mul_f32 v{tB}, v{T+16}, v{tB}"]
        def dots(g):
            for k in range(4):
                r, t = a + 4 * g + k, T + 8 * (g & 1) + 2 * k
                p(f"v_dot2_f32_bf16 v{t}, v{r}, s{sLO}, v{tA}\nv_dot2_f32_bf16 v{t+1}, v{r}, s{sHI}, v{tA}")
        dots(0)
        for g in range(n // 4):
            if g + 1 < n // 4:
                dots(g + 1)
            for _ in range(3):
                if tail:
                    x = tail.pop(0)
                    if x:
                        p(x)
            for k in range(4):
                r, t = a + 4 * g + k, T + 8 * (g & 1) + 2 * k
                p(f"v_cvt_pk_bf16_f32 v{r}, v{t}, v{t+1}")
            p(f"ds_write_b128 v{vadr}, {vr(a+4*g,4)} offset:{step*g}")
        for x in tail:
            if x:
                p(x)
        p(f"s_mov_b32 exec_lo, {mask}\ns_mov_b32 exec_hi, {mask}")
        p(f"ds_write2st64_b32 v{vst}, v{T+16}, v{tB} offset1:1")
        p("s_mov_b64 exec, -1")

    def unit4(self):
        self.unit(16, 16, ("quad_perm:[1,0,3,2]", "quad_perm:[2,3,0,1]", "row_half_mirror", "row_mirror"), 256, 10, 11, "0x00010001", 64)

    def unit8(self, vadr, vst):
        self.unit(32, 32, ("quad_perm:[1,0,3,2]", "quad_perm:[2,3,0,1]", "row_half_mirror"), 128, vadr, vst, "0x01010101", 64)

    def dual_store(self, text, through=False):
        if through:
            self.p("\n".join(l + " sc1" for l in text))
            return
        a, b = self.lab("ds"), self.lab("de")
        self.p(f"s_cmp_lg_u32 s{sSAME}, 0\ns_cbranch_scc1 {a}\n" + "\n".join(l + " sc1" for l in text) + f"\ns_branch {b}\n{a}:\n" + "\n".join(text) + f"\n{b}:")

    def kv_job(self):
        p = self.p
        WF, XF = 128, 192
        p(f"""
v_and_b32 v4, 15, v1
v_lshrrev_b32 v5, 4, v1
s_mul_i32 s3, s{sTB}, {XSL}
v_mul_u32_u24 v3, {XS}, v4
v_lshl_add_u32 v3, v5, 4, v3
v_add_u32 v3, s3, v3
""")
        lq = Queue(p, "lgkmcnt", 15)
        for s in range(16):
            p(f"ds_read_b128 {vr(XF+4*s,4)}, v3 offset:{s*64}")
            lq.issue(s)
        p(f"""
s_lshl_b32 s54, s{sPOS}, 12
s_lshr_b32 s3, s{sTB}, 1
s_lshl_b32 s3, s3, 11
s_add_u32 s54, s54, s3
s_add_u32 s54, s54, {KV}
s_and_b32 s55, s{sTB}, 1
s_lshl_b32 s56, s{sTB}, 6
s_add_u32 s56, s56, {ST}
s_and_b32 s3, s{sCG}, 1
s_cmp_eq_u32 s3, 1
s_cbranch_scc1 L_vjob
v_lshl_add_u32 v7, v4, 2, s56
ds_read_b32 v52, v7
""")
        save = list(lq.q)
        lq.issue("r")
        for s in range(16):
            lq.wait(s)
            p(f"v_mfma_f32_16x16x32_bf16 v[48:51], {vr(WF+4*s,4)}, {vr(XF+4*s,4)}, {'0' if s == 0 else 'v[48:51]'}")
        p(f"""
v_and_b32 v7, 1, v5
v_lshlrev_b32 v7, 9, v7
v_lshl_add_u32 v7, v4, 4, v7
v_lshrrev_b32 v6, 1, v5
v_lshl_add_u32 v7, v6, 3, v7
s_lshl_b32 s55, s55, 8
s_add_u32 s54, s54, s55
s_waitcnt lgkmcnt(0)
v_mul_f32 v48, v52, v48
v_mul_f32 v49, v52, v49
v_mul_f32 v50, v52, v50
v_mul_f32 v51, v52, v51
v_cvt_pk_bf16_f32 v54, v48, v49
v_cvt_pk_bf16_f32 v55, v50, v51
buffer_store_dwordx2 v[54:55], v7, {srd(rWS)}, s54 offen sc1
v_dot2_f32_bf16 v57, v54, v54, 0
v_dot2_f32_bf16 v57, v55, v55, v57
v_mov_b32 v58, v57
v_permlane16_swap_b32 v57, v58
v_add_f32 v57, v57, v58
v_mov_b32 v58, v57
v_permlane32_swap_b32 v57, v58
v_add_f32 v57, v57, v58
s_branch L_kvpub
L_vjob:
v_lshl_add_u32 v7, v5, 4, s56
ds_read_b128 v[52:55], v7
""")
        lq.q = save + ["r"]
        for s in range(16):
            lq.wait(s)
            p(f"v_mfma_f32_16x16x32_bf16 v[48:51], {vr(XF+4*s,4)}, {vr(WF+4*s,4)}, {'0' if s == 0 else 'v[48:51]'}")
        p(f"""
v_lshrrev_b32 v7, 1, v5
v_lshlrev_b32 v7, 8, v7
v_lshl_add_u32 v7, v4, 4, v7
v_and_b32 v6, 1, v5
v_lshl_add_u32 v7, v6, 3, v7
s_lshl_b32 s55, s55, 9
s_add_u32 s54, s54, s55
s_add_u32 s54, s54, 1024
s_waitcnt lgkmcnt(0)
v_mul_f32 v48, v52, v48
v_mul_f32 v49, v53, v49
v_mul_f32 v50, v54, v50
v_mul_f32 v51, v55, v51
v_cvt_pk_bf16_f32 v54, v48, v49
v_cvt_pk_bf16_f32 v55, v50, v51
buffer_store_dwordx2 v[54:55], v7, {srd(rWS)}, s54 offen sc1
v_max3_f32 v57, |v48|, |v49|, |v50|
v_max_f32 v57, v57, |v51|
v_mov_b32 v58, v57
v_permlane16_swap_b32 v57, v58
v_max_f32 v57, v57, v58
v_mov_b32 v58, v57
v_permlane32_swap_b32 v57, v58
v_max_f32 v57, v57, v58
L_kvpub:
""")
        for c in ("quad_perm:[1,0,3,2]", "quad_perm:[2,3,0,1]", "row_half_mirror", "row_mirror"):
            p(f"v_max_u32_dpp v57, v57, v57 {c} row_mask:0xf bank_mask:0xf")
        p(f"""
v_add_u32 v57, 16, v57
v_and_b32 v57, -16, v57
v_or_b32 v61, s{sXCC}, v57
v_mov_b32 v60, s{sN}
s_lshl_b32 s58, s{sPOS}, 3
s_add_u32 s58, s58, s{sCG}
s_lshl_b32 s58, s58, 3
s_add_u32 s58, s58, {FKV}
""")

    def kv_flag(self):
        self.p(f"""
s_waitcnt vmcnt(0)
s_mov_b64 exec, 0xff
buffer_store_dwordx2 v[60:61], v62, {srd(rWS)}, s58 offen sc1
s_mov_b64 exec, -1
s_setprio 0
""")
        self.stamp(3)

    def tr_addr32(self, dst, t0, t1, base_expr, nh_sgpr, perm):
        p = self.p
        p(f"""
v_lshrrev_b32 v{t0}, 1, v1
v_and_b32 v{t0}, 1, v{t0}
v_lshrrev_b32 v{t1}, 3, v1
v_and_b32 v{dst}, 2, v{t1}
v_or_b32 v{t0}, v{t0}, v{dst}
v_and_b32 v{t1}, 1, v{t1}
v_lshl_or_b32 v{t0}, v{t1}, 2, v{t0}
v_lshlrev_b32 v{t0}, 4, v{t0}
v_and_b32 v{t1}, 1, v1
v_lshl_or_b32 v{t0}, v{t1}, 3, v{t0}
v_bfe_u32 v{t1}, v1, 2, 2
v_lshl_or_b32 v{t0}, v{t1}, 7, v{t0}
v_lshrrev_b32 v{t1}, 5, v1
v_lshl_or_b32 v{t0}, v{t1}, {9 if perm else 10}, v{t0}
v_add_u32 v{dst}, {base_expr}, v{t0}
""")
        if nh_sgpr is not None:
            p(f"s_lshl_b32 s3, s{nh_sgpr}, 6\nv_xor_b32 v{dst}, s3, v{dst}")

    def a_wave(self):
        p = self.p
        q0, SA, SB, K0, V0, vI, vK, vV, o0 = 16, 48, 64, 80, 92, 116, 2, 117, 128
        p(f"""
s_setprio 2
""")
        p(f"""
v_mov_b32 v{V0}, 0
v_mov_b32 v{V0+1}, 0
v_mov_b32 v{V0+2}, 0
v_mov_b32 v{V0+3}, 0
v_lshlrev_b32 v125, 3, v1
v_mov_b32 v{vI}, 0xdddddddd
""")
        for t in range(8):
            p(f"v_mfma_f32_32x32x16_bf16 {vr(o0+16*t,16)}, {vr(V0,4)}, {vr(V0,4)}, 0")
        p(f"""
v_and_b32 v9, 15, v1
v_lshrrev_b32 v7, 5, v1
v_lshl_add_u32 v9, v7, 4, v9
v_lshlrev_b32 v9, 4, v9
v_add_u32 v{vV}, 1024, v9
s_lshr_b32 s3, s{sW}, 1
s_lshl_b32 s3, s3, 12
s_and_b32 s54, s{sW}, 1
s_lshl_b32 s54, s54, 10
s_add_u32 s3, s3, s54
s_add_u32 s3, s3, {QX}
v_add_u32 v124, s3, v2
s_mov_b32 s68, 0x0000ffff
s_mov_b32 s69, 0x0000ffff
v_and_b32 v7, 27, v1
v_cmp_eq_u32 vcc, 16, v7
v_mov_b32 v7, s{sONE}
s_nop 0
v_cndmask_b32 v{V0}, 0, v7, vcc
""")
        for k in range(3):
            p(f"""
s_add_u32 s3, s{sJ}, {1+k}
s_and_b32 s3, s3, 3
s_mul_i32 s3, s3, 13824
s_add_u32 s3, s3, {OP + (2-k)*4608}
v_add_u32 v{118+k}, s3, v2
s_add_u32 s3, s3, 4096
v_lshl_add_u32 v{121+k}, v1, 2, s3
""")
        for i in range(1, 24):
            p(f"v_mov_b32 v{V0+i}, v{V0}")
        self.xstamp(3, 14)
        p(f"""
v_lshlrev_b32 v7, 10, v15
v_lshl_add_u32 v7, v5, 4, v7
s_lshr_b32 s3, s{sJ}, 1
s_add_u32 s3, s3, s{sTB}
s_add_u32 s3, s3, 2
s_and_b32 s3, s3, 3
s_lshl_b32 s3, s3, 1
s_and_b32 s59, s{sJ}, 1
s_add_u32 s59, s59, s3
s_lshl_b32 s59, s59, 3
s_lshl_b32 s58, s59, 10
s_add_u32 s58, s58, s56
""")
        for i in range(8):
            p(f"buffer_load_dwordx4 {vr(32+4*i,4)}, v7, {srd(rX)}, s58 offen offset:{128*i}")
        p(f"""
s_barrier
v_add_u32 v8, s59, v15
v_mul_u32_u24 v14, {XS}, v8
v_lshl_add_u32 v14, v5, 4, v14
v_lshlrev_b32 v15, 2, v8
v_add_u32 v15, {ST}, v15
""")
        self.xstamp(3, 15)
        p("s_waitcnt vmcnt(8)")
        self.stamp(1)
        self.unit4()
        self.cnt_signal(4, 12, 13)
        self.stamp(2)
        p("s_waitcnt vmcnt(0)")
        self.xstamp(1, 13)
        self.unit8(14, 15)
        p(f"""
s_and_b32 s56, s{sW}, 1
s_lshr_b32 s57, s{sW}, 1
v_and_b32 v5, 31, v1
s_lshl_b32 s3, s56, 5
v_add_u32 v5, s3, v5
v_mul_u32_u24 v3, {XS}, v5
v_lshrrev_b32 v7, 5, v1
v_lshl_add_u32 v3, v7, 4, v3
v_lshlrev_b32 v5, 2, v5
v_add_u32 v5, {ST}, v5
""")
        self.tr_addr32(4, 7, 8, str(WQ), 57, False)
        p(f"""
s_and_b32 s56, s2, 7
s_lshl_b32 s56, s56, 2
s_add_u32 s56, s56, s{sJ}
s_lshl_b32 s56, s56, 9
s_add_u32 s56, s56, {FKV}
s_waitcnt lgkmcnt(0)
s_add_u32 s{sN}, s{sN}, 0x9e3779b9
""")
        self.xstamp(1, 14)
        p("s_barrier")
        self.stamp(4)
        lq = Queue(p, "lgkmcnt", 15)
        p("ds_read_b32 v8, v5")
        lq.issue("r")
        QL = self.o.get("ql", 4)
        qb = lambda s: (16, 24, 32, 40, 64, 72)[s % (QL + 1)]
        def rd(s):
            b = qb(s)
            p(f"ds_read_b64_tr_b16 {vr(b,2)}, v4 offset:{s*2048}\nds_read_b64_tr_b16 {vr(b+2,2)}, v4 offset:{s*2048+512}\nds_read_b128 {vr(b+4,4)}, v3 offset:{s*32}")
            for _ in range(3):
                lq.issue(s)
        poll = lambda m: f"s_mov_b64 exec, {m}\nbuffer_load_dwordx2 v[126:127], v125, {srd(rWS)}, s56 offen sc1\ns_mov_b64 exec, -1"
        for s in range(QL):
            rd(s)
        for s in range(32):
            if s == self.o.get("pollat", 22):
                p(poll("0xffff"))
            if s + QL < 32:
                rd(s + QL)
            lq.wait(s)
            b = qb(s)
            p(f"v_mfma_f32_32x32x16_bf16 v[48:63], {vr(b,4)}, {vr(b+4,4)}, {'0' if s == 0 else 'v[48:63]'}")
        p(f"""
v_mul_f32 v8, {hx(0.25*LOG2E)}, v8
s_lshl_b32 s57, s{sJ}, 15
s_add_u32 s57, s57, {KV}
s_add_u32 s58, s57, 2048
""")
        for k in range(4):
            p(f"s_add_u32 s3, s{sJ}, {1+k}\ns_and_b32 s3, s3, 3\ns_lshl_b32 s3, s3, 11\ns_add_u32 s3, s3, {QX}\nv_add_u32 v{(3,4,5,7)[k]}, s3, v2")
        for i in range(0, 16, 2):
            p(f"v_pk_mul_f32 {vr(48+i,2)}, {vr(48+i,2)}, v[8:9] op_sel_hi:[1,0]")
        for i in range(8):
            p(f"v_cvt_pk_bf16_f32 v{16+i}, v{48+2*i}, v{49+2*i}")
        p("ds_write_b128 v124, v[16:19]\nds_write_b128 v124, v[20:23] offset:2048")
        for r in range(4):
            for e in range(2):
                p(f"v_dot2_f32_bf16 v{48+e}, v{16+4*e+r}, v{16+4*e+r}, {'0' if r == 0 else f'v{48+e}'}")
        p("v_permlane32_swap_b32 v48, v49\nv_add_f32 v48, v48, v49\nds_max_u32 v12, v48 offset:4")
        self.cnt_signal(0, 12, 13)
        self.stamp(5)
        def flags_wait(mask, outstanding):
            l, d = self.lab("kw"), self.lab("kd")
            p(f"""
s_waitcnt vmcnt({outstanding})
v_cmp_ne_u32 vcc, s{sN}, v126
s_mov_b32 s54, {SPIN}
s_and_b64 vcc, vcc, {mask}
s_cbranch_scc0 {d}
{l}:
s_sleep {self.o.get('ksleep', 4)}
{poll(mask)}
s_waitcnt vmcnt(0)
v_cmp_ne_u32 vcc, s{sN}, v126
s_sub_u32 s54, s54, 1
s_cselect_b64 vcc, 0, vcc
s_and_b64 vcc, vcc, {mask}
s_cbranch_scc1 {l}
{d}:
""")
        flags_wait("0xffff", 0)
        p(f"""
buffer_load_dwordx4 {vr(K0,4)}, v{vK}, {srd(rWS)}, s57 offen sc1
s_mov_b64 exec, s[68:69]
buffer_load_dwordx4 {vr(V0,4)}, v{vV}, {srd(rWS)}, s57 offen sc1
buffer_load_dwordx4 {vr(V0+4,4)}, v{vV}, {srd(rWS)}, s57 offen offset:512 sc1
buffer_load_dwordx4 {vr(V0+8,4)}, v{vV}, {srd(rWS)}, s58 offen sc1
buffer_load_dwordx4 {vr(V0+12,4)}, v{vV}, {srd(rWS)}, s58 offen offset:512 sc1
s_mov_b64 exec, -1
buffer_load_dwordx4 {vr(K0+4,4)}, v{vK}, {srd(rWS)}, s58 offen sc1
""")
        self.stamp(6)
        for i in range(8):
            p(f"v_mov_b32 v{SB+8+i}, 0")
        l, d = self.lab("qw"), self.lab("qd")
        p(f"""
s_mov_b32 s54, {SPIN}
{l}:
ds_read_b64 v[8:9], v12
s_waitcnt lgkmcnt(0)
v_readfirstlane_b32 s55, v8
s_cmp_ge_u32 s55, 4
s_cbranch_scc1 {d}
s_sub_u32 s54, s54, 1
s_cmp_lg_u32 s54, 0
s_cbranch_scc1 {l}
{d}:
""")
        for k in range(4):
            p(f"ds_read_b128 {vr(q0+8*k,4)}, v{(3,4,5,7)[k]}\nds_read_b128 {vr(q0+8*k+4,4)}, v{(3,4,5,7)[k]} offset:1024")
        self.stamp(7)
        S = [SA, SB]
        def qk(dst, kb, t):
            return f"v_mfma_f32_32x32x16_bf16 {vr(dst,16)}, {vr(kb,4)}, {vr(q0+4*t,4)}, 0"
        def pv(t, vb, sb):
            return f"v_smfmac_f32_32x32x32_bf16 {vr(o0+16*t,16)}, {vr(vb,4)}, {vr(sb,8)}, v{vI}"
        def opw(t):
            k, e = t >> 1, t & 1
            w = [f"ds_write_b128 v{118+k}, {vr(o0+16*t,4)} offset:{2048*e}",
                 f"ds_write_b128 v{118+k}, {vr(o0+16*t+4,4)} offset:{2048*e+1024}"]
            if e:
                w.append(f"ds_write2st64_b32 v{121+k}, v{o0+16*(t-1)+8}, v{o0+16*t+8} offset1:1")
            return w
        def tick(k):
            if self.o.get("sset", 0) == 5:
                p("s_memtime s[48:49]")
        def tock(k):
            if self.o.get("sset", 0) == 5:
                p(f"s_memtime s[50:51]\ns_waitcnt lgkmcnt(0)\ns_sub_u32 s50, s50, s48\ns_add_u32 s{72+2*k}, s{72+2*k}, s50")
        if self.o.get("sset", 0) == 5:
            p("s_mov_b32 s72, 0\ns_mov_b32 s74, 0")
        def tile(pb, last=False):
            Kc, Kn, Kp = K0 + 4 * pb, K0 + 4 * ((pb + 1) % 3), K0 + 4 * ((pb + 2) % 3)
            Vc, Vp = V0 + 8 * pb, V0 + 8 * ((pb + 2) % 3)
            for t in range(8):
                Xb, Yb = S[t & 1], S[(t + 1) & 1]
                wr = opw(t - 2) if (last and t >= 2) else []
                for i in range(16):
                    p(f"v_exp_f32 v{Xb+i}, v{Xb+i}")
                    if i == 1:
                        p(pv((t - 1) & 7, (Vp if t == 0 else Vc) + 4, Yb + 8))
                    if t == 0 and not last:
                        if i == 2:
                            tick(0)
                            p(f"s_add_u32 s58, s58, 2048\nbuffer_load_dwordx4 {vr(Kp,4)}, v{vK}, {srd(rWS)}, s58 offen sc1")
                            tock(0)
                        if i == 6:
                            tick(0)
                            p(f"s_mov_b64 exec, s[68:69]\nbuffer_load_dwordx4 {vr(Vp,4)}, v{vV}, {srd(rWS)}, s58 offen sc1")
                            p(f"buffer_load_dwordx4 {vr(Vp+4,4)}, v{vV}, {srd(rWS)}, s58 offen offset:512 sc1\ns_mov_b64 exec, -1")
                            tock(0)
                    if i == 4:
                        if t < 7:
                            p(qk(Yb, Kc, t + 1))
                        elif not last:
                            tick(1)
                            p("s_waitcnt vmcnt(3)")
                            tock(1)
                            p(qk(Yb, Kn, 0))
                    if i == 9:
                        p(pv(t, Vc, Xb))
                    if wr and i in (3, 7, 11):
                        p(wr.pop(0))
        p("s_waitcnt vmcnt(5) lgkmcnt(0)")
        p(qk(SA, K0, 0))
        p(f"s_add_u32 s59, s57, {16*2048}")
        p(f"s_setprio {self.o.get('prioA', 0)}")
        p(f"""
s_lshl_b32 s3, s{sCG}, 2
s_add_u32 s3, s3, s{sJ}
s_lshl_b32 s3, s3, 11
s_lshl_b32 s60, s{sTG}, 16
s_add_u32 s60, s60, s3
s_add_u32 s60, s60, {OF}
s_add_u32 s61, s60, 1024
s_add_u32 s62, s57, {7*2048}
s_add_u32 s67, s57, {3*2048}
v_and_b32 v3, 1, v1
v_cmp_eq_u32 s[96:97], 0, v3
v_mov_b32 v3, {hx(4096.0)}
v_mov_b32 v4, {hx(2.0**40)}
v_mov_b32 v5, 1.0
v_cndmask_b32 v3, v4, v3, s[96:97]
v_cndmask_b32 v9, v5, v9, s[96:97]
s_waitcnt vmcnt(3)
""")
        if self.o.get("skipA"):
            p("s_branch L_att_x")
        p(".p2align 6\nL_att:")
        tile(0)
        p("s_cmp_lt_u32 s58, s62\ns_cbranch_scc1 L_nopt")
        if not self.o.get("nopt"):
            for i in range(6):
                p(f"s_buffer_load_dwordx2 s[98:99], {srd(rWS)}, s60 offset:{128*i+60}")
        p(f"s_add_u32 s60, s60, 640\ns_branch L_t1\nL_nopt:\nbuffer_load_dwordx2 v[126:127], v125, {srd(rWS)}, s56 offen sc1\nL_t1:")
        tile(1)
        p("s_cmp_lg_u32 s58, s67\ns_cbranch_scc1 L_t2")
        flags_wait("-1", 3)
        p(f"""
v_mul_f32 v4, v127, v9
v_cmp_nge_f32 vcc, v3, v4
v_mov_b32 v4, {hx(2.0**-40)}
v_cmp_le_f32 s[98:99], v4, v127
s_andn2_b64 s[98:99], s[98:99], s[96:97]
s_cselect_b64 s[98:99], 0, 1
s_or_b64 vcc, vcc, s[98:99]
{"s_cmp_eq_u32 s3, s3" if self.o.get("force_slow") else ""}
s_cbranch_scc0 L_t2
s_mov_b64 exec, 1
ds_add_u32 v12, v13 offset:24
s_mov_b64 exec, -1
L_t2:
""")
        tile(2)
        p("s_cmp_lg_u32 s58, s59\ns_cbranch_scc1 L_att\nL_att_x:")
        self.stamp(8)
        l, d = self.lab("gw"), self.lab("gd")
        p(f"""
s_mov_b32 s54, {SPIN}
{l}:
ds_read_b64 v[6:7], v12 offset:8
s_waitcnt lgkmcnt(0)
v_readfirstlane_b32 s55, v6
v_readfirstlane_b32 s{sSAME}, v7
s_cmp_ge_u32 s55, 4
s_cbranch_scc1 {d}
s_sleep 1
s_sub_u32 s54, s54, 1
s_cmp_lg_u32 s54, 0
s_cbranch_scc1 {l}
{d}:
""")
        tile(0, last=True)
        p("s_nop 1")
        p(pv(7, V0 + 4, SB + 8))
        p(f"""
s_waitcnt vmcnt(0) lgkmcnt(0)
s_barrier
ds_read_b32 v6, v12 offset:24
s_mul_i32 s3, s{sJ}, 13824
s_add_u32 s3, s3, {OP}
v_add_u32 v3, s3, v2
s_add_u32 s3, s3, 4096
v_lshl_add_u32 v4, v1, 2, s3
s_lshl_b32 s56, s{sTG}, 16
s_lshl_b32 s3, s{sCG}, 2
s_add_u32 s59, s3, s{sJ}
s_lshl_b32 s3, s59, 11
s_add_u32 s56, s56, s3
s_add_u32 s56, s56, {OF}
s_waitcnt lgkmcnt(0)
v_readfirstlane_b32 s3, v6
s_cmp_lg_u32 s3, 0
s_cbranch_scc1 L_slow
L_att_done:
""")
        self.stamp(9)
        lq = Queue(p, "lgkmcnt", 15)
        for k in range(3):
            b = 16 + 18 * k
            for e in range(4):
                p(f"ds_read_b128 {vr(b+4*e,4)}, v3 offset:{k*4608+e*1024}")
                lq.issue(k)
            p(f"ds_read2st64_b32 {vr(b+16,2)}, v4 offset0:{k*18} offset1:{k*18+1}")
            lq.issue(k)
        for k in range(3):
            b = 16 + 18 * k
            lq.wait(k)
            for e in range(2):
                p(f"v_add_f32 v{o0+16*(6+e)+8}, v{o0+16*(6+e)+8}, v{b+16+e}")
            if k == 2:
                for e in range(2):
                    p(f"v_rcp_f32 v{8+2*e}, v{o0+16*(6+e)+8}")
            for e in range(2):
                for i in range(0, 8, 2):
                    r = o0 + 16 * (6 + e) + i
                    p(f"v_pk_add_f32 {vr(r,2)}, {vr(r,2)}, {vr(b+8*e+i,2)}")
        for e in range(2):
            for i in range(0, 8, 2):
                r = o0 + 16 * (6 + e) + i
                p(f"v_pk_mul_f32 {vr(r,2)}, {vr(r,2)}, {vr(8+2*e,2)} op_sel_hi:[1,0]")
            for i in range(4):
                r = o0 + 16 * (6 + e) + 2 * i
                p(f"v_cvt_pk_bf16_f32 v{96+4*e+i}, v{r}, v{r+1}")
            self.dual_store([f"buffer_store_dwordx4 {vr(96+4*e,4)}, v2, {srd(rWS)}, s56 offen offset:{1024*e}"])
        p(f"""
s_lshl_b32 s56, s{sTG}, 7
s_lshl_b32 s59, s59, 2
s_add_u32 s56, s56, s59
s_add_u32 s56, s56, {FO}
v_mov_b32 v6, s{sN}
v_mov_b32 v7, 0
s_waitcnt vmcnt(0)
s_mov_b64 exec, 1
""")
        self.dual_store([f"buffer_store_dword v6, v7, {srd(rWS)}, s56 offen"])
        p(f"""
s_or_b32 s3, s2, s{sW}
s_cmp_lg_u32 s3, 0
s_cbranch_scc1 L_noE
buffer_store_dword v6, v7, {srd(rWS)}, 0 offen sc1
L_noE:
s_mov_b64 exec, -1
""")
        self.stamp(10)
        p("s_branch L_final")
        m0 = V0 + 16
        p(f"L_slow:")
        for i in range(128):
            p(f"v_mov_b32 v{o0+i}, 0")
        for t in range(8):
            p(f"v_mov_b32 v{m0+t}, 0xff800000")
        p(f"s_mov_b32 s58, {KV}\nL_slow_max:\nbuffer_load_dwordx4 {vr(K0+4,4)}, v{vK}, {srd(rWS)}, s58 offen sc1\ns_waitcnt vmcnt(0)")
        for t in range(8):
            p(qk(SA, K0 + 4, t))
            for i in range(0, 16, 2):
                p(f"v_max3_f32 v{m0+t}, v{SA+i}, v{SA+i+1}, v{m0+t}")
        p(f"s_add_u32 s58, s58, 2048\ns_cmp_lt_u32 s58, {KV + 64*2048}\ns_cbranch_scc1 L_slow_max")
        for t in range(8):
            p(f"v_mov_b32 v6, v{m0+t}\nv_permlane32_swap_b32 v6, v{m0+t}\nv_max_f32 v{m0+t}, v6, v{m0+t}")
        p(f"s_add_u32 s58, s57, {16*2048}\nL_slow_pv:")
        p(f"""
buffer_load_dwordx4 {vr(K0,4)}, v{vK}, {srd(rWS)}, s57 offen sc1
s_mov_b64 exec, s[68:69]
buffer_load_dwordx4 {vr(V0,4)}, v{vV}, {srd(rWS)}, s57 offen sc1
buffer_load_dwordx4 {vr(V0+4,4)}, v{vV}, {srd(rWS)}, s57 offen offset:512 sc1
s_mov_b64 exec, -1
s_waitcnt vmcnt(0)
""")
        for t in range(8):
            p(qk(SA, K0, t))
            for i in range(16):
                p(f"v_sub_f32 v{SA+i}, v{SA+i}, v{m0+t}")
            for i in range(16):
                p(f"v_exp_f32 v{SA+i}, v{SA+i}")
            p(pv(t, V0, SA))
            p(pv(t, V0 + 4, SA + 8))
        p("s_add_u32 s57, s57, 2048\ns_cmp_lt_u32 s57, s58\ns_cbranch_scc1 L_slow_pv")
        for t in range(6):
            for w in opw(t):
                p(w)
        p("s_waitcnt lgkmcnt(0)\ns_barrier\ns_branch L_att_done")

    def g_wave(self):
        p = self.p
        ROT = self.o.get("rot", 1)
        D1 = self.o.get("d1", 6); HD = self.o.get("hd", 4); WD = self.o.get("wd", 4)
        p(f"""
L_G:
v_lshrrev_b32 v3, 2, v1
v_and_b32 v3, 4, v3
v_xor_b32 v14, v3, v5
v_lshlrev_b32 v9, 10, v15
v_lshl_add_u32 v9, v14, 4, v9
s_lshl_b32 s3, s{sCG}, 7
v_add_u32 v9, s3, v9
v_lshlrev_b32 v62, 11, v1
s_barrier
s_cmp_eq_u32 s{sW}, 7
s_cbranch_scc1 L_kvwave
s_and_b32 s55, s2, {7 if ROT else 0}
s_lshl_b32 s55, s55, 3
s_add_u32 s55, s55, s{sJ}
s_lshl_b32 s55, s55, 10
""")
        for n in range(22):
            p(f"s_add_u32 m0, s55, {WQ}\ns_lshl_b32 s54, s55, 3\nbuffer_load_dwordx4 v9, {srd(rWQ)}, s54 offen lds\ns_add_u32 s55, s55, 3072\ns_and_b32 s55, s55, 0xffff")
        npt = 0
        p(f"""
s_waitcnt vmcnt({22 + npt}) lgkmcnt(0)
s_add_u32 s{sN}, s{sN}, 0x9e3779b9
""")
        self.stamp(1)
        p(f"""
s_branch L_gunit
L_kvwave:
s_setprio 3
v_lshrrev_b32 v3, 4, v1
v_lshlrev_b32 v3, 8, v3
v_lshl_add_u32 v3, v4, 3, v3
v_add_u32 v3, {WKV}, v3
s_waitcnt vmcnt(4) lgkmcnt(0)
s_add_u32 s{sN}, s{sN}, 0x9e3779b9
""")
        self.stamp(1)
        for s in range(16):
            for t in range(2):
                p(f"ds_read_b64_tr_b16 {vr(128+4*s+2*t,2)}, v3 offset:{s*1024+t*128}")
        self.cnt_wait(4, 4, 12, 7, sleep=0)
        self.stamp(2)
        self.kv_job()
        p("s_waitcnt vmcnt(1)\nL_gunit:")
        self.xstamp(1, 13)
        self.unit4()
        if self.o.get("kvlate", 0):
            p(f"s_cmp_eq_u32 s{sW}, 7\ns_cbranch_scc1 L_gb1\ns_waitcnt vmcnt(0)\nL_gb1:\ns_waitcnt lgkmcnt(0)")
            self.xstamp(1, 15)
            p(f"s_barrier\ns_cmp_lg_u32 s{sW}, 7\ns_cbranch_scc1 L_nokvf")
            self.kv_flag()
            p("L_nokvf:")
        else:
            p(f"s_cmp_lg_u32 s{sW}, 7\ns_cbranch_scc1 L_nokvf")
            self.kv_flag()
            p("s_branch L_gb1\nL_nokvf:")
            self.xstamp(1, 14)
            p(f"s_waitcnt vmcnt({npt})\nL_gb1:\ns_waitcnt lgkmcnt(0)")
            self.xstamp(1, 15)
            p("s_barrier")
        self.stamp(4)
        p(f"""
s_min_u32 s3, s{sCG}, 3
s_mul_i32 s59, s{sCG}, 5
s_add_u32 s59, s59, s3
s_lshr_b32 s3, s{sJ}, 1
s_mul_i32 s3, s3, 3
s_add_u32 s59, s59, s3
s_and_b32 s3, s{sJ}, 1
s_cmp_lt_u32 s{sCG}, 3
s_cselect_b32 s60, 1, 0
s_cmp_lt_u32 s{sJ}, 2
s_cselect_b32 s60, 1, s60
s_and_b32 s61, s60, s3
s_add_u32 s59, s59, s61
s_add_u32 s61, s59, s3
s_xor_b32 s3, s3, 1
s_add_u32 s62, s59, s3
v_lshrrev_b32 v3, 2, v1
v_and_b32 v3, 8, v3
s_lshl_b32 s54, s61, 6
s_lshl_b32 s55, s62, 6
""")
        for a in range(4):
            p(f"buffer_load_dwordx2 {vr(112+2*a,2)}, v3, {srd(rB1)}, s54 offen offset:{16*a}")
        for a in range(4):
            p(f"buffer_load_dwordx2 {vr(120+2*a,2)}, v3, {srd(rB1)}, s55 offen offset:{16*a}")
        p(f"""
s_and_b32 s56, s{sJ}, 1
s_xor_b32 s57, s56, 1
v_and_b32 v5, 31, v1
v_lshrrev_b32 v6, 5, v1
s_lshl_b32 s3, s56, 5
v_add_u32 v7, s3, v5
v_mul_u32_u24 v3, {XS}, v7
v_lshl_add_u32 v3, v6, 4, v3
v_lshlrev_b32 v128, 2, v7
s_lshl_b32 s3, s57, 5
v_add_u32 v7, s3, v5
v_mul_u32_u24 v4, {XS}, v7
v_lshl_add_u32 v4, v6, 4, v4
v_lshlrev_b32 v129, 2, v7
v_add_u32 v128, {ST+256}, v128
v_add_u32 v129, {ST+256}, v129
s_lshl_b32 s63, s{sJ}, 14
s_add_u32 s63, s63, {WQ}
v_mul_u32_u24 v7, 2752, v15
v_lshl_add_u32 v7, v14, 4, v7
s_lshl_b32 s3, s59, 6
v_add_u32 v7, s3, v7
v_and_b32 v132, 7, v1
v_lshlrev_b32 v132, 3, v132
s_lshl_b32 s3, s{sPOS}, 6
s_and_b32 s54, s2, 7
s_lshl_b32 s54, s54, 11
s_add_u32 s3, s3, s54
s_add_u32 s3, s3, {FKV}
v_add_u32 v132, s3, v132
""")
        self.tr_addr32(5, 6, 8, "s63", 56, False)
        p(f"""
v_xor_b32 v6, 64, v5
s_lshl_b32 s58, s{sJ}, 12
s_add_u32 s58, s58, {WKV}
s_sub_u32 s3, s58, s63
v_add_u32 v130, s3, v5
v_add_u32 v131, s3, v6
""")
        vq = Queue(p, "vmcnt", 63)
        lq = Queue(p, "lgkmcnt", 15)
        p(f"""
s_and_b32 s0, s2, {7 if ROT else 0}
s_mul_i32 s50, s0, {64*2752}
s_lshl_b32 s68, s0, 7
v_add_u32 v140, s68, v3
v_add_u32 v141, s68, v4
s_mul_i32 s51, s{sJ}, 22
s_cmp_eq_u32 s{sJ}, 3
s_cselect_b32 s51, 65, s51
s_cmp_ge_u32 s{sJ}, 2
s_cselect_b32 s69, 21, 22
s_add_u32 s69, s69, s51
s_lshl_b32 s69, s69, 14
s_lshl_b32 s{sTB}, s51, 14
s_add_u32 s3, s0, {f"s{sCG}" if self.o.get("rotc", 1) else 0}
s_and_b32 s3, s3, 7
s_mul_i32 s3, s3, 21
s_lshr_b32 s3, s3, 3
s_add_u32 s51, s51, s3
s_lshl_b32 s67, s51, 11
s_lshl_b32 s51, s51, 14
""")
        slot1 = lambda s: (s - 2) % 8
        def dma_w1(s):
            for i in range(2):
                base, off = ("s58", s * 2048) if s < 2 else ("s63", slot1(s) * 2048)
                p(f"s_add_u32 m0, {base}, {off + i * 1024}\ns_nop 0\nbuffer_load_dwordx4 v7, {srd(rW1)}, s50 offen lds\ns_add_u32 s50, s50, {8*2752}")
                vq.issue(("w1", s))
            if s % 4 == 3:
                p(f"s_cmp_eq_u32 s50, {512*2752}\ns_cselect_b32 s50, 0, s50")
        def dma_w2(i, base, slot):
            for h in range(2):
                p(f"s_add_u32 m0, s{base}, {slot * 2048 + h * 1024}\ns_nop 0\nbuffer_load_dwordx4 v9, {srd(rW2)}, s51 offen lds\ns_add_u32 s51, s51, 8192")
                vq.issue(("w2", i))
            p(f"s_cmp_eq_u32 s51, s69\ns_cselect_b32 s51, s{sTB}, s51")
        def rd1(s):
            b = 96 + 16 * (s & 1)
            a0, a1, o = (130, 131, s * 2048) if s < 2 else (5, 6, slot1(s) * 2048)
            p(f"ds_read_b64_tr_b16 {vr(b,2)}, v{a0} offset:{o}\nds_read_b64_tr_b16 {vr(b+2,2)}, v{a0} offset:{o+512}")
            if s % 4 == 0 and s:
                p(f"s_setprio 3\ns_add_u32 s68, s68, 128\ns_and_b32 s68, s68, 1023\nv_add_u32 v140, s68, v3\nv_add_u32 v141, s68, v4\ns_setprio {self.o.get('prioGm', 0)}")
            p(f"ds_read_b128 {vr(b+8,4)}, v140 offset:{(s%4)*32}\nds_read_b128 {vr(b+12,4)}, v141 offset:{(s%4)*32}")
            p(f"ds_read_b64_tr_b16 {vr(b+4,2)}, v{a1} offset:{o}\nds_read_b64_tr_b16 {vr(b+6,2)}, v{a1} offset:{o+512}")
            for _ in range(6):
                lq.issue(s)
        def nxt_dma(v):
            if v < 32:
                dma_w1(v)
            elif v < 40:
                dma_w2(v - 32, 63, slot1(v))
        vq.issue("b")
        dma_w1(0); dma_w1(1)
        p(f"""
s_mul_i32 s99, s{sTG}, {HTG}
s_add_u32 s99, s99, {HF}
s_add_u32 s67, s67, s99
s_lshl_b32 s3, s61, 12
s_add_u32 s97, s99, s3
s_lshl_b32 s3, s56, 10
s_add_u32 s96, s97, s3
s_lshl_b32 s98, s62, 12
s_add_u32 s98, s98, s99
s_add_u32 s98, s98, s3
s_lshl_b32 s3, s57, 10
s_add_u32 s97, s97, s3
s_min_u32 s3, s{sCG}, 3
s_mul_i32 s48, s{sCG}, 5
s_add_u32 s48, s48, s3
s_lshl_b32 s48, s48, 12
s_add_u32 s48, s48, s99
s_cmp_lt_u32 s{sCG}, 3
s_cselect_b32 s49, 48, 40
s_mul_i32 s3, s49, s{sJ}
s_lshl_b32 s3, s3, 7
s_add_u32 s48, s48, s3
s_sub_u32 s49, s49, 1
v_min_u32 v133, s49, v1
v_lshlrev_b32 v133, 7, v133
""")
        p("ds_read_b32 v10, v128\nds_read_b32 v14, v129")
        vq.wait("b")
        for i in range(16):
            p(f"v_lshlrev_b32 v{16+2*i}, 16, v{112+i}\nv_and_b32 v{17+2*i}, 0xffff0000, v{112+i}")
        self.cnt_wait(0, 4, 12, 8)
        self.stamp(5)
        if self.o.get("skipG"):
            p("s_waitcnt vmcnt(0)\ns_branch L_g_x")
        p(f"s_setprio {self.o.get('prioGm', 0)}")
        for s in range(2, D1):
            dma_w1(s)
        vq.wait(("w1", 0))
        rd1(0)
        for s in range(32):
            if s + 1 < 32:
                vq.wait(("w1", s + 1))
                rd1(s + 1)
            lq.wait(s)
            if s + D1 == self.o.get("hpt", 32):
                p(f"buffer_load_dword v200, v133, {srd(rWS)}, s48 offen")
                vq.issue("pt")
            nxt_dma(s + D1)
            if s == 16:
                p(f"buffer_load_dwordx2 v[134:135], v132, {srd(rWS)}, 0 offen sc1")
                vq.issue("x")
            b = 96 + 16 * (s & 1)
            c = lambda a: "0" if s == 0 else vr(a, 16)
            if self.o.get("nomm") and s:
                continue
            p(f"v_mfma_f32_32x32x16_bf16 v[48:63], {vr(b,4)}, {vr(b+8,4)}, {c(48)}")
            p(f"v_mfma_f32_32x32x16_bf16 v[64:79], {vr(b,4)}, {vr(b+12,4)}, {c(64)}")
            p(f"v_mfma_f32_32x32x16_bf16 v[80:95], {vr(b+4,4)}, {vr(b+8,4)}, {c(80)}")
        for v in range(32 + D1, 40):
            nxt_dma(v)
        assert "x" not in vq.q
        self.stamp(6)
        c2 = 2 * math.sqrt(2 / math.pi) * LOG2E
        p(f"""
s_setprio {self.o.get('prioGv', 3)}
v_and_b32 v135, 15, v135
v_cmp_ne_u32 vcc, s{sN}, v134
v_cmp_ne_u32 s[48:49], s{sXCC}, v135
v_mov_b32 v128, {hx(-c2)}
v_mov_b32 v129, {hx(-c2)}
s_or_b64 s[48:49], s[48:49], vcc
s_cselect_b32 s{sSAME}, 0, {0 if self.o.get('nosame') else 1}
s_mov_b32 s48, {hx(-c2*0.044715)}
s_mov_b32 s49, {hx(-c2*0.044715)}
""")
        def gelu_pair(acc, bias, rr, t, out):
            return [
                f"v_pk_fma_f32 {vr(acc,2)}, {vr(acc,2)}, {vr(rr,2)}, {vr(bias,2)} op_sel_hi:[1,0,1]",
                f"v_pk_mul_f32 {vr(t,2)}, {vr(acc,2)}, {vr(acc,2)}",
                f"v_pk_fma_f32 {vr(t,2)}, {vr(t,2)}, s[48:49], v[128:129]",
                f"v_pk_mul_f32 {vr(t,2)}, {vr(t,2)}, {vr(acc,2)}",
                f"v_exp_f32 v{t}, v{t}", f"v_exp_f32 v{t+1}, v{t+1}",
                f"v_pk_add_f32 {vr(t,2)}, {vr(t,2)}, 1.0 op_sel_hi:[1,0]",
                f"v_rcp_f32 v{t}, v{t}", f"v_rcp_f32 v{t+1}, v{t+1}",
                f"v_pk_mul_f32 {vr(acc,2)}, {vr(acc,2)}, {vr(t,2)}",
                f"v_cvt_pk_bf16_f32 v{out}, v{acc}, v{acc+1}"]
        for ti, (acc, bias, rr, so) in enumerate(((48, 16, 10, 96), (64, 16, 14, 97), (80, 32, 10, 98))):
            if ti == 2:
                p("s_cmp_eq_u32 s60, 0\ns_cbranch_scc1 L_nohalf")
            for e in range(2):
                ls = [gelu_pair(acc + 8 * e + 2 * k, bias + 8 * e + 2 * k, rr, 136 + 2 * k, 160 + 8 * ti + 4 * e + k) for k in range(4)]
                for l in self.merge(*ls):
                    if not self.o.get("nogelu") or "cvt" in l:
                        p(l)
                self.dual_store([f"buffer_store_dwordx4 {vr(160+8*ti+4*e,4)}, v2, {srd(rWS)}, s{so} offen offset:{2048*e}"], self.o.get("hsc1"))
        p(f"""
L_nohalf:
s_lshl_b32 s56, s{sTG}, 7
s_add_u32 s56, s56, {FH}
s_lshl_b32 s3, s{sCG}, 2
s_add_u32 s3, s3, s{sJ}
s_lshl_b32 s3, s3, 2
s_add_u32 s57, s56, s3
v_mov_b32 v16, s{sN}
v_mov_b32 v17, 0
v_and_b32 v18, 31, v1
v_lshlrev_b32 v18, 2, v18
s_mul_i32 s62, s{sJ}, {XSL}
""")
        self.tr_addr32(5, 6, 8, "s63", None, True)
        p(f"""
v_xor_b32 v6, 64, v5
s_sub_u32 s3, s62, s63
v_add_u32 v3, s3, v5
v_add_u32 v4, s3, v6
v_and_b32 v7, 6, v15
v_and_b32 v8, 7, v1
v_xor_b32 v7, v7, v8
v_lshlrev_b32 v7, 4, v7
v_lshl_add_u32 v7, v15, 10, v7
s_lshl_b32 s3, s{sCG}, 7
v_add_u32 v7, s3, v7
s_lshl_b32 s61, s{sJ}, 17
s_lshl_b32 s60, s0, 11
s_waitcnt vmcnt(0)
s_mov_b64 exec, 1
""")
        self.dual_store([f"buffer_store_dword v16, v17, {srd(rWS)}, s57 offen"], self.o.get("hsc1") == 1)
        p("s_mov_b64 exec, -1")
        vq.q = []
        self.stamp(7)
        p(f"s_lshr_b32 s58, s69, 3\ns_add_u32 s58, s58, s99\ns_lshr_b32 s59, s{sTB}, 3\ns_add_u32 s59, s59, s99")
        self.flag_wait(18, 56, 19, sleep=self.o.get("hsleep", 2))
        self.stamp(8)
        p(f"s_setprio {self.o.get('prioGm', 0)}")
        def ld_h(i):
            b = 128 + 8 * (i % HD)
            p(f"buffer_load_dwordx4 {vr(b,4)}, v2, {srd(rWS)}, s67 offen sc1\nbuffer_load_dwordx4 {vr(b+4,4)}, v2, {srd(rWS)}, s67 offen offset:1024 sc1\ns_add_u32 s67, s67, 2048\ns_cmp_eq_u32 s67, s58\ns_cselect_b32 s67, s59, s67")
            vq.issue(("h", i)); vq.issue(("h", i))
        def dma_wo(i):
            p(f"s_add_u32 m0, s63, s60\ns_lshl_b32 s3, s60, 3\ns_add_u32 s3, s3, s61\nbuffer_load_dwordx4 v7, {srd(rWO)}, s3 offen lds\ns_add_u32 s60, s60, 1024\ns_and_b32 s60, s60, 0x3fff")
            vq.issue(("wo", i))
        def rd2(i):
            b = 112 + 8 * (i & 1)
            a0, a1 = (5, 6) if i < 8 else (3, 4)
            o = (slot1(32 + i) if i < 8 else i % 8) * 2048
            p(f"ds_read_b64_tr_b16 {vr(b,2)}, v{a0} offset:{o}\nds_read_b64_tr_b16 {vr(b+2,2)}, v{a0} offset:{o+1024}")
            p(f"ds_read_b64_tr_b16 {vr(b+4,2)}, v{a1} offset:{o}\nds_read_b64_tr_b16 {vr(b+6,2)}, v{a1} offset:{o+1024}")
            for _ in range(4):
                lq.issue(i)
        for i in range(HD):
            ld_h(i)
        rd2(0)
        for i in range(22):
            if i + 1 < 22:
                vq.wait(("w2", i + 1))
                rd2(i + 1)
            vq.wait(("h", i))
            lq.wait(i)
            if i == 21:
                p(f"s_cmp_ge_u32 s{sJ}, 2\ns_cbranch_scc1 L_skip21")
            b = 112 + 8 * (i & 1)
            h = 128 + 8 * (i % HD)
            for mh in range(2):
                for nb in range(2):
                    if self.o.get("nomm") and i:
                        continue
                    a = 48 + 16 * (2 * mh + nb)
                    p(f"v_mfma_f32_32x32x16_bf16 {vr(a,16)}, {vr(b+4*nb,4)}, {vr(h+4*mh,4)}, {'0' if i == 0 else vr(a,16)}")
            if i + HD < 22:
                ld_h(i + HD)
            if 8 <= i + WD < 22:
                dma_w2(i + WD, 62, (i + WD) % 8)
            if 13 <= i < 21:
                dma_wo(2 * (i - 13)); dma_wo(2 * (i - 13) + 1)
        p("L_skip21:")
        self.stamp(9)
        p(f"""
s_setprio {self.o.get('prioGv', 3)}
v_lshrrev_b32 v8, 4, v1
v_lshlrev_b32 v16, 3, v8
s_lshl_b32 s3, s{sCG}, 7
""")
        for nt in range(4):
            p(f"buffer_load_dwordx2 {vr(192+2*nt,2)}, v16, {srd(rB2)}, s3 offen offset:{32*nt}")
        p(f"""
v_and_b32 v3, 31, v1
v_and_b32 v4, 15, v1
v_lshrrev_b32 v5, 5, v1
v_xor_b32 v5, v5, v4
v_lshlrev_b32 v5, 4, v5
v_lshl_add_u32 v5, v3, 8, v5
v_add_u32 v5, s62, v5
""")
        for nb in range(2):
            for a in range(4):
                p(f"v_xor_b32 v{6 + (a & 1)}, {(8*nb+2*a) << 4}, v5")
                for mh in range(2):
                    p(f"ds_write_b128 v{6 + (a & 1)}, {vr(48+16*(2*mh+nb)+4*a,4)} offset:{8192*mh}")
        p(f"""
s_lshl_b32 s3, s{sJ}, 12
v_xor_b32 v5, v8, v4
v_lshlrev_b32 v5, 4, v5
v_lshl_add_u32 v5, v4, 8, v5
v_add_u32 v5, s3, v5
s_waitcnt vmcnt(0) lgkmcnt(0)
""")
        self.cnt_signal(5, 12, 13)
        for i in range(8):
            p(f"v_lshlrev_b32 v{16+2*i}, 16, v{192+i}\nv_and_b32 v{17+2*i}, 0xffff0000, v{192+i}")
        self.cnt_wait(5, 4, 12, 8, sleep=2)
        lq.q = []
        for nt in range(4):
            if nt:
                p(f"v_xor_b32 v6, {nt << 6}, v5")
            for kq in range(4):
                p(f"ds_read_b128 {vr(48+16*nt+4*kq,4)}, v{6 if nt else 5} offset:{kq*XSL}")
                lq.issue(nt)
        p(f"s_lshl_b32 s3, s{sJ}, 11\ns_add_u32 s3, s3, {GA}\nv_add_u32 v7, s3, v2\ns_mov_b32 s48, {hx(-LOG2E)}\ns_mov_b32 s49, {hx(-LOG2E)}")
        for nt in range(4):
            lq.wait(nt)
            z = 16 + 4 * nt
            def silu_pair(r, t):
                o = [f"v_pk_add_f32 {vr(r,2)}, {vr(r,2)}, {vr(48+16*nt+4*kq+(r-z),2)}" for kq in range(4)]
                return o + [f"v_pk_mul_f32 {vr(t,2)}, {vr(r,2)}, s[48:49]",
                            f"v_exp_f32 v{t}, v{t}", f"v_exp_f32 v{t+1}, v{t+1}",
                            f"v_pk_add_f32 {vr(t,2)}, {vr(t,2)}, 1.0 op_sel_hi:[1,0]",
                            f"v_rcp_f32 v{t}, v{t}", f"v_rcp_f32 v{t+1}, v{t+1}",
                            f"v_pk_mul_f32 {vr(r,2)}, {vr(r,2)}, {vr(t,2)}"]
            for l in self.merge(silu_pair(z, 32), silu_pair(z + 2, 34)):
                p(l)
            p(f"ds_write_b128 v7, {vr(z,4)} offset:{(nt >> 1) * 8192 + (nt & 1) * 1024}")
            lq.issue("w")
        p(f"L_g_x:\nv_mov_b32 v8, s{sSAME}\ns_waitcnt lgkmcnt(0)\ns_mov_b64 exec, 1\nds_max_u32 v12, v8 offset:12\nds_add_u32 v12, v13 offset:8\ns_mov_b64 exec, -1")
        p("s_setprio 0")
        self.stamp(10)
        p("""
s_barrier
ds_read_b32 v6, v12 offset:24
s_waitcnt lgkmcnt(0)
v_readfirstlane_b32 s3, v6
s_cmp_eq_u32 s3, 0
s_cbranch_scc1 L_final
s_barrier
""")

    def final(self):
        p = self.p
        p("L_final:")
        p(f"""
s_lshr_b32 s56, s{sW}, 2
v_lshrrev_b32 v3, 4, v1
v_and_b32 v4, 15, v1
s_lshl_b32 s3, s{sJ}, 4
v_add_u32 v5, s3, v4
v_lshlrev_b32 v5, 10, v5
v_lshl_add_u32 v5, v3, 3, v5
s_lshl_b32 s57, s{sTG}, 16
s_lshl_b32 s3, s{sCG}, 7
s_add_u32 s57, s57, s3
s_lshl_b32 s3, s56, 6
s_add_u32 s57, s57, s3
buffer_load_dwordx2 v[16:17], v5, {srd(rX)}, s57 offen
buffer_load_dwordx2 v[18:19], v5, {srd(rX)}, s57 offen offset:32
s_lshl_b32 s3, s{sW}, 11
s_add_u32 s3, s3, {GA}
v_add_u32 v6, s3, v2
ds_read_b128 v[20:23], v6
ds_read_b128 v[24:27], v6 offset:1024
v_bfe_u32 v8, v1, 2, 3
v_lshlrev_b32 v9, 7, v8
v_lshrrev_b32 v8, 1, v8
s_lshl_b32 s3, s56, 1
v_xor_b32 v8, s3, v8
v_lshl_or_b32 v9, v8, 5, v9
v_and_b32 v8, 3, v1
v_lshl_or_b32 v9, v8, 3, v9
v_lshrrev_b32 v8, 5, v1
v_lshl_or_b32 v9, v8, 11, v9
s_lshl_b32 s3, s56, 15
s_add_u32 s3, s3, {WQ}
v_add_u32 v8, s3, v9
v_xor_b32 v9, 32, v8
v_xor_b32 v10, 64, v8
v_xor_b32 v11, 96, v8
""")
        for s in range(8):
            for nt in range(4):
                for t in range(2):
                    p(f"ds_read_b64_tr_b16 {vr(128+16*s+4*nt+2*t,2)}, v{8+nt} offset:{s*4096+t*1024}")
        p(f"""
v_and_b32 v14, 31, v1
v_lshlrev_b32 v14, 2, v14
s_lshl_b32 s58, s{sTG}, 7
s_add_u32 s58, s58, {FO}
v_and_b32 v7, 1, v3
v_lshlrev_b32 v7, 9, v7
v_lshrrev_b32 v15, 1, v3
v_lshl_add_u32 v7, v15, 11, v7
v_lshl_add_u32 v7, v4, 4, v7
s_lshl_b32 s59, s{sTG}, 16
s_lshl_b32 s3, s56, 15
s_add_u32 s59, s59, s3
s_lshr_b32 s3, s{sJ}, 1
s_lshl_b32 s3, s3, 10
s_add_u32 s59, s59, s3
s_and_b32 s3, s{sJ}, 1
s_lshl_b32 s3, s3, 8
s_add_u32 s59, s59, s3
s_add_u32 s59, s59, {OF}
""")
        p(f"s_cmp_lg_u32 s{sW}, 7\ns_cbranch_scc1 L_nopoll")
        self.flag_wait(14, 58, 15, sleep=0)
        p("L_nopoll:\ns_barrier")
        self.stamp(11)
        vq = Queue(p, "vmcnt", 63)
        for s in range(8):
            p(f"buffer_load_dwordx4 {vr(64+4*s,4)}, v7, {srd(rWS)}, s59 offen sc1\ns_add_u32 s59, s59, 4096")
            vq.issue(s)
        p("s_waitcnt vmcnt(8)")
        for i in range(4):
            p(f"v_lshlrev_b32 v{28+2*i}, 16, v{16+i}\nv_and_b32 v{29+2*i}, 0xffff0000, v{16+i}")
        p("s_waitcnt lgkmcnt(0)")
        self.xstamp(2, 13)
        for s in range(8):
            vq.wait(s)
            for nt in (2, 3, 0, 1):
                p(f"v_mfma_f32_16x16x32_bf16 {vr(48+4*nt,4)}, {vr(128+16*s+4*nt,4)}, {vr(64+4*s,4)}, {'0' if s == 0 else vr(48+4*nt,4)}")
        p(f"""
s_xor_b32 s3, s{sW}, 4
s_lshl_b32 s3, s3, 11
s_add_u32 s3, s3, {GA}
v_add_u32 v7, s3, v2
ds_write_b128 v6, v[56:59]
ds_write_b128 v6, v[60:63] offset:1024
s_waitcnt lgkmcnt(0)
""")
        self.xstamp(2, 14)
        p("""
s_barrier
ds_read_b128 v[56:59], v7
ds_read_b128 v[60:63], v7 offset:1024
""")
        for e in range(2):
            p(f"s_waitcnt lgkmcnt({1-e})")
            for i in range(0, 4, 2):
                r = 48 + 4 * e + i
                p(f"v_pk_add_f32 {vr(r,2)}, {vr(r,2)}, {vr(r+8,2)}")
            for i in range(0, 4, 2):
                r = 48 + 4 * e + i
                p(f"v_pk_fma_f32 {vr(r,2)}, {vr(r,2)}, {vr(20+4*e+i,2)}, {vr(28+4*e+i,2)}")
            for i in range(2):
                p(f"v_cvt_pk_bf16_f32 v{16+2*e+i}, v{48+4*e+2*i}, v{49+4*e+2*i}")
            p(f"buffer_store_dwordx2 {vr(16+2*e,2)}, v5, {srd(rOUT)}, s57 offen offset:{32*e} {('', 'sc1', 'nt', 'sc0 sc1')[self.o.get('outf', 0)]}")
        if self.stamps:
            self.xstamp(2, 15)
            p("s_waitcnt vmcnt(0)")
            self.stamp(12)
            p(f"s_lshl_b32 s3, s2, 3\ns_add_u32 s3, s3, s{sW}\ns_lshl_b32 s3, s3, 7\ns_add_u32 s3, s3, {STAMP}\nv_mov_b32 v7, 0")
            p("s_waitcnt lgkmcnt(0)")
            for i in range(0, 16, 4):
                for k in range(4):
                    sl = self.slot(i + k) if (i + k < 13 or self.o.get("sset", 0)) else None
                    p(f"v_mov_b32 v{16+k}, s{70+2*(sl or 0)}")
                p(f"buffer_store_dwordx4 v[16:19], v7, {srd(rWS)}, s3 offen offset:{4*i}")
        if "fix" in self.o:
            p(f"s_waitcnt vmcnt(0)\nL_fix:\ns_memrealtime s[94:95]\ns_waitcnt lgkmcnt(0)\ns_sub_u32 s94, s94, s92\ns_cmp_lt_u32 s94, 10000\ns_cbranch_scc1 L_fix")
        p("L_exit:\ns_endpgm\nL_code_end:")

    def build(self, verbose=False):
        if self.stamps:
            for i in range(16):
                pass
        self.entry()
        self.role = 1
        self.a_wave()
        self.role = 2
        self.g_wave()
        self.role = 3
        self.final()
        ins = self.p.fix_hazards(verbose)
        head = open(f"cdna_kernels/{NAME}.s.ref").read().split("; Override launch")[0]
        return (head + f"; @launch grid=(256,1,1) block=(512,1,1) lds={LDS_BYTES}\n"
                + f""".amdgcn_target "amdgcn-amd-amdhsa--gfx950"
.text
.globl {NAME}_kernel
.p2align 8
.type {NAME}_kernel,@function
{NAME}_kernel:
""" + self.p.text() + f""".section .rodata,"a"
.p2align 6
.amdhsa_kernel {NAME}_kernel
  .amdhsa_next_free_vgpr 256
  .amdhsa_next_free_sgpr 102
  .amdhsa_accum_offset 256
  .amdhsa_group_segment_fixed_size 0
  .amdhsa_kernarg_size 104
  .amdhsa_user_sgpr_count 2
  .amdhsa_user_sgpr_kernarg_segment_ptr 1
  .amdhsa_system_sgpr_workgroup_id_x 1
  .amdhsa_float_denorm_mode_32 3
.end_amdhsa_kernel
""")


if __name__ == "__main__":
    out = sys.argv[1]
    opts = {}
    stamps = False
    for a in sys.argv[2:]:
        if a == "stamps":
            stamps = True
        elif a == "-v":
            opts["v"] = 1
        else:
            k, v = a.split("=")
            opts[k] = int(v)
    open(out, "w").write(Gen(stamps, opts).build(bool(opts.get("v"))))
```

```python
import sys, struct, math
from asmlib import Prog, Queue

NAME = "recurrent_scan__grouped_kv_mqa__mixer_channel_mlp__prompt"

def f2u(x):
    return struct.unpack("<I", struct.pack("<f", x))[0]
def hx(x):
    return f"0x{f2u(x):08x}"

X = 0; XS = 1040; XSL = 16640
WQ = 66560
WKV = 132096; GA = WKV
QX = 148480
ST = 156672
CNT = 157184
LDS_BYTES = 157696
OP = X; GP = X
FKV = 0x4000; FH = 0x2000; FO = 0x3000
KV = 0x10000; OF = 0x40000; HF = 0x240000; HTG = 86 * 2048
STAMP = 0x800000
WS_RANGE = 0x1000000
rX, rWS, rWQ, rWKV, rW1, rW2, rWO, rB1, rB2, rOUT = 4, 8, 12, 16, 20, 24, 28, 32, 36, 40
sW, sTG, sCG, sN, sTB, sJ = 44, 45, 46, 47, 52, 53
sONE, sLO, sHI = 64, 65, 66
sXCC, sSAME, sPOS = 100, 101, 1
srd = lambda r: f"s[{r}:{r+3}]"
vr = lambda a, n: f"v[{a}:{a+n-1}]"
LOG2E = 1.4426950408889634
SPIN = 1 << 20


class Gen:
    def __init__(self, stamps=False, opts=None):
        self.p = Prog()
        self.stamps = stamps
        self.o = opts or {}
        self.uid = 0
        self.role = 0

    def lab(self, s):
        self.uid += 1
        return f"L_{s}_{self.uid}"

    def xstamp(self, sset, i):
        if self.o.get("sset", 0) == sset:
            self.stamp(i)

    def stamp(self, i):
        if self.o.get("fix", -1) == i + 100 * self.role:
            self.p("s_waitcnt lgkmcnt(0)\ns_memrealtime s[92:93]\ns_waitcnt lgkmcnt(0)")
        if self.stamps:
            k = self.slot(i)
            if k is not None:
                self.p(f"s_memrealtime s[{70+2*k}:{71+2*k}]")
            if self.o.get("sset", 0) == 4 and i in (7, 8, 9):
                k = self.slot(i + 6)
                self.p(f"s_memtime s[{70+2*k}:{71+2*k}]")

    def slot(self, i):
        drop = {0: (), 1: (9, 10, 11), 2: (1, 2, 3), 3: (9, 10, 11), 4: (1, 2, 3), 5: (1, 2, 3)}[self.o.get("sset", 0)]
        if i in drop:
            return None
        return drop[i - 13] if i >= 13 else i

    def cnt_signal(self, k, vaddr, vone):
        self.p(f"s_mov_b64 exec, 1\nds_add_u32 v{vaddr}, v{vone} offset:{4*k}\ns_mov_b64 exec, -1")

    def cnt_wait(self, k, target, vaddr, vt, sleep=1):
        p = self.p
        l, d = self.lab("cw"), self.lab("cd")
        p(f"s_mov_b32 s54, {SPIN}\n{l}:\nds_read_b32 v{vt}, v{vaddr} offset:{4*k}\ns_waitcnt lgkmcnt(0)")
        p(f"v_readfirstlane_b32 s55, v{vt}\ns_cmp_ge_u32 s55, {target}\ns_cbranch_scc1 {d}")
        if sleep:
            p(f"s_sleep {sleep}")
        p(f"s_sub_u32 s54, s54, 1\ns_cmp_lg_u32 s54, 0\ns_cbranch_scc1 {l}\n{d}:")

    def flag_wait(self, vaddr, soff, vt, sleep=1):
        p = self.p
        l, d = self.lab("fw"), self.lab("fd")
        p(f"s_mov_b32 s54, {SPIN}\n{l}:\nbuffer_load_dword v{vt}, v{vaddr}, {srd(rWS)}, s{soff} offen sc1\ns_waitcnt vmcnt(0)")
        p(f"v_cmp_ne_u32 vcc, s{sN}, v{vt}\ns_cbranch_vccz {d}")
        if sleep:
            p(f"s_sleep {sleep}")
        p(f"s_sub_u32 s54, s54, 1\ns_cmp_lg_u32 s54, 0\ns_cbranch_scc1 {l}\n{d}:")

    @staticmethod
    def merge(*lists):
        out = []
        n = max(len(l) for l in lists)
        for i in range(n):
            for l in lists:
                if i < len(l):
                    out.append(l[i])
        return out

    def entry(self):
        p = self.p
        if self.stamps:
            p("s_memrealtime s[70:71]")
        if "fix" in self.o:
            p("s_memrealtime s[92:93]")
        p(f"""
s_load_dwordx2 s[{rX}:{rX+1}], s[0:1], 0
s_load_dwordx4 s[48:51], s[0:1], 16
s_load_dwordx2 s[{rWS}:{rWS+1}], s[0:1], 96
s_load_dwordx2 s[{rWQ}:{rWQ+1}], s[0:1], 8
s_cmp_ge_u32 s2, 256
s_cbranch_scc1 L_exit
s_getpc_b64 s[54:55]
L_pc:
v_lshlrev_b32 v3, 7, v0
v_min_u32 v3, L_code_end-L_pc-4, v3
v_mov_b32 v5, s55
v_add_co_u32 v4, vcc, s54, v3
v_lshrrev_b32 v7, 6, v0
v_and_b32 v1, 63, v0
v_addc_co_u32 v5, vcc, 0, v5, vcc
v_readfirstlane_b32 s{sW}, v7
global_load_dword v6, v[4:5], off
s_load_dwordx2 s[{rW1}:{rW1+1}], s[0:1], 48
s_load_dwordx2 s[{rB1}:{rB1+1}], s[0:1], 56
s_load_dwordx2 s[{rW2}:{rW2+1}], s[0:1], 64
s_load_dwordx2 s[{rB2}:{rB2+1}], s[0:1], 72
s_load_dwordx2 s[{rOUT}:{rOUT+1}], s[0:1], 80
s_load_dwordx2 s[{rWO}:{rWO+1}], s[0:1], 32
s_and_b32 s3, s2, 7
s_lshr_b32 s54, s2, 3
s_and_b32 s{sCG}, s54, 7
s_lshr_b32 s54, s54, 3
s_lshl_b32 s3, s3, 2
s_add_u32 s{sTG}, s3, s54
s_lshl_b32 s55, s54, 3
s_and_b32 s3, s2, 7
s_add_u32 s55, s55, s3
s_lshr_b32 s{sTB}, s{sCG}, 1
s_and_b32 s{sJ}, s{sW}, 3
v_lshlrev_b32 v2, 4, v1
v_lshrrev_b32 v3, 4, v1
v_and_b32 v4, 15, v1
v_lshlrev_b32 v8, 10, v3
v_lshl_add_u32 v8, v4, 4, v8
s_mov_b32 s{rX+2}, 2097152
s_mov_b32 s{rX+3}, 0x20000
s_lshr_b32 s3, s{sW}, 2
s_add_u32 s3, s3, s{sTB}
s_and_b32 s3, s3, 3
s_lshl_b32 s3, s3, 2
s_add_u32 s57, s3, s{sJ}
s_lshl_b32 s57, s57, 2
s_lshl_b32 s56, s{sTG}, 16
s_lshl_b32 s58, s57, 10
s_add_u32 s58, s58, s56
v_mov_b32 v12, {CNT}
v_mov_b32 v10, 0
v_mov_b32 v11, 0
s_mov_b64 exec, 15
v_lshl_add_u32 v13, v1, 3, v12
ds_write_b64 v13, v[10:11]
s_mov_b64 exec, -1
s_and_b32 s3, s{sCG}, 1
s_cmp_eq_u32 s3, 0
s_waitcnt lgkmcnt(0)
s_cselect_b32 s{rWKV}, s48, s50
s_cselect_b32 s{rWKV+1}, s49, s51
s_mov_b32 s{sPOS}, s55
""")
        self.xstamp(3, 13)
        UF = self.o.get("ufirst", 0)
        if UF:
            for i in range(4):
                p(f"buffer_load_dwordx4 {vr(16+4*i,4)}, v8, {srd(rX)}, s58 offen offset:{256*i}")
        p(f"""
s_mov_b32 s{rWKV+2}, 16384
s_mov_b32 s{rWKV+3}, 0x20000
s_cmp_lg_u32 s{sW}, 7
s_cbranch_scc1 L_nowkv
""")
        for i in range(4):
            p(f"s_mov_b32 m0, {WKV + 4096 * i}\ns_mov_b32 s3, {4096 * i}")
            for k in range(4):
                p(f"buffer_load_dwordx4 v2, {srd(rWKV)}, s3 offen offset:{1024 * k} lds")
        p("L_nowkv:")
        if not UF:
            for i in range(4):
                p(f"buffer_load_dwordx4 {vr(16+4*i,4)}, v8, {srd(rX)}, s58 offen offset:{256*i}")
        p(f"""
s_load_dword s{sN}, s[{rWS}:{rWS+1}], 0
s_getreg_b32 s{sXCC}, hwreg(HW_REG_XCC_ID, 0, 4)
v_lshrrev_b32 v15, 3, v1
v_and_b32 v5, 7, v1
""")
        for r, n in ((rWS, WS_RANGE), (rWQ, 524288), (rW1, 512 * 2752), (rW2, 1376 * 1024), (rWO, 524288),
                     (rB1, 2752), (rB2, 1024), (rOUT, 2097152)):
            p(f"s_mov_b32 s{r+2}, {n}\ns_mov_b32 s{r+3}, 0x20000")
        p(f"s_mov_b32 s{sONE}, 0x3f803f80\ns_mov_b32 s{sLO}, 0x00003f80\ns_mov_b32 s{sHI}, 0x3f800000")
        p(f"""
v_add_u32 v3, s57, v3
v_mul_u32_u24 v10, {XS}, v3
v_lshl_add_u32 v10, v4, 4, v10
v_lshlrev_b32 v11, 2, v3
v_add_u32 v11, {ST}, v11
v_mov_b32 v13, 1
""")
        p(f"s_cmp_ge_u32 s{sW}, 4\ns_cbranch_scc1 L_G")

    def unit(self, a, n, dpps, step, vadr, vst, mask, tmp, inter=()):
        inter = list(inter)
        cnt = [0]
        def p(text):
            for l in text.split("\n"):
                self.p(l)
                cnt[0] += 1
                if inter and cnt[0] % 6 == 0 and l.startswith("v_"):
                    self.p(inter.pop(0))
        tA, tB = tmp, tmp + 1
        T = tmp + 2
        for k in range(n):
            p(f"v_dot2_f32_bf16 v{tA}, v{a+k}, s{sONE}, {'0' if k == 0 else f'v{tA}'}")
            p(f"v_dot2_f32_bf16 v{tB}, v{a+k}, v{a+k}, {'0' if k == 0 else f'v{tB}'}")
        for c in dpps:
            p(f"v_add_f32_dpp v{tA}, v{tA}, v{tA} {c} row_mask:0xf bank_mask:0xf")
            p(f"v_add_f32_dpp v{tB}, v{tB}, v{tB} {c} row_mask:0xf bank_mask:0xf")
        p(f"v_mul_f32 v{tA}, {hx(-1.0/512)}, v{tA}")
        p(f"v_mul_f32 v{tB}, {hx(1.0/512)}, v{tB}")
        tail = [f"v_fma_f32 v{tB}, -v{tA}, v{tA}, v{tB}", f"v_max_f32 v{tB}, 0, v{tB}", f"v_add_f32 v{T+16}, {hx(1e-5)}, v{tB}",
                f"v_rsq_f32 v{T+16}, v{T+16}", None, f"v_mul_f32 v{tB}, v{T+16}, v{tB}", f"v_mul_f32 v{tB}, v{T+16}, v{tB}",
                f"v_add_f32 v{tB}, {hx(1e-5)}, v{tB}", f"v_rsq_f32 v{tB}, v{tB}", None, f"v_mul_f32 v{tB}, v{T+16}, v{tB}"]
        def dots(g):
            for k in range(4):
                r, t = a + 4 * g + k, T + 8 * (g & 1) + 2 * k
                p(f"v_dot2_f32_bf16 v{t}, v{r}, s{sLO}, v{tA}\nv_dot2_f32_bf16 v{t+1}, v{r}, s{sHI}, v{tA}")
        dots(0)
        for g in range(n // 4):
            if g + 1 < n // 4:
                dots(g + 1)
            for _ in range(3):
                if tail:
                    x = tail.pop(0)
                    if x:
                        p(x)
            for k in range(4):
                r, t = a + 4 * g + k, T + 8 * (g & 1) + 2 * k
                p(f"v_cvt_pk_bf16_f32 v{r}, v{t}, v{t+1}")
            if not self.o.get("nowr"):
                p(f"ds_write_b128 v{vadr}, {vr(a+4*g,4)} offset:{step*g}")
        for x in tail:
            if x:
                p(x)
        p(f"s_mov_b32 exec_lo, {mask}\ns_mov_b32 exec_hi, {mask}")
        p(f"ds_write2st64_b32 v{vst}, v{T+16}, v{tB} offset1:1")
        p("s_mov_b64 exec, -1")
        for l in inter:
            self.p(l)

    def unit4(self, inter=()):
        self.unit(16, 16, ("quad_perm:[1,0,3,2]", "quad_perm:[2,3,0,1]", "row_half_mirror", "row_mirror"), 256, 10, 11, "0x00010001", 64, inter)

    def unit8(self, vadr, vst):
        self.unit(32, 32, ("quad_perm:[1,0,3,2]", "quad_perm:[2,3,0,1]", "row_half_mirror"), 128, vadr, vst, "0x01010101", 64)

    def dual_store(self, text, through=False):
        if through:
            self.p("\n".join(l + " sc1" for l in text))
            return
        a, b = self.lab("ds"), self.lab("de")
        self.p(f"s_cmp_lg_u32 s{sSAME}, 0\ns_cbranch_scc1 {a}\n" + "\n".join(l + " sc1" for l in text) + f"\ns_branch {b}\n{a}:\n" + "\n".join(text) + f"\n{b}:")

    def kv_job(self):
        p = self.p
        WF, XF = 128, 192
        p(f"""
v_and_b32 v4, 15, v1
v_lshrrev_b32 v5, 4, v1
s_mul_i32 s3, s{sTB}, {XSL}
v_mul_u32_u24 v3, {XS}, v4
v_lshl_add_u32 v3, v5, 4, v3
v_add_u32 v3, s3, v3
""")
        lq = Queue(p, "lgkmcnt", 15)
        for s in range(16):
            p(f"ds_read_b128 {vr(XF+4*s,4)}, v3 offset:{s*64}")
            lq.issue(s)
        p(f"""
s_lshl_b32 s54, s{sPOS}, 12
s_lshr_b32 s3, s{sTB}, 1
s_lshl_b32 s3, s3, 11
s_add_u32 s54, s54, s3
s_add_u32 s54, s54, {KV}
s_and_b32 s55, s{sTB}, 1
s_lshl_b32 s56, s{sTB}, 6
s_add_u32 s56, s56, {ST}
s_and_b32 s3, s{sCG}, 1
s_cmp_eq_u32 s3, 1
s_cbranch_scc1 L_vjob
v_lshl_add_u32 v7, v4, 2, s56
ds_read_b32 v52, v7
""")
        save = list(lq.q)
        lq.issue("r")
        for s in range(16):
            lq.wait(s)
            p(f"v_mfma_f32_16x16x32_bf16 v[48:51], {vr(WF+4*s,4)}, {vr(XF+4*s,4)}, {'0' if s == 0 else 'v[48:51]'}")
        p(f"""
v_and_b32 v7, 1, v5
v_lshlrev_b32 v7, 9, v7
v_lshl_add_u32 v7, v4, 4, v7
v_lshrrev_b32 v6, 1, v5
v_lshl_add_u32 v7, v6, 3, v7
s_lshl_b32 s55, s55, 8
s_add_u32 s54, s54, s55
s_waitcnt lgkmcnt(0)
v_mul_f32 v48, v52, v48
v_mul_f32 v49, v52, v49
v_mul_f32 v50, v52, v50
v_mul_f32 v51, v52, v51
v_cvt_pk_bf16_f32 v54, v48, v49
v_cvt_pk_bf16_f32 v55, v50, v51
buffer_store_dwordx2 v[54:55], v7, {srd(rWS)}, s54 offen sc1
v_dot2_f32_bf16 v57, v54, v54, 0
v_dot2_f32_bf16 v57, v55, v55, v57
v_mov_b32 v58, v57
v_permlane16_swap_b32 v57, v58
v_add_f32 v57, v57, v58
v_mov_b32 v58, v57
v_permlane32_swap_b32 v57, v58
v_add_f32 v57, v57, v58
s_branch L_kvpub
L_vjob:
v_lshl_add_u32 v7, v5, 4, s56
ds_read_b128 v[52:55], v7
""")
        lq.q = save + ["r"]
        for s in range(16):
            lq.wait(s)
            p(f"v_mfma_f32_16x16x32_bf16 v[48:51], {vr(XF+4*s,4)}, {vr(WF+4*s,4)}, {'0' if s == 0 else 'v[48:51]'}")
        p(f"""
v_lshrrev_b32 v7, 1, v5
v_lshlrev_b32 v7, 8, v7
v_lshl_add_u32 v7, v4, 4, v7
v_and_b32 v6, 1, v5
v_lshl_add_u32 v7, v6, 3, v7
s_lshl_b32 s55, s55, 9
s_add_u32 s54, s54, s55
s_add_u32 s54, s54, 1024
s_waitcnt lgkmcnt(0)
v_mul_f32 v48, v52, v48
v_mul_f32 v49, v53, v49
v_mul_f32 v50, v54, v50
v_mul_f32 v51, v55, v51
v_cvt_pk_bf16_f32 v54, v48, v49
v_cvt_pk_bf16_f32 v55, v50, v51
buffer_store_dwordx2 v[54:55], v7, {srd(rWS)}, s54 offen sc1
v_max3_f32 v57, |v48|, |v49|, |v50|
v_max_f32 v57, v57, |v51|
v_mov_b32 v58, v57
v_permlane16_swap_b32 v57, v58
v_max_f32 v57, v57, v58
v_mov_b32 v58, v57
v_permlane32_swap_b32 v57, v58
v_max_f32 v57, v57, v58
L_kvpub:
""")
        for c in ("quad_perm:[1,0,3,2]", "quad_perm:[2,3,0,1]", "row_half_mirror", "row_mirror"):
            p(f"v_max_u32_dpp v57, v57, v57 {c} row_mask:0xf bank_mask:0xf")
        p(f"""
v_add_u32 v57, 16, v57
v_and_b32 v57, -16, v57
v_or_b32 v61, s{sXCC}, v57
v_mov_b32 v60, s{sN}
s_lshl_b32 s58, s{sPOS}, 3
s_add_u32 s58, s58, s{sCG}
s_lshl_b32 s58, s58, 3
s_add_u32 s58, s58, {FKV}
""")

    def kv_flag(self):
        self.p(f"""
s_waitcnt vmcnt(0)
s_mov_b64 exec, 0xff
buffer_store_dwordx2 v[60:61], v62, {srd(rWS)}, s58 offen sc1
s_mov_b64 exec, -1
s_setprio 0
""")
        self.stamp(3)

    def tr_addr32(self, dst, t0, t1, base_expr, nh_sgpr, perm):
        p = self.p
        p(f"""
v_lshrrev_b32 v{t0}, 1, v1
v_and_b32 v{t0}, 1, v{t0}
v_lshrrev_b32 v{t1}, 3, v1
v_and_b32 v{dst}, 2, v{t1}
v_or_b32 v{t0}, v{t0}, v{dst}
v_and_b32 v{t1}, 1, v{t1}
v_lshl_or_b32 v{t0}, v{t1}, 2, v{t0}
v_lshlrev_b32 v{t0}, 4, v{t0}
v_and_b32 v{t1}, 1, v1
v_lshl_or_b32 v{t0}, v{t1}, 3, v{t0}
v_bfe_u32 v{t1}, v1, 2, 2
v_lshl_or_b32 v{t0}, v{t1}, 7, v{t0}
v_lshrrev_b32 v{t1}, 5, v1
v_lshl_or_b32 v{t0}, v{t1}, {9 if perm else 10}, v{t0}
v_add_u32 v{dst}, {base_expr}, v{t0}
""")
        if nh_sgpr is not None:
            p(f"s_lshl_b32 s3, s{nh_sgpr}, 6\nv_xor_b32 v{dst}, s3, v{dst}")

    def a_wave(self):
        p = self.p
        q0, SA, SB, K0, V0, vI, vK, vV, o0 = 16, 48, 64, 80, 92, 116, 11, 117, 128
        p(f"""
s_setprio 2
""")
        p(f"""
v_mov_b32 v{V0}, 0
v_mov_b32 v{V0+1}, 0
v_mov_b32 v{V0+2}, 0
v_mov_b32 v{V0+3}, 0
s_add_u32 s62, s2, {self.o.get("far", 4)}
s_and_b32 s62, s62, 6
s_lshl_b32 s3, s62, 3
v_add_u32 v125, s3, v1
v_and_b32 v125, 63, v125
v_lshlrev_b32 v125, 3, v125
s_lshl_b32 s62, s62, 12
v_mov_b32 v{vI}, 0xdddddddd
""")
        for t in range(8):
            p(f"v_mfma_f32_32x32x16_bf16 {vr(o0+16*t,16)}, {vr(V0,4)}, {vr(V0,4)}, 0")
        p(f"""
v_and_b32 v9, 15, v1
v_lshrrev_b32 v7, 5, v1
v_lshl_add_u32 v9, v7, 4, v9
v_lshlrev_b32 v9, 4, v9
s_lshl_b32 s63, s{sJ}, 15
s_add_u32 s63, s63, {KV}
s_add_u32 s3, s63, 1024
v_add_u32 v{vV}, s3, v9
s_lshr_b32 s3, s{sW}, 1
s_lshl_b32 s3, s3, 12
s_and_b32 s54, s{sW}, 1
s_lshl_b32 s54, s54, 10
s_add_u32 s3, s3, s54
s_add_u32 s3, s3, {QX}
v_add_u32 v124, s3, v2
s_mov_b32 s68, 0x0000ffff
s_mov_b32 s69, 0x0000ffff
v_and_b32 v7, 27, v1
v_cmp_eq_u32 vcc, 16, v7
v_mov_b32 v7, s{sONE}
s_nop 0
v_cndmask_b32 v{V0}, 0, v7, vcc
""")
        for k in range(3):
            p(f"""
s_add_u32 s3, s{sJ}, {1+k}
s_and_b32 s3, s3, 3
s_mul_i32 s3, s3, 13824
s_add_u32 s3, s3, {OP + (2-k)*4608}
v_add_u32 v{118+k}, s3, v2
s_add_u32 s3, s3, 4096
v_lshl_add_u32 v{121+k}, v1, 2, s3
""")
        for i in range(1, 24):
            p(f"v_mov_b32 v{V0+i}, v{V0}")
        self.xstamp(3, 14)
        p(f"""
v_lshlrev_b32 v7, 10, v15
v_lshl_add_u32 v7, v5, 4, v7
s_lshr_b32 s3, s{sJ}, 1
s_add_u32 s3, s3, s{sTB}
s_add_u32 s3, s3, 2
s_and_b32 s3, s3, 3
s_lshl_b32 s3, s3, 1
s_and_b32 s59, s{sJ}, 1
s_add_u32 s59, s59, s3
s_lshl_b32 s59, s59, 3
s_lshl_b32 s58, s59, 10
s_add_u32 s58, s58, s56
""")
        for i in range(8):
            p(f"buffer_load_dwordx4 {vr(32+4*i,4)}, v7, {srd(rX)}, s58 offen offset:{128*i}")
        p(f"""
s_barrier
v_add_u32 v8, s59, v15
v_mul_u32_u24 v14, {XS}, v8
v_lshl_add_u32 v14, v5, 4, v14
v_lshlrev_b32 v15, 2, v8
v_add_u32 v15, {ST}, v15
""")
        self.xstamp(3, 15)
        p("s_waitcnt vmcnt(8)")
        self.stamp(1)
        self.unit4()
        self.cnt_signal(4, 12, 13)
        self.stamp(2)
        p("s_waitcnt vmcnt(0)")
        self.xstamp(1, 13)
        self.unit8(14, 15)
        p(f"""
s_and_b32 s56, s{sW}, 1
s_lshr_b32 s57, s{sW}, 1
v_and_b32 v5, 31, v1
s_lshl_b32 s3, s56, 5
v_add_u32 v5, s3, v5
v_mul_u32_u24 v3, {XS}, v5
v_lshrrev_b32 v7, 5, v1
v_lshl_add_u32 v3, v7, 4, v3
v_lshlrev_b32 v5, 2, v5
v_add_u32 v5, {ST}, v5
""")
        self.tr_addr32(4, 7, 8, str(WQ), 57, False)
        p(f"v_add_u32 v{vK}, s63, v2")
        p(f"""
s_and_b32 s56, s2, 7
s_lshl_b32 s56, s56, 2
s_add_u32 s56, s56, s{sJ}
s_lshl_b32 s56, s56, 9
s_add_u32 s56, s56, {FKV}
s_waitcnt lgkmcnt(0)
s_add_u32 s{sN}, s{sN}, 0x9e3779b9
""")
        self.xstamp(1, 14)
        p("s_barrier")
        self.stamp(4)
        lq = Queue(p, "lgkmcnt", 15)
        p("ds_read_b32 v8, v5")
        lq.issue("r")
        QL = self.o.get("ql", 4)
        qb = lambda s: (16, 24, 32, 40, 64, 72)[s % (QL + 1)]
        def rd(s):
            b = qb(s)
            p(f"ds_read_b64_tr_b16 {vr(b,2)}, v4 offset:{s*2048}\nds_read_b64_tr_b16 {vr(b+2,2)}, v4 offset:{s*2048+512}\nds_read_b128 {vr(b+4,4)}, v3 offset:{s*32}")
            for _ in range(3):
                lq.issue(s)
        poll = lambda m: f"s_mov_b64 exec, {m}\nbuffer_load_dwordx2 v[126:127], v125, {srd(rWS)}, s56 offen sc1\ns_mov_b64 exec, -1"
        first = f"""
s_add_u32 s58, s62, 2048
buffer_load_dwordx4 {vr(K0,4)}, v{vK}, {srd(rWS)}, s62 offen sc1
s_mov_b64 exec, s[68:69]
buffer_load_dwordx4 {vr(V0,4)}, v{vV}, {srd(rWS)}, s62 offen sc1
buffer_load_dwordx4 {vr(V0+4,4)}, v{vV}, {srd(rWS)}, s62 offen offset:512 sc1
buffer_load_dwordx4 {vr(V0+8,4)}, v{vV}, {srd(rWS)}, s58 offen sc1
buffer_load_dwordx4 {vr(V0+12,4)}, v{vV}, {srd(rWS)}, s58 offen offset:512 sc1
s_mov_b64 exec, -1
buffer_load_dwordx4 {vr(K0+4,4)}, v{vK}, {srd(rWS)}, s58 offen sc1
"""
        for s in range(QL):
            rd(s)
        for s in range(32):
            if s + QL == 16:
                p("s_barrier")
            if s == self.o.get("pollat", 20):
                p(poll("0xffff"))
            if s + QL < 32:
                rd(s + QL)
            lq.wait(s)
            b = qb(s)
            p(f"v_mfma_f32_32x32x16_bf16 v[48:63], {vr(b,4)}, {vr(b+4,4)}, {'0' if s == 0 else 'v[48:63]'}")
        p(f"""
s_waitcnt vmcnt(0)
v_cmp_ne_u32 vcc, s{sN}, v126
v_mul_f32 v8, {hx(0.25*LOG2E)}, v8
s_and_b64 s[60:61], vcc, 0xffff
s_cbranch_scc1 L_kv_notyet
{first}
L_kv_notyet:
""")
        for k in range(4):
            p(f"s_add_u32 s3, s{sJ}, {1+k}\ns_and_b32 s3, s3, 3\ns_lshl_b32 s3, s3, 11\ns_add_u32 s3, s3, {QX}\nv_add_u32 v{(3,4,5,7)[k]}, s3, v2")
        for i in range(0, 16, 2):
            p(f"v_pk_mul_f32 {vr(48+i,2)}, {vr(48+i,2)}, v[8:9] op_sel_hi:[1,0]")
        for i in range(8):
            p(f"v_cvt_pk_bf16_f32 v{16+i}, v{48+2*i}, v{49+2*i}")
        p("ds_write_b128 v124, v[16:19]\nds_write_b128 v124, v[20:23] offset:2048")
        for r in range(4):
            for e in range(2):
                p(f"v_dot2_f32_bf16 v{48+e}, v{16+4*e+r}, v{16+4*e+r}, {'0' if r == 0 else f'v{48+e}'}")
        p("v_permlane32_swap_b32 v48, v49\nv_add_f32 v48, v48, v49\nds_max_u32 v12, v48 offset:4")
        self.cnt_signal(0, 12, 13)
        self.stamp(5)
        def flags_loop(mask, sleep_first):
            l = self.lab("kw")
            p(f"""
s_mov_b32 s54, {SPIN}
{l}:
{f"s_sleep {self.o.get('ksleep', 4)}" if sleep_first else ""}
{poll(mask)}
s_waitcnt vmcnt(0)
v_cmp_ne_u32 vcc, s{sN}, v126
s_sub_u32 s54, s54, 1
s_cselect_b64 vcc, 0, vcc
s_and_b64 vcc, vcc, {mask}
s_cbranch_scc1 {l}
""")
        def flags_wait(mask, outstanding):
            d = self.lab("kd")
            p(f"s_waitcnt vmcnt({outstanding})\nv_cmp_ne_u32 vcc, s{sN}, v126\ns_and_b64 vcc, vcc, {mask}\ns_cbranch_scc0 {d}")
            flags_loop(mask, True)
            p(f"{d}:")
        p("s_cmp_eq_u64 s[60:61], 0\ns_cbranch_scc1 L_kv_have")
        flags_loop("0xffff", True)
        p(first)
        p("L_kv_have:")
        self.stamp(6)
        for i in range(8):
            p(f"v_mov_b32 v{SB+8+i}, 0")
        l, d = self.lab("qw"), self.lab("qd")
        p(f"""
s_mov_b32 s54, {SPIN}
{l}:
ds_read_b64 v[8:9], v12
s_waitcnt lgkmcnt(0)
v_readfirstlane_b32 s55, v8
s_cmp_ge_u32 s55, 4
s_cbranch_scc1 {d}
s_sub_u32 s54, s54, 1
s_cmp_lg_u32 s54, 0
s_cbranch_scc1 {l}
{d}:
""")
        for k in range(4):
            p(f"ds_read_b128 {vr(q0+8*k,4)}, v{(3,4,5,7)[k]}\nds_read_b128 {vr(q0+8*k+4,4)}, v{(3,4,5,7)[k]} offset:1024")
        self.stamp(7)
        S = [SA, SB]
        def qk(dst, kb, t):
            return f"v_mfma_f32_32x32x16_bf16 {vr(dst,16)}, {vr(kb,4)}, {vr(q0+4*t,4)}, 0"
        def pv(t, vb, sb):
            return f"v_smfmac_f32_32x32x32_bf16 {vr(o0+16*t,16)}, {vr(vb,4)}, {vr(sb,8)}, v{vI}"
        def opw(t):
            k, e = t >> 1, t & 1
            w = [f"ds_write_b128 v{118+k}, {vr(o0+16*t,4)} offset:{2048*e}",
                 f"ds_write_b128 v{118+k}, {vr(o0+16*t+4,4)} offset:{2048*e+1024}"]
            if e:
                w.append(f"ds_write2st64_b32 v{121+k}, v{o0+16*(t-1)+8}, v{o0+16*t+8} offset1:1")
            return w
        def tick(k):
            if self.o.get("sset", 0) == 5:
                p("s_memtime s[48:49]")
        def tock(k):
            if self.o.get("sset", 0) == 5:
                p(f"s_memtime s[50:51]\ns_waitcnt lgkmcnt(0)\ns_sub_u32 s50, s50, s48\ns_add_u32 s{72+2*k}, s{72+2*k}, s50")
        if self.o.get("sset", 0) == 5:
            p("s_mov_b32 s72, 0\ns_mov_b32 s74, 0")
        def tile(pb, last=False, load=True):
            Kc, Kn, Kp = K0 + 4 * pb, K0 + 4 * ((pb + 1) % 3), K0 + 4 * ((pb + 2) % 3)
            Vc, Vp = V0 + 8 * pb, V0 + 8 * ((pb + 2) % 3)
            for t in range(8):
                Xb, Yb = S[t & 1], S[(t + 1) & 1]
                wr = opw(t - 2) if (last and t >= 2) else []
                for i in range(16):
                    p(f"v_exp_f32 v{Xb+i}, v{Xb+i}")
                    if i == 1:
                        p(pv((t - 1) & 7, (Vp if t == 0 else Vc) + 4, Yb + 8))
                    if t == 0 and not last and load:
                        if i == 2:
                            tick(0)
                            p(f"s_add_u32 s58, s58, 2048\ns_and_b32 s58, s58, 0x7fff\nbuffer_load_dwordx4 {vr(Kp,4)}, v{vK}, {srd(rWS)}, s58 offen sc1")
                            tock(0)
                        if i == 6:
                            tick(0)
                            p(f"s_mov_b64 exec, s[68:69]\nbuffer_load_dwordx4 {vr(Vp,4)}, v{vV}, {srd(rWS)}, s58 offen sc1")
                            p(f"buffer_load_dwordx4 {vr(Vp+4,4)}, v{vV}, {srd(rWS)}, s58 offen offset:512 sc1\ns_mov_b64 exec, -1")
                            tock(0)
                    if i == 4:
                        if t < 7:
                            p(qk(Yb, Kc, t + 1))
                        elif not last:
                            tick(1)
                            p(f"s_waitcnt vmcnt({3 if load else 0})")
                            tock(1)
                            p(qk(Yb, Kn, 0))
                    if i == self.o.get('p0', 9):
                        p(pv(t, Vc, Xb))
                    if wr and i in (3, 7, 11):
                        p(wr.pop(0))
        p("s_waitcnt vmcnt(5) lgkmcnt(0)")
        p(qk(SA, K0, 0))
        p(f"s_setprio {self.o.get('prioA', 0)}")
        p(f"""
s_lshl_b32 s3, s{sCG}, 2
s_add_u32 s3, s3, s{sJ}
s_lshl_b32 s3, s3, 11
s_lshl_b32 s60, s{sTG}, 16
s_add_u32 s60, s60, s3
s_add_u32 s60, s60, {OF}
v_and_b32 v3, 1, v1
v_cmp_eq_u32 s[96:97], 0, v3
v_mov_b32 v3, {hx(4096.0)}
v_mov_b32 v4, {hx(2.0**40)}
v_mov_b32 v5, 1.0
v_cndmask_b32 v3, v4, v3, s[96:97]
v_cndmask_b32 v9, v5, v9, s[96:97]
s_waitcnt vmcnt(3)
""")
        if self.o.get("skipA"):
            p("s_branch L_att_x")
        check = f"""
v_mul_f32 v4, v127, v9
v_cmp_nge_f32 vcc, v3, v4
v_mov_b32 v4, {hx(2.0**-40)}
v_cmp_le_f32 s[98:99], v4, v127
s_andn2_b64 s[98:99], s[98:99], s[96:97]
s_cselect_b64 s[98:99], 0, 1
s_or_b64 vcc, vcc, s[98:99]
{"s_cmp_eq_u32 s3, s3" if self.o.get("force_slow") else ""}
s_cselect_b32 s3, 1, 0
v_mov_b32 v4, s3
s_mov_b64 exec, 1
ds_add_u32 v12, v4 offset:24
s_mov_b64 exec, -1
"""
        p(".p2align 6\nL_att:")
        for n in range(15):
            tile(n % 3, load=(n < 14))
            if n == 0:
                p(f"buffer_load_dwordx2 v[126:127], v125, {srd(rWS)}, s56 offen sc1")
            if n == 1:
                flags_wait("-1", 3)
                p(check)
            if n in (8, 10, 12) and not self.o.get("nopt"):
                k = (n - 8) // 2
                for i in range(6 * k, min(16, 6 * k + 6)):
                    p(f"s_buffer_load_dwordx2 s[98:99], {srd(rWS)}, s60 offset:{128*i+60}")
        p("L_att_x:")
        self.stamp(8)
        l, d = self.lab("gw"), self.lab("gd")
        p(f"""
s_mov_b32 s54, {SPIN}
{l}:
ds_read_b64 v[6:7], v12 offset:8
s_waitcnt lgkmcnt(0)
v_readfirstlane_b32 s55, v6
v_readfirstlane_b32 s{sSAME}, v7
s_cmp_ge_u32 s55, 4
s_cbranch_scc1 {d}
s_sleep 1
s_sub_u32 s54, s54, 1
s_cmp_lg_u32 s54, 0
s_cbranch_scc1 {l}
{d}:
""")
        tile(0, last=True)
        p("s_nop 1")
        p(pv(7, V0 + 4, SB + 8))
        p(f"""
s_mul_i32 s3, s{sJ}, 13824
s_add_u32 s3, s3, {OP}
v_add_u32 v3, s3, v2
s_add_u32 s3, s3, 4096
v_lshl_add_u32 v4, v1, 2, s3
s_lshl_b32 s56, s{sTG}, 16
s_lshl_b32 s3, s{sCG}, 2
s_add_u32 s59, s3, s{sJ}
s_lshl_b32 s3, s59, 11
s_add_u32 s56, s56, s3
s_add_u32 s56, s56, {OF}
s_mov_b32 s57, 0
L_att_join:
s_waitcnt lgkmcnt(0)
s_barrier
ds_read_b32 v6, v12 offset:24
""")
        self.stamp(9)
        lq = Queue(p, "lgkmcnt", 15)
        lq.issue("f")
        PB = (48, 66, 128)
        for k in range(3):
            b = PB[k]
            if k == 2:
                lq.wait("f")
                p("v_readfirstlane_b32 s3, v6\ns_cmp_gt_u32 s3, s57\ns_cbranch_scc1 L_slow")
            for e in range(4):
                p(f"ds_read_b128 {vr(b+4*e,4)}, v3 offset:{k*4608+e*1024}")
                lq.issue(k)
            p(f"ds_read2st64_b32 {vr(b+16,2)}, v4 offset0:{k*18} offset1:{k*18+1}")
            lq.issue(k)
        for k in range(3):
            b = PB[k]
            lq.wait(k)
            for e in range(2):
                p(f"v_add_f32 v{o0+16*(6+e)+8}, v{o0+16*(6+e)+8}, v{b+16+e}")
            if k == 2:
                for e in range(2):
                    p(f"v_rcp_f32 v{8+2*e}, v{o0+16*(6+e)+8}")
            for e in range(2):
                for i in range(0, 8, 2):
                    r = o0 + 16 * (6 + e) + i
                    p(f"v_pk_add_f32 {vr(r,2)}, {vr(r,2)}, {vr(b+8*e+i,2)}")
        for e in range(2):
            for i in range(0, 8, 2):
                r = o0 + 16 * (6 + e) + i
                p(f"v_pk_mul_f32 {vr(r,2)}, {vr(r,2)}, {vr(8+2*e,2)} op_sel_hi:[1,0]")
            for i in range(4):
                r = o0 + 16 * (6 + e) + 2 * i
                p(f"v_cvt_pk_bf16_f32 v{96+4*e+i}, v{r}, v{r+1}")
            self.dual_store([f"buffer_store_dwordx4 {vr(96+4*e,4)}, v2, {srd(rWS)}, s56 offen offset:{1024*e}"])
        p(f"""
s_lshl_b32 s56, s{sTG}, 7
s_lshl_b32 s59, s59, 2
s_add_u32 s56, s56, s59
s_add_u32 s56, s56, {FO}
v_mov_b32 v6, s{sN}
v_mov_b32 v7, 0
s_waitcnt vmcnt(0)
s_mov_b64 exec, 1
""")
        self.dual_store([f"buffer_store_dword v6, v7, {srd(rWS)}, s56 offen"])
        p(f"""
s_or_b32 s3, s2, s{sW}
s_cmp_lg_u32 s3, 0
s_cbranch_scc1 L_noE
buffer_store_dword v6, v7, {srd(rWS)}, 0 offen sc1
L_noE:
s_mov_b64 exec, -1
""")
        self.stamp(10)
        p("s_branch L_finish")
        m0 = V0 + 16
        p(f"L_slow:\ns_waitcnt lgkmcnt(0)")
        for i in range(128):
            p(f"v_mov_b32 v{o0+i}, 0")
        for t in range(8):
            p(f"v_mov_b32 v{m0+t}, 0xff800000")
        p(f"s_mov_b32 s58, {KV}\nL_slow_max:\nbuffer_load_dwordx4 {vr(K0+4,4)}, v2, {srd(rWS)}, s58 offen sc1\ns_waitcnt vmcnt(0)")
        for t in range(8):
            p(qk(SA, K0 + 4, t))
            for i in range(0, 16, 2):
                p(f"v_max3_f32 v{m0+t}, v{SA+i}, v{SA+i+1}, v{m0+t}")
        p(f"s_add_u32 s58, s58, 2048\ns_cmp_lt_u32 s58, {KV + 64*2048}\ns_cbranch_scc1 L_slow_max")
        for t in range(8):
            p(f"v_mov_b32 v6, v{m0+t}\nv_permlane32_swap_b32 v6, v{m0+t}\nv_max_f32 v{m0+t}, v6, v{m0+t}")
        p(f"s_mov_b32 s57, 0\ns_mov_b32 s58, {16*2048}\nL_slow_pv:")
        p(f"""
buffer_load_dwordx4 {vr(K0,4)}, v{vK}, {srd(rWS)}, s57 offen sc1
s_mov_b64 exec, s[68:69]
buffer_load_dwordx4 {vr(V0,4)}, v{vV}, {srd(rWS)}, s57 offen sc1
buffer_load_dwordx4 {vr(V0+4,4)}, v{vV}, {srd(rWS)}, s57 offen offset:512 sc1
s_mov_b64 exec, -1
s_waitcnt vmcnt(0)
""")
        for t in range(8):
            p(qk(SA, K0, t))
            for i in range(16):
                p(f"v_sub_f32 v{SA+i}, v{SA+i}, v{m0+t}")
            for i in range(16):
                p(f"v_exp_f32 v{SA+i}, v{SA+i}")
            p(pv(t, V0, SA))
            p(pv(t, V0 + 4, SA + 8))
        p("s_add_u32 s57, s57, 2048\ns_cmp_lt_u32 s57, s58\ns_cbranch_scc1 L_slow_pv")
        for t in range(6):
            for w in opw(t):
                p(w)
        p("s_mov_b32 s57, -1\ns_branch L_att_join")

    def g_wave(self):
        p = self.p
        c2 = 2 * math.sqrt(2 / math.pi) * LOG2E
        ROT = self.o.get("rot", 1)
        D1 = self.o.get("d1", 6); HD = self.o.get("hd", 4); WD = self.o.get("wd", 4)
        p(f"""
L_G:
v_lshrrev_b32 v3, 2, v1
v_and_b32 v3, 4, v3
v_xor_b32 v14, v3, v5
v_lshlrev_b32 v9, 10, v15
v_lshl_add_u32 v9, v14, 4, v9
s_lshl_b32 s3, s{sCG}, 7
v_add_u32 v9, s3, v9
v_lshlrev_b32 v62, 11, v1
s_barrier
s_cmp_eq_u32 s{sW}, 7
s_cbranch_scc1 L_kvwave
s_and_b32 s56, s2, {7 if ROT else 0}
s_lshl_b32 s56, s56, 2
s_add_u32 s56, s56, s{sJ}
s_lshl_b32 s56, s56, 10
s_mov_b32 s55, s56
""")
        def dma_wq(n):
            h = n // 11
            t = ["s_mov_b32 s55, s56"] if n == 11 else []
            t += [f"s_add_u32 m0, s55, {WQ + 32768*h}", "s_lshl_b32 s54, s55, 3", f"s_add_u32 s54, s54, {262144*h}" if h else "s_nop 0",
                  f"buffer_load_dwordx4 v9, {srd(rWQ)}, s54 offen lds", "s_add_u32 s55, s55, 3072", "s_and_b32 s55, s55, 0x7fff"]
            return "\n".join(t)
        NPRE = self.o.get("npre", 8)
        for n in range(NPRE):
            p(dma_wq(n))
        p(f"s_waitcnt vmcnt({NPRE}) lgkmcnt(0)\ns_add_u32 s{sN}, s{sN}, 0x9e3779b9")
        self.stamp(1)
        self.unit4(inter=[dma_wq(n) for n in range(NPRE, 22)])
        self.xstamp(1, 14)
        p("s_waitcnt vmcnt(11) lgkmcnt(0)")
        self.xstamp(1, 15)
        p(f"""
s_barrier
s_waitcnt vmcnt(0)
s_branch L_gb1
L_kvwave:
s_setprio 3
v_lshrrev_b32 v3, 4, v1
v_lshlrev_b32 v3, 8, v3
v_lshl_add_u32 v3, v4, 3, v3
v_add_u32 v3, {WKV}, v3
s_waitcnt vmcnt({16 if self.o.get("ufirst", 0) else 4}) lgkmcnt(0)
s_add_u32 s{sN}, s{sN}, 0x9e3779b9
""")
        self.stamp(1)
        if self.o.get("ufirst", 0):
            p("s_setprio 1")
            self.unit4()
            p("s_setprio 3\ns_waitcnt vmcnt(0)")
        for s in range(16):
            for t in range(2):
                p(f"ds_read_b64_tr_b16 {vr(128+4*s+2*t,2)}, v3 offset:{s*1024+t*128}")
        self.cnt_wait(4, 4, 12, 7, sleep=0)
        self.stamp(2)
        self.kv_job()
        self.xstamp(1, 13)
        if not self.o.get("ufirst", 0):
            p("s_waitcnt vmcnt(1)")
            self.unit4()
        if self.o.get("kvlate", 1):
            p("s_waitcnt lgkmcnt(0)\ns_barrier")
            self.kv_flag()
        else:
            self.kv_flag()
            p("s_waitcnt lgkmcnt(0)\ns_barrier")
        p("L_gb1:\ns_barrier\ns_setprio 1")
        self.stamp(4)
        p(f"""
s_min_u32 s3, s{sCG}, 3
s_mul_i32 s59, s{sCG}, 5
s_add_u32 s59, s59, s3
s_lshr_b32 s3, s{sJ}, 1
s_mul_i32 s3, s3, 3
s_add_u32 s59, s59, s3
s_and_b32 s3, s{sJ}, 1
s_cmp_lt_u32 s{sCG}, 3
s_cselect_b32 s60, 1, 0
s_cmp_lt_u32 s{sJ}, 2
s_cselect_b32 s60, 1, s60
s_and_b32 s61, s60, s3
s_add_u32 s59, s59, s61
s_add_u32 s61, s59, s3
s_xor_b32 s3, s3, 1
s_add_u32 s62, s59, s3
v_lshrrev_b32 v133, 2, v1
v_and_b32 v133, 8, v133
""")
        p(f"""
s_and_b32 s56, s{sJ}, 1
s_xor_b32 s57, s56, 1
v_and_b32 v5, 31, v1
v_lshrrev_b32 v6, 5, v1
s_lshl_b32 s3, s56, 5
v_add_u32 v7, s3, v5
v_mul_u32_u24 v3, {XS}, v7
v_lshl_add_u32 v3, v6, 4, v3
v_lshlrev_b32 v128, 2, v7
s_lshl_b32 s3, s57, 5
v_add_u32 v7, s3, v5
v_mul_u32_u24 v4, {XS}, v7
v_lshl_add_u32 v4, v6, 4, v4
v_lshlrev_b32 v129, 2, v7
v_add_u32 v128, {ST+256}, v128
v_add_u32 v129, {ST+256}, v129
s_lshl_b32 s63, s{sJ}, 14
s_add_u32 s63, s63, {WQ}
v_mul_u32_u24 v7, 2752, v15
v_lshl_add_u32 v7, v14, 4, v7
s_lshl_b32 s3, s59, 6
v_add_u32 v7, s3, v7
v_and_b32 v132, 7, v1
v_lshlrev_b32 v132, 3, v132
s_lshl_b32 s3, s{sPOS}, 6
s_and_b32 s54, s2, 7
s_lshl_b32 s54, s54, 11
s_add_u32 s3, s3, s54
s_add_u32 s3, s3, {FKV}
v_add_u32 v132, s3, v132
""")
        self.tr_addr32(5, 6, 8, "s63", 56, False)
        p(f"""
v_xor_b32 v6, 64, v5
s_lshl_b32 s58, s{sJ}, 12
s_add_u32 s58, s58, {WKV}
s_sub_u32 s3, s58, s63
v_add_u32 v130, s3, v5
v_add_u32 v131, s3, v6
""")
        vq = Queue(p, "vmcnt", 63)
        lq = Queue(p, "lgkmcnt", 15)
        p(f"""
s_and_b32 s0, s2, {7 if ROT else 0}
s_mul_i32 s50, s0, {64*2752}
s_lshl_b32 s68, s0, 7
v_add_u32 v140, s68, v3
v_add_u32 v141, s68, v4
s_mul_i32 s51, s{sJ}, 22
s_cmp_eq_u32 s{sJ}, 3
s_cselect_b32 s51, 65, s51
s_cmp_ge_u32 s{sJ}, 2
s_cselect_b32 s69, 21, 22
s_add_u32 s69, s69, s51
s_lshl_b32 s69, s69, 14
s_lshl_b32 s{sTB}, s51, 14
s_add_u32 s3, s0, {f"s{sCG}" if self.o.get("rotc", 1) else 0}
s_and_b32 s3, s3, 7
s_mul_i32 s3, s3, 21
s_lshr_b32 s3, s3, 3
s_add_u32 s51, s51, s3
s_lshl_b32 s67, s51, 11
s_lshl_b32 s51, s51, 14
""")
        slot1 = lambda s: (s - 2) % 8
        def dma_w1(s):
            for i in range(2):
                base, off = ("s58", s * 2048) if s < 2 else ("s63", slot1(s) * 2048)
                p(f"s_add_u32 m0, {base}, {off + i * 1024}\ns_nop 0\nbuffer_load_dwordx4 v7, {srd(rW1)}, s50 offen lds\ns_add_u32 s50, s50, {8*2752}")
                vq.issue(("w1", s))
            if s % 4 == 3:
                p(f"s_cmp_eq_u32 s50, {512*2752}\ns_cselect_b32 s50, 0, s50")
        def dma_w2(i, base, slot):
            for h in range(2):
                p(f"s_add_u32 m0, s{base}, {slot * 2048 + h * 1024}\ns_nop 0\nbuffer_load_dwordx4 v9, {srd(rW2)}, s51 offen lds\ns_add_u32 s51, s51, 8192")
                vq.issue(("w2", i))
            p(f"s_cmp_eq_u32 s51, s69\ns_cselect_b32 s51, s{sTB}, s51")
        def rd1(s):
            b = 96 + 16 * (s & 1)
            a0, a1, o = (130, 131, s * 2048) if s < 2 else (5, 6, slot1(s) * 2048)
            p(f"ds_read_b64_tr_b16 {vr(b,2)}, v{a0} offset:{o}\nds_read_b64_tr_b16 {vr(b+2,2)}, v{a0} offset:{o+512}")
            if s % 4 == 0 and s:
                p(f"s_setprio 3\ns_add_u32 s68, s68, 128\ns_and_b32 s68, s68, 1023\nv_add_u32 v140, s68, v3\nv_add_u32 v141, s68, v4\ns_setprio {self.o.get('prioGm', 0)}")
            p(f"ds_read_b128 {vr(b+8,4)}, v140 offset:{(s%4)*32}\nds_read_b128 {vr(b+12,4)}, v141 offset:{(s%4)*32}")
            p(f"ds_read_b64_tr_b16 {vr(b+4,2)}, v{a1} offset:{o}\nds_read_b64_tr_b16 {vr(b+6,2)}, v{a1} offset:{o+512}")
            for _ in range(6):
                lq.issue(s)
        def nxt_dma(v):
            if v < 32:
                dma_w1(v)
            elif v < 40:
                dma_w2(v - 32, 63, slot1(v))
        p(f"""
s_mul_i32 s99, s{sTG}, {HTG}
s_add_u32 s99, s99, {HF}
s_add_u32 s67, s67, s99
s_lshl_b32 s3, s61, 12
s_add_u32 s97, s99, s3
s_lshl_b32 s3, s56, 10
s_add_u32 s96, s97, s3
s_lshl_b32 s98, s62, 12
s_add_u32 s98, s98, s99
s_add_u32 s98, s98, s3
s_lshl_b32 s3, s57, 10
s_add_u32 s97, s97, s3
""")
        p(f"""
v_lshrrev_b32 v136, 4, v1
v_lshlrev_b32 v136, 3, v136
s_lshl_b32 s54, s61, 6
s_lshl_b32 s55, s62, 6
s_lshl_b32 s48, s{sCG}, 7
""")
        for a in range(4):
            p(f"buffer_load_dwordx2 {vr(112+2*a,2)}, v133, {srd(rB1)}, s54 offen offset:{16*a}")
        for a in range(4):
            p(f"buffer_load_dwordx2 {vr(120+2*a,2)}, v133, {srd(rB1)}, s55 offen offset:{16*a}")
        vq.issue("b")
        for nt in range(4):
            p(f"buffer_load_dwordx2 {vr(144+2*nt,2)}, v136, {srd(rB2)}, s48 offen offset:{32*nt}")
            vq.issue("b2")
        dma_w1(0); dma_w1(1)
        p("ds_read_b32 v10, v128\nds_read_b32 v14, v129")
        self.tr_addr32(232, 233, 8, "s63", None, True)
        p(f"""
v_xor_b32 v233, 64, v232
s_mul_i32 s55, s{sJ}, {XSL}
s_sub_u32 s3, s55, s63
v_add_u32 v234, s3, v232
v_add_u32 v235, s3, v233
v_and_b32 v236, 6, v15
v_and_b32 v8, 7, v1
v_xor_b32 v236, v236, v8
v_lshlrev_b32 v236, 4, v236
v_lshl_add_u32 v236, v15, 10, v236
s_lshl_b32 s3, s{sCG}, 7
v_add_u32 v236, s3, v236
v_and_b32 v8, 31, v1
v_lshlrev_b32 v237, 2, v8
v_mov_b32 v238, s{sN}
v_mov_b32 v239, 0
v_and_b32 v11, 15, v1
v_lshrrev_b32 v240, 5, v1
v_xor_b32 v240, v240, v11
v_lshlrev_b32 v240, 4, v240
v_lshl_add_u32 v240, v8, 8, v240
v_add_u32 v240, s55, v240
v_lshrrev_b32 v8, 4, v1
v_xor_b32 v241, v8, v11
v_lshlrev_b32 v241, 4, v241
v_lshl_add_u32 v241, v11, 8, v241
s_lshl_b32 s54, s{sJ}, 12
v_add_u32 v241, s54, v241
v_lshlrev_b32 v242, 3, v8
s_lshl_b32 s54, s{sJ}, 14
v_lshl_add_u32 v243, v11, 10, v242
v_add_u32 v243, s54, v243
s_lshl_b32 s54, s{sTG}, 16
s_add_u32 s54, s54, s3
v_add_u32 v243, s54, v243
""")
        p(f"""
v_and_b32 v242, 1, v8
v_lshlrev_b32 v242, 9, v242
v_lshrrev_b32 v8, 1, v8
v_lshl_add_u32 v242, v8, 11, v242
v_lshl_add_u32 v242, v11, 4, v242
s_lshr_b32 s3, s{sJ}, 1
s_lshl_b32 s3, s3, 10
s_and_b32 s54, s{sJ}, 1
s_lshl_b32 s54, s54, 8
s_add_u32 s3, s3, s54
v_add_u32 v242, s3, v242
v_bfe_u32 v8, v1, 2, 3
v_lshlrev_b32 v244, 7, v8
v_lshrrev_b32 v8, 1, v8
v_lshl_or_b32 v244, v8, 5, v244
v_and_b32 v8, 3, v1
v_lshl_or_b32 v244, v8, 3, v244
v_lshrrev_b32 v8, 5, v1
v_lshl_or_b32 v244, v8, 11, v244
v_add_u32 v244, {WQ}, v244
v_xor_b32 v245, 32, v244
v_xor_b32 v246, 64, v244
v_xor_b32 v247, 96, v244
v_mov_b32 v128, {hx(-c2)}
v_mov_b32 v129, {hx(-c2)}
""")
        vq.wait("b")
        for i in range(16):
            p(f"v_lshlrev_b32 v{16+2*i}, 16, v{112+i}\nv_and_b32 v{17+2*i}, 0xffff0000, v{112+i}")
        vq.wait("b2")
        for i in range(8):
            p(f"v_lshlrev_b32 v{208+2*i}, 16, v{144+i}\nv_and_b32 v{209+2*i}, 0xffff0000, v{144+i}")
        self.cnt_wait(0, 4, 12, 8)
        self.stamp(5)
        if self.o.get("skipG"):
            p("s_waitcnt vmcnt(0)\ns_branch L_g_x")
        p(f"s_setprio {self.o.get('prioGm', 0)}")
        for s in range(2, D1):
            dma_w1(s)
        vq.wait(("w1", 0))
        rd1(0)
        for s in range(32):
            if s + 1 < 32:
                vq.wait(("w1", s + 1))
                rd1(s + 1)
            lq.wait(s)
            nxt_dma(s + D1)
            if s == 20:
                for nt in range(4):
                    p(f"buffer_load_dwordx2 {vr(224+2*nt,2)}, v243, {srd(rX)}, 0 offen offset:{32*nt}")
                    vq.issue("xr")
            if s == 16:
                p(f"buffer_load_dwordx2 v[134:135], v132, {srd(rWS)}, 0 offen sc1")
                vq.issue("x")
            b = 96 + 16 * (s & 1)
            c = lambda a: "0" if s == 0 else vr(a, 16)
            if self.o.get("nomm") and s:
                continue
            p(f"v_mfma_f32_32x32x16_bf16 v[48:63], {vr(b,4)}, {vr(b+8,4)}, {c(48)}")
            p(f"v_mfma_f32_32x32x16_bf16 v[64:79], {vr(b,4)}, {vr(b+12,4)}, {c(64)}")
            p(f"v_mfma_f32_32x32x16_bf16 v[80:95], {vr(b+4,4)}, {vr(b+8,4)}, {c(80)}")
        for v in range(32 + D1, 40):
            nxt_dma(v)
        assert "x" not in vq.q
        self.stamp(6)
        p(f"""
s_setprio {self.o.get('prioGv', 3)}
v_and_b32 v135, 15, v135
v_cmp_ne_u32 vcc, s{sN}, v134
v_cmp_ne_u32 s[48:49], s{sXCC}, v135
s_or_b64 s[48:49], s[48:49], vcc
s_cselect_b32 s{sSAME}, 0, {0 if self.o.get('nosame') else 1}
s_mov_b32 s48, {hx(-c2*0.044715)}
s_mov_b32 s49, {hx(-c2*0.044715)}
""")
        def gelu_pair(acc, bias, rr, t, out):
            return [
                f"v_pk_fma_f32 {vr(acc,2)}, {vr(acc,2)}, {vr(rr,2)}, {vr(bias,2)} op_sel_hi:[1,0,1]",
                f"v_pk_mul_f32 {vr(t,2)}, {vr(acc,2)}, {vr(acc,2)}",
                f"v_pk_fma_f32 {vr(t,2)}, {vr(t,2)}, s[48:49], v[128:129]",
                f"v_pk_mul_f32 {vr(t,2)}, {vr(t,2)}, {vr(acc,2)}",
                f"v_exp_f32 v{t}, v{t}", f"v_exp_f32 v{t+1}, v{t+1}",
                f"v_pk_add_f32 {vr(t,2)}, {vr(t,2)}, 1.0 op_sel_hi:[1,0]",
                f"v_rcp_f32 v{t}, v{t}", f"v_rcp_f32 v{t+1}, v{t+1}",
                f"v_pk_mul_f32 {vr(acc,2)}, {vr(acc,2)}, {vr(t,2)}",
                f"v_cvt_pk_bf16_f32 v{out}, v{acc}, v{acc+1}"]
        for ti, (acc, bias, rr, so) in enumerate(((48, 16, 10, 96), (64, 16, 14, 97), (80, 32, 10, 98))):
            if ti == 2:
                p("s_cmp_eq_u32 s60, 0\ns_cbranch_scc1 L_nohalf")
            for e in range(2):
                ls = [gelu_pair(acc + 8 * e + 2 * k, bias + 8 * e + 2 * k, rr, 136 + 2 * k, 160 + 8 * ti + 4 * e + k) for k in range(4)]
                for l in self.merge(*ls):
                    if not self.o.get("nogelu") or "cvt" in l:
                        p(l)
                self.dual_store([f"buffer_store_dwordx4 {vr(160+8*ti+4*e,4)}, v2, {srd(rWS)}, s{so} offen offset:{2048*e}"], self.o.get("hsc1", 2))
        p(f"""
L_nohalf:
s_lshl_b32 s56, s{sTG}, 7
s_add_u32 s56, s56, {FH}
s_lshl_b32 s3, s{sCG}, 2
s_add_u32 s3, s3, s{sJ}
s_lshl_b32 s3, s3, 2
s_add_u32 s57, s56, s3
s_mul_i32 s62, s{sJ}, {XSL}
s_lshl_b32 s61, s{sJ}, 17
s_lshl_b32 s60, s0, 11
s_waitcnt vmcnt(0)
s_mov_b64 exec, 1
""")
        self.dual_store([f"buffer_store_dword v238, v239, {srd(rWS)}, s57 offen"], self.o.get("hsc1", 2) == 1)
        p("s_mov_b64 exec, -1")
        vq.q = []
        self.stamp(7)
        p(f"s_lshr_b32 s58, s69, 3\ns_add_u32 s58, s58, s99\ns_lshr_b32 s59, s{sTB}, 3\ns_add_u32 s59, s59, s99")
        self.flag_wait(237, 56, 19, sleep=self.o.get("hsleep", 2))
        self.stamp(8)
        p(f"s_setprio {self.o.get('prioGm', 0)}")
        def ld_h(i):
            b = 128 + 8 * (i % HD)
            p(f"buffer_load_dwordx4 {vr(b,4)}, v2, {srd(rWS)}, s67 offen sc1\nbuffer_load_dwordx4 {vr(b+4,4)}, v2, {srd(rWS)}, s67 offen offset:1024 sc1\ns_add_u32 s67, s67, 2048\ns_cmp_eq_u32 s67, s58\ns_cselect_b32 s67, s59, s67")
            vq.issue(("h", i)); vq.issue(("h", i))
        def dma_wo(i):
            p(f"s_add_u32 m0, s63, s60\ns_lshl_b32 s3, s60, 3\ns_add_u32 s3, s3, s61\nbuffer_load_dwordx4 v236, {srd(rWO)}, s3 offen lds\ns_add_u32 s60, s60, 1024\ns_and_b32 s60, s60, 0x3fff")
            vq.issue(("wo", i))
        def rd2(i):
            b = 112 + 8 * (i & 1)
            a0, a1 = (232, 233) if i < 8 else (234, 235)
            o = (slot1(32 + i) if i < 8 else i % 8) * 2048
            p(f"ds_read_b64_tr_b16 {vr(b,2)}, v{a0} offset:{o}\nds_read_b64_tr_b16 {vr(b+2,2)}, v{a0} offset:{o+1024}")
            p(f"ds_read_b64_tr_b16 {vr(b+4,2)}, v{a1} offset:{o}\nds_read_b64_tr_b16 {vr(b+6,2)}, v{a1} offset:{o+1024}")
            for _ in range(4):
                lq.issue(i)
        for i in range(HD):
            ld_h(i)
        rd2(0)
        for i in range(22):
            if i + 1 < 22:
                vq.wait(("w2", i + 1))
                rd2(i + 1)
            vq.wait(("h", i))
            lq.wait(i)
            if i == 21:
                p(f"s_cmp_ge_u32 s{sJ}, 2\ns_cbranch_scc1 L_skip21")
            b = 112 + 8 * (i & 1)
            h = 128 + 8 * (i % HD)
            for mh in range(2):
                for nb in range(2):
                    if self.o.get("nomm") and i:
                        continue
                    a = 48 + 16 * (2 * mh + nb)
                    p(f"v_mfma_f32_32x32x16_bf16 {vr(a,16)}, {vr(b+4*nb,4)}, {vr(h+4*mh,4)}, {'0' if i == 0 else vr(a,16)}")
            if i + HD < 22:
                ld_h(i + HD)
            if 8 <= i + WD < 22:
                dma_w2(i + WD, 62, (i + WD) % 8)
            if 13 <= i < 21:
                dma_wo(2 * (i - 13)); dma_wo(2 * (i - 13) + 1)
        p("L_skip21:")
        self.stamp(9)
        p(f"s_setprio {self.o.get('prioGv', 3)}")
        for nb in range(2):
            for a in range(4):
                ad = 240
                if nb or a:
                    ad = 6 + (a & 1)
                    p(f"v_xor_b32 v{ad}, {(8*nb+2*a) << 4}, v240")
                for mh in range(2):
                    p(f"ds_write_b128 v{ad}, {vr(48+16*(2*mh+nb)+4*a,4)} offset:{8192*mh}")
        p("s_waitcnt vmcnt(0)")
        self.cnt_signal(5, 12, 13)
        self.cnt_wait(5, 4, 12, 8, sleep=2)
        lq.q = []
        for nt in range(4):
            if nt:
                p(f"v_xor_b32 v6, {nt << 6}, v241")
            for kq in range(4):
                p(f"ds_read_b128 {vr(128+16*nt+4*kq,4)}, v{6 if nt else 241} offset:{kq*XSL}")
                lq.issue(nt)
        p(f"s_mov_b32 s48, {hx(-LOG2E)}\ns_mov_b32 s49, {hx(-LOG2E)}\nv_mov_b32 v8, s{sSAME}")
        p(f"L_g_x:\ns_waitcnt lgkmcnt(0)\ns_mov_b64 exec, 1\nds_max_u32 v12, v8 offset:12\nds_add_u32 v12, v13 offset:8\ns_mov_b64 exec, -1")
        lq.q = []
        WP = 7
        ORD = [(6 + n) % 16 for n in range(16)]
        def rd3(s):
            b = 16 + 16 * (s % WP)
            for nt in range(4):
                for t in range(2):
                    p(f"ds_read_b64_tr_b16 {vr(b+4*nt+2*t,2)}, v{244+nt} offset:{ORD[s]*4096+t*1024}")
                    lq.issue(s)
        late = self.o.get("glate", 1)
        def gate():
            for nt in range(0, 4, 2):
                def silu_pair(r, t):
                    n4, off = (r - 208) // 4, (r - 208) % 4
                    o = [f"v_pk_add_f32 {vr(r,2)}, {vr(r,2)}, {vr(128+16*n4+4*kq+off,2)}" for kq in range(4)]
                    return o + [f"v_pk_mul_f32 {vr(t,2)}, {vr(r,2)}, s[48:49]",
                                f"v_exp_f32 v{t}, v{t}", f"v_exp_f32 v{t+1}, v{t+1}",
                                f"v_pk_add_f32 {vr(t,2)}, {vr(t,2)}, 1.0 op_sel_hi:[1,0]",
                                f"v_rcp_f32 v{t}, v{t}", f"v_rcp_f32 v{t+1}, v{t+1}",
                                f"v_pk_mul_f32 {vr(r,2)}, {vr(r,2)}, {vr(t,2)}"]
                for l in self.merge(*[silu_pair(208 + 4 * nt + 2 * k, 192 + 2 * k) for k in range(4)]):
                    p(l)
        if not late:
            gate()
        p("s_setprio 0")
        for s in range(WP):
            rd3(s)
        self.stamp(10)
        p(f"""
s_lshl_b32 s58, s{sTG}, 7
s_add_u32 s58, s58, {FO}
s_lshl_b32 s59, s{sTG}, 16
s_add_u32 s59, s59, {OF}
s_barrier
ds_read_b32 v6, v12 offset:24
s_waitcnt lgkmcnt(0)
v_readfirstlane_b32 s3, v6
s_cmp_eq_u32 s3, 0
s_cbranch_scc1 L_final
s_barrier
L_final:
""")
        lq.q = []
        if late:
            gate()
        XU = (232, 234, 238, 240, 248, 250, 252, 254)
        for i in range(8):
            p(f"v_lshlrev_b32 v{XU[i]}, 16, v{224+i}\nv_and_b32 v{XU[i]+1}, 0xffff0000, v{224+i}")
        p(f"""
v_lshrrev_b32 v8, 4, v1
v_and_b32 v9, 1, v8
v_lshrrev_b32 v10, 1, v8
v_lshlrev_b32 v8, 3, v8
v_sub_u32 v243, v243, v8
v_lshl_add_u32 v243, v9, 5, v243
v_lshl_add_u32 v243, v10, 4, v243
""")
        self.role = 3
        vq.q = []
        def o_poll():
            p(f"buffer_load_dword v8, v237, {srd(rWS)}, s58 offen sc1")
            vq.issue("p")
        def o_wait(mask):
            l, d = self.lab("ow"), self.lab("od")
            vq.wait("p")
            p(f"""
v_cmp_ne_u32 vcc, s{sN}, v8
s_mov_b32 s54, {SPIN}
s_and_b32 s3, vcc_lo, {mask}
s_cbranch_scc0 {d}
{l}:
buffer_load_dword v8, v237, {srd(rWS)}, s58 offen sc1
s_waitcnt vmcnt(0)
v_cmp_ne_u32 vcc, s{sN}, v8
s_sub_u32 s54, s54, 1
s_cselect_b64 vcc, 0, vcc
s_and_b32 s3, vcc_lo, {mask}
s_cbranch_scc1 {l}
{d}:
""")
        def o_load(n):
            p(f"s_add_u32 s3, s59, {ORD[n]*4096}\nbuffer_load_dwordx4 {vr(128+4*n,4)}, v242, {srd(rWS)}, s3 offen sc1")
            vq.issue(n)
        def o_mm(n, extra=()):
            extra = list(extra)
            vq.wait(n)
            lq.wait(n)
            b = 16 + 16 * (n % WP)
            nxt = []
            if n + WP < 16:
                for nt in range(4):
                    nxt.append([f"ds_read_b64_tr_b16 {vr(b+4*nt+2*t,2)}, v{244+nt} offset:{ORD[n+WP]*4096+t*1024}" for t in range(2)])
            for nt in range(4):
                p(f"v_mfma_f32_16x16x32_bf16 {vr(192+4*nt,4)}, {vr(b+4*nt,4)}, {vr(128+4*n,4)}, {'0' if n == 0 else vr(192+4*nt,4)}")
                if nxt:
                    for l in nxt[nt]:
                        p(l)
                        lq.issue(n + WP)
                if nt == 0:
                    for f in extra:
                        f()
        N1 = self.o.get("n1", 10)
        m_all = 0xffffffff
        m1 = sum(3 << (2 * ORD[n]) for n in range(N1))
        o_poll()
        o_wait(hex(m1))
        self.stamp(11)
        LA = self.o.get("la", 4)
        for n in range(LA):
            o_load(n)
        issued = LA
        for n in range(16):
            extra = []
            if issued < N1:
                extra.append(lambda k=issued: o_load(k))
                issued += 1
                if issued == N1 and N1 < 16:
                    extra.append(o_poll)
            elif issued < 16 and (issued > N1 or n == N1 - self.o.get("lb", 2)):
                if issued == N1:
                    o_wait(hex(m_all & ~m1))
                    self.xstamp(2, 13)
                for k in range(issued, 16):
                    o_load(k)
                issued = 16
            o_mm(n, extra)
        self.xstamp(2, 14)
        for nt in range(4):
            for i in range(2):
                r = 192 + 4 * nt + 2 * i
                p(f"v_pk_fma_f32 {vr(r,2)}, {vr(r,2)}, {vr(208+4*nt+2*i,2)}, {vr(XU[2*nt+i],2)}")
            for i in range(2):
                p(f"v_cvt_pk_bf16_f32 v{16+2*nt+i}, v{192+4*nt+2*i}, v{193+4*nt+2*i}")
        for h in range(2):
            p(f"v_permlane16_swap_b32 v{16+4*h}, v{18+4*h}\nv_permlane16_swap_b32 v{17+4*h}, v{19+4*h}")
            p(f"buffer_store_dwordx4 {vr(16+4*h,4)}, v243, {srd(rOUT)}, 0 offen offset:{64*h} {('', 'sc1', 'nt', 'sc0 sc1')[self.o.get('outf', 0)]}")

    def final(self):
        p = self.p
        p("L_finish:")
        if self.stamps:
            self.xstamp(2, 15)
            p("s_waitcnt vmcnt(0)")
            self.stamp(12)
            p(f"s_lshl_b32 s3, s2, 3\ns_add_u32 s3, s3, s{sW}\ns_lshl_b32 s3, s3, 7\ns_add_u32 s3, s3, {STAMP}\nv_mov_b32 v7, 0")
            p("s_waitcnt lgkmcnt(0)")
            for i in range(0, 16, 4):
                for k in range(4):
                    sl = self.slot(i + k) if (i + k < 13 or self.o.get("sset", 0)) else None
                    p(f"v_mov_b32 v{16+k}, s{70+2*(sl or 0)}")
                p(f"buffer_store_dwordx4 v[16:19], v7, {srd(rWS)}, s3 offen offset:{4*i}")
        if "fix" in self.o:
            p(f"s_waitcnt vmcnt(0)\nL_fix:\ns_memrealtime s[94:95]\ns_waitcnt lgkmcnt(0)\ns_sub_u32 s94, s94, s92\ns_cmp_lt_u32 s94, 10000\ns_cbranch_scc1 L_fix")
        p("L_exit:\ns_endpgm\nL_code_end:")

    def build(self, verbose=False):
        if self.stamps:
            for i in range(16):
                pass
        self.entry()
        self.role = 1
        self.a_wave()
        self.role = 2
        self.g_wave()
        self.role = 3
        self.final()
        ins = self.p.fix_hazards(verbose)
        head = open(f"cdna_kernels/{NAME}.s.ref").read().split("; Override launch")[0]
        return (head + f"; @launch grid=(256,1,1) block=(512,1,1) lds={LDS_BYTES}\n"
                + f""".amdgcn_target "amdgcn-amd-amdhsa--gfx950"
.text
.globl {NAME}_kernel
.p2align 8
.type {NAME}_kernel,@function
{NAME}_kernel:
""" + self.p.text() + f""".section .rodata,"a"
.p2align 6
.amdhsa_kernel {NAME}_kernel
  .amdhsa_next_free_vgpr 256
  .amdhsa_next_free_sgpr 102
  .amdhsa_accum_offset 256
  .amdhsa_group_segment_fixed_size 0
  .amdhsa_kernarg_size 104
  .amdhsa_user_sgpr_count 2
  .amdhsa_user_sgpr_kernarg_segment_ptr 1
  .amdhsa_system_sgpr_workgroup_id_x 1
  .amdhsa_float_denorm_mode_32 3
.end_amdhsa_kernel
""")


if __name__ == "__main__":
    out = sys.argv[1]
    opts = {}
    stamps = False
    for a in sys.argv[2:]:
        if a == "stamps":
            stamps = True
        elif a == "-v":
            opts["v"] = 1
        else:
            k, v = a.split("=")
            opts[k] = int(v)
    open(out, "w").write(Gen(stamps, opts).build(bool(opts.get("v"))))
```
